```python
import torch

def _softmax(x, axis=-1):
    return torch.softmax(x, dim=axis)
def _gelu(x):
    return torch.nn.functional.gelu(x, approximate="tanh")
def _silu(x):
    return torch.nn.functional.silu(x)
def _sigmoid(x):
    return torch.sigmoid(x)
def _layernorm(x, axis=-1, eps=1e-5):
    m = x.mean(dim=axis, keepdim=True)
    v = x.var(dim=axis, keepdim=True, unbiased=False)
    return (x - m) / torch.sqrt(v + eps)
def _scatter_add(tgt, idx, src, axis=0):
    return tgt.clone().index_add_(axis, idx, src)
def _segment_sum(src, seg, n):
    out = torch.zeros((n,) + src.shape[1:], dtype=src.dtype)
    return out.index_add_(0, seg, src)
def _pad(x, pw):
    flat = tuple(v for pair in reversed(pw) for v in pair)
    return torch.nn.functional.pad(x, flat)

kernel_name = 'interleave_layers__gqa_block_cached__mixer_token_mlp__decode'

def setup_inputs():

    _w = (lambda a: (lambda t: t.to(torch.bfloat16) if t.is_floating_point() else t)(torch.as_tensor(a)))
    def _A_setup():
        B, Sq, D = 2, 1, 512
        Hq, Hkv, Sk, Dh = 32, 32, 8192, 128
        assert Hq % Hkv == 0, (Hq, Hkv)
        return {
            "x": _w((lambda *s: torch.randn(*s, dtype=torch.bfloat16) * 0.05)(B, Sq, D)),
            "k_cache": _w((lambda *s: torch.randn(*s, dtype=torch.bfloat16) * 0.8)(B, Hkv, Sk, Dh)),
            "v_cache": _w((lambda *s: torch.randn(*s, dtype=torch.bfloat16) * 1.6)(B, Hkv, Sk, Dh)),
            "wq": _w((lambda *s: torch.randn(*s, dtype=torch.bfloat16) * 0.8)(D, Hq * Dh) * (D ** -0.5)),
            "wo": _w((lambda *s: torch.randn(*s, dtype=torch.bfloat16) * 1.6)(Hq * Dh, D) * ((Hq * Dh) ** -0.5)),
        }
    _A_in = _A_setup()

    def _B_setup():
        B, S, D, F = 2, 1, 512, 1376
        return {
            "x": _w((lambda *s: torch.randn(*s, dtype=torch.bfloat16) * 0.05)(B, S, D)),
            "w1": _w((lambda *s: torch.randn(*s, dtype=torch.bfloat16) * 0.8)(S, F) * (S ** -0.5)),
            "b1": _w((lambda *s: torch.randn(*s, dtype=torch.bfloat16) * 0.8)(F) * 0.02),
            "w2": _w((lambda *s: torch.randn(*s, dtype=torch.bfloat16) * 0.2)(F, S) * (F ** -0.5)),
            "b2": _w((lambda *s: torch.randn(*s, dtype=torch.bfloat16) * 0.2)(S) * 0.02),
        }
    _B_in = _B_setup()

    return {
        "A_x": _A_in["x"],
        "A_k_cache": _A_in["k_cache"],
        "A_v_cache": _A_in["v_cache"],
        "A_wq": _A_in["wq"],
        "A_wo": _A_in["wo"],
        "B_x": _B_in["x"],
        "B_w1": _B_in["w1"],
        "B_b1": _B_in["b1"],
        "B_w2": _B_in["w2"],
        "B_b2": _B_in["b2"],
    }

def reference(A_x, A_k_cache, A_v_cache, A_wq, A_wo, B_x, B_w1, B_b1, B_w2, B_b2):
    def _A_ref(x, k_cache, v_cache, wq, wo):
        B, Sq, D = x.shape
        Hq, Dh = 32, 128
        Hkv = k_cache.shape[1]
        rep = Hq // Hkv
        q = (lambda x, *d: x.permute(*d))((x @ wq).reshape(B, Sq, Hq, Dh), 0, 2, 1, 3)
        k = (lambda x, n, axis: torch.repeat_interleave(x, n, dim=axis))(k_cache, rep, axis=1)
        v = (lambda x, n, axis: torch.repeat_interleave(x, n, dim=axis))(v_cache, rep, axis=1)
        scores = torch.einsum("bhqd,bhkd->bhqk", q, k) * (Dh ** -0.5)
        p = _softmax(scores, axis=-1)
        o = torch.einsum("bhqk,bhkd->bhqd", p, v)
        return (lambda x, *d: x.permute(*d))(o, 0, 2, 1, 3).reshape(B, Sq, Hq * Dh) @ wo

    def _B_ref(x, w1, b1, w2, b2):
        B, S, D = x.shape
        h = _layernorm(x, axis=-1)
        u = torch.einsum("bsd,sf->bdf", h, w1) + b1
        u = _gelu(u)
        y = torch.einsum("bdf,fs->bds", u, w2) + b2
        return (lambda x, *d: x.permute(*d))(y, 0, 2, 1)

    x = A_x
    x = x + _A_ref(_layernorm(x, axis=-1), A_k_cache, A_v_cache, A_wq, A_wo)
    x = x + _B_ref(_layernorm(x, axis=-1), B_w1, B_b1, B_w2, B_b2)
    x = x + _A_ref(_layernorm(x, axis=-1), A_k_cache, A_v_cache, A_wq, A_wo)
    x = x + _B_ref(_layernorm(x, axis=-1), B_w1, B_b1, B_w2, B_b2)
    return x
```

```python
import re

TRANS = ("v_exp_f32", "v_log_f32", "v_rcp_f32", "v_rsq_f32", "v_sqrt_f32", "v_sin_f32", "v_cos_f32")
REG_RE = re.compile(r"^-?\|?(?:abs\()?([vas])(\d+)\)?\|?$")
RANGE_RE = re.compile(r"^([vas])\[(\d+):(\d+)\]$")


def regs_of(tok):
    tok = tok.strip()
    m = REG_RE.match(tok)
    if m:
        return [(m.group(1), int(m.group(2)))]
    m = RANGE_RE.match(tok)
    if m:
        return [(m.group(1), i) for i in range(int(m.group(2)), int(m.group(3)) + 1)]
    if tok == "vcc":
        return [("s", "vcc_lo"), ("s", "vcc_hi")]
    if tok in ("vcc_lo", "vcc_hi", "m0", "exec_lo", "exec_hi"):
        return [("s", tok)]
    if tok == "exec":
        return [("s", "exec_lo"), ("s", "exec_hi")]
    return []


class Ins:
    def __init__(self, text, cond):
        self.text = text
        self.cond = cond
        self.label = text.endswith(":")
        self.directive = text.startswith(".") and not self.label
        self.op = text.split()[0] if not self.label else ""
        rest = text[len(self.op):].strip() if not self.label else ""
        toks = [t.strip() for t in re.split(r",(?![^\[]*\])", rest)] if rest else []
        if toks:
            parts = toks[-1].split()
            toks[-1] = parts[0] if parts else ""
            self.mods = parts[1:]
        else:
            self.mods = []
        self.toks = toks
        op = self.op
        self.mfma = op.startswith("v_mfma") or op.startswith("v_smfmac")
        self.valu = op.startswith("v_") and not self.mfma
        self.trans = any(op.startswith(t) for t in TRANS)
        self.dpp = "_dpp" in op
        self.permlane = op.startswith("v_permlane")
        self.readlane = op.startswith("v_readlane") or op.startswith("v_readfirstlane")
        self.vmem = op.startswith("buffer_") or op.startswith("global_")
        self.ds = op.startswith("ds_")
        self.salu = op.startswith("s_") and not op.startswith("s_load") and not op.startswith("s_mem")
        self.ldsdma = self.vmem and "lds" in self.mods
        self.w, self.r, self.rc = [], [], []
        self.store_data = []
        R = [regs_of(t) for t in toks]
        if self.label or self.directive:
            return
        if self.mfma:
            self.w = R[0]
            self.r = R[1] + R[2]
            if op.startswith("v_smfmac"):
                self.r += R[3]
                self.rc = R[0]
            else:
                self.rc = R[3]
        elif self.valu:
            if op == "v_nop":
                return
            self.w = list(R[0])
            srcs = R[1:]
            if self.permlane:
                self.w += R[1]
                self.r = R[0] + R[1]
                return
            if re.match(r"v_(add|sub|subrev|addc|subb)_co_u32", op):
                self.w += R[1]
                srcs = R[2:]
            for s in srcs:
                self.r += s
            if op.startswith("v_fmac") or op.startswith("v_pk_fmac") or op.startswith("v_dot2c") or self.dpp:
                self.r += R[0]
            if op.startswith("v_cndmask_b32") and len(toks) == 3:
                self.r += regs_of("vcc")
        elif self.vmem:
            if "store" in op or "atomic" in op:
                for s in R:
                    self.r += s
                data = R[0] if op.startswith("buffer_") else R[1]
                if len(data) >= 3:
                    self.store_data = data
                if "atomic" in op and "sc0" in self.mods and op.startswith("buffer_"):
                    self.w = R[0]
            elif self.ldsdma:
                for s in R:
                    self.r += s
                self.r += regs_of("m0")
            else:
                self.w = R[0]
                for s in R[1:]:
                    self.r += s
        elif self.ds:
            if op.startswith("ds_read") or op.startswith("ds_bpermute") or op.startswith("ds_swizzle"):
                self.w = R[0]
                for s in R[1:]:
                    self.r += s
            else:
                for s in R:
                    self.r += s
        elif op.startswith("s_"):
            if op.startswith("s_cmp") or op.startswith("s_cbranch") or op in (
                    "s_branch", "s_waitcnt", "s_nop", "s_barrier", "s_endpgm", "s_sleep", "s_setprio"):
                for s in R:
                    self.r += s
            else:
                self.w = R[0] if R else []
                for s in R[1:]:
                    self.r += s
                if "saveexec" in op:
                    self.w = self.w + regs_of("exec")

    def states(self):
        if self.label or self.directive:
            return 0
        if self.op == "s_nop":
            return int(self.toks[0]) + 1
        return 1


def need(p, c):
    n = 0
    pw, cr, cw, crc = set(p.w), set(c.r), set(c.w), set(c.rc)
    vec = lambda s: {x for x in s if x[0] in "va"}
    sca = lambda s: {x for x in s if x[0] == "s"}
    if p.valu:
        hit = vec(pw) & (cr | crc)
        if hit:
            if c.mfma:
                n = max(n, 2)
            if c.dpp:
                n = max(n, 2)
            if c.permlane:
                n = max(n, 2)
            if c.readlane:
                n = max(n, 1)
            if p.trans and (c.valu or c.mfma):
                n = max(n, 1)
        shit = sca(pw) & cr
        if shit:
            if c.readlane and len(c.toks) > 2 and set(regs_of(c.toks[2])) & shit:
                n = max(n, 4)
            if c.valu:
                n = max(n, 2)
            if c.vmem:
                n = max(n, 5)
            if c.salu:
                n = max(n, 1)
    if p.mfma:
        if c.mfma:
            if pw & cr:
                n = max(n, 8)
            if pw & crc and set(c.rc) != pw:
                n = max(n, 6)
            if pw & cw and not (pw & crc):
                n = max(n, 6)
        elif (c.valu or c.vmem or c.ds) and pw & (cr | cw):
            n = max(n, 8)
        if c.valu and set(p.rc) & cw:
            n = max(n, 3)
    if p.salu and ("s", "m0") in pw and c.ldsdma:
        n = max(n, 1)
    if p.store_data and set(p.store_data) & cw:
        n = max(n, 2)
    return n


class Emitter:
    def __init__(self):
        self.ins = []
        self.cond = 0
        self.ncond = 0
        self.vm = []
        self.lg = []
        self.nlabel = 0

    def __call__(self, text):
        for line in text.split("\n"):
            line = line.split(";")[0].strip()
            if line:
                self.ins.append(Ins(line, self.cond))

    def label(self, base):
        self.nlabel += 1
        return f"L_{base}_{self.nlabel}"

    def begin_cond(self):
        self.ncond += 1
        self.cond = self.ncond

    def end_cond(self):
        self.cond = 0

    def vmem(self, text, maybe=False):
        self(text)
        tok = object()
        self.vm.append((tok, maybe))
        return tok

    def vm_count(self, maybe=False):
        tok = object()
        self.vm.append((tok, maybe))
        return tok

    def wait_vm(self, tok):
        idx = [i for i, (t, _) in enumerate(self.vm) if t is tok]
        if not idx:
            return
        i = idx[0]
        n = sum(1 for (_, mb) in self.vm[i + 1:] if not mb)
        assert n <= 63
        self(f"s_waitcnt vmcnt({n})")
        self.vm = self.vm[i + 1:]

    def wait_vm_depth(self, depth):
        if len(self.vm) > depth:
            self.wait_vm(self.vm[len(self.vm) - depth - 1][0])

    def wait_vm_all(self):
        self("s_waitcnt vmcnt(0)")
        self.vm = []

    def lds(self, text):
        self(text)
        tok = object()
        self.lg.append(tok)
        return tok

    def wait_lg(self, tok):
        if tok not in self.lg:
            return
        i = self.lg.index(tok)
        n = len(self.lg) - i - 1
        if n > 15:
            n = 15
            i = len(self.lg) - 16
        self(f"s_waitcnt lgkmcnt({n})")
        self.lg = self.lg[i + 1:]

    def wait_lg_all(self):
        self("s_waitcnt lgkmcnt(0)")
        self.lg = []

    def finish(self):
        out = []
        for c in self.ins:
            if c.label or c.directive:
                out.append(c)
                continue
            pad = 0
            dist = 0
            for p in reversed(out):
                if dist >= 9:
                    break
                if not (p.label or p.directive):
                    k = need(p, c)
                    if k > dist:
                        pad = max(pad, k - dist)
                if p.cond == 0 or p.cond == c.cond:
                    dist += p.states()
            if pad:
                out.append(Ins(f"s_nop {pad - 1}", c.cond))
            out.append(c)
        return "\n".join(("" if (i.label or i.directive) else "    ") + i.text for i in out) + "\n"
```

```python
import math
import struct
import sys

from asmlib import Emitter

KNAME = "interleave_layers__gqa_block_cached__mixer_token_mlp__decode_kernel"
REF = "interleave_layers__gqa_block_cached__mixer_token_mlp__decode.s.ref"


def fbits(x):
    return "0x%08x" % struct.unpack("<I", struct.pack("<f", x))[0]


RA = 0
RD = 4 * 256 * 640
RB = RD + 4 * 256 * 512
RC = RB + 4 * 8 * 2048
XCH_END = RC + 2 * 2048
assert XCH_END <= 256 * 5120
STAMP_OFF = 0x10000000
STAMP_REGS = [94, 95, 96, 97, 98, 99, 100, 101, 90, 91, 92, 93, 0, 1] + list(range(24, 32)) + list(range(48, 52))

OW, MLW, OBF, YW, XS, ST, MX, QW = 0, 2048, 2304, 3328, 3584, 5632, 5696, 5760
SCRATCH = 8192

sW = 3
SRD_K, SRD_V, SRD_WS, SRD_X, SRD_WQ, SRD_WO, SRD_W1, SRD_B1, SRD_W2, SRD_OUT, SRD_DBG = (
    8, 12, 16, 20, 24, 28, 32, 36, 40, 44, 48)
sROT, sOFF, sG, sR, sRHO, sFAST, sLB, sB2, sPUBHI, sCNT, sXCC, sT0, sT1, sM, sL, sSPL = (
    4, 5, 6, 7, 52, 53, 54, 55, 56, 57, 58, 59, 60, 61, 62, 63)
sHI = 64
sODD = 66
sQ4 = 68
sBK = 76
sTP = 84
sTQ = 86
sSTMP = 88
sKA = 68

vLANE, vK, vV, vL = 0, 1, 2, 3
vMK = 4
vQ1 = 8
vS1 = 12
vT = 16


def srd(b):
    return f"s[{b}:{b + 3}]"


def v(a, n=1):
    return f"v{a}" if n == 1 else f"v[{a}:{a + n - 1}]"


def sp(a):
    return f"s[{a}:{a + 1}]"


class Gen:
    def __init__(self, depth=6, nwork=48, pace=300, stamps=False, spin=1 << 16,
                 win=(4, 4, 4, 2), tail_rr=(4, 4, 4, 4), wo_pol="", wq_pol="nt", force_slow=False,
                 shadow=(8, 8), hs_at=26):
        self.e = Emitter()
        self.depth = depth
        self.nwork = nwork
        self.pace = pace
        self.stamps = stamps
        self.spin = spin
        self.win = win
        self.tail_rr = list(tail_rr)
        self.wo_pol = wo_pol
        self.wq_pol = wq_pol
        self.force_slow = force_slow
        self.shadow = shadow
        self.hs_at = hs_at
        self.nvslot = (256 - nwork) // 4
        self.nhome = 128 - 64 - self.nvslot
        self.wave_lds = (163840 - SCRATCH) // 4
        self.WQO, self.WOO, self.HOME = 0, 4096, 8192
        self.RING = self.HOME + self.nhome * 1024
        self.ring = (self.wave_lds - self.RING) // 1024
        self.ool = []
        self.nstamp = 0
        self.stamp_names = []
        self.last_issue = 0
        self.items = []
        self.issued = 0
        self.toks = {}
        self.order = []
        self.home = {}
        self.k1_done = 0
        self.mode = "A"

    def T(self, i, n=1):
        assert vT + i + n <= self.nwork, (i, n)
        return v(vT + i, n)

    def stamp(self, name):
        if not self.stamps:
            return
        e = self.e
        e(f"s_memrealtime {sp(sSTMP)}")
        e.wait_lg_all()
        e(f"s_mov_b32 s{STAMP_REGS[self.nstamp]}, s{sSTMP}")
        self.stamp_names.append(name)
        self.nstamp += 1

    def dump_stamps(self):
        if not self.stamps:
            return
        e = self.e
        for k in range(self.nstamp):
            e(f"v_writelane_b32 v{vT}, s{STAMP_REGS[k]}, {k}")
        e(f"s_lshl_b32 s{sT0}, s2, 2")
        e(f"s_add_u32 s{sT0}, s{sT0}, s{sW}")
        e(f"s_lshl_b32 s{sT0}, s{sT0}, 7")
        e(f"s_add_u32 s{sT0}, s{sT0}, {STAMP_OFF}")
        e(f"v_lshlrev_b32 v{vT + 1}, 2, v{vLANE}")
        e("s_mov_b32 exec_hi, 0")
        e(f"buffer_store_dword v{vT}, v{vT + 1}, {srd(SRD_WS)}, s{sT0} offen")

    def cycles(self):
        t = 0
        for i in self.e.ins[self.last_issue:]:
            t += 16 if i.mfma else 4 * i.states()
        return t

    def reg_home(self, k):
        if k < 64:
            return ("r", f"a[{4 * k}:{4 * k + 3}]")
        b = self.nwork + 4 * (k - 64)
        assert b + 3 < 256
        return ("r", v(b, 4))

    def issue(self):
        e = self.e
        if self.issued >= len(self.items):
            return False
        key = self.items[self.issued]
        kind, b, t = key[:3]
        if kind == "K" and b == 1 and len(key) == 3 and self.mode == "W":
            assert t - self.k1_done < self.ring, "ring overrun"
            self.home[key] = ("l", self.RING + (t % self.ring) * 1024)
        elif key not in self.home:
            if self.mode == "W":
                return False
            self.home[key] = self.reg_home(self.next_home)
            assert self.next_home < self.free_homes(), "home not free yet"
            self.next_home += 1
        if self.issued >= self.depth:
            e.wait_vm(self.toks[self.items[self.issued - self.depth]])
        if b == 1 and t == 0 and len(key) == 3:
            r = vK if kind == "K" else vV
            e(f"v_add_u32 v{r}, 0x4000000, v{r}")
        hk, hv = self.home[key]
        e(f"s_add_u32 s{sOFF}, s{sROT}, {t}")
        if hk == "l":
            e(f"s_add_u32 m0, s{sLB}, {hv}")
        e(f"s_and_b32 s{sOFF}, s{sOFF}, 63")
        e(f"s_lshl_b32 s{sOFF}, s{sOFF}, 12")
        va, sr = (vK, SRD_K) if kind == "K" else (vV, SRD_V)
        if hk == "l":
            self.toks[key] = e.vmem(f"buffer_load_dwordx4 v{va}, {srd(sr)}, s{sOFF} offen nt lds")
        else:
            self.toks[key] = e.vmem(f"buffer_load_dwordx4 {hv}, v{va}, {srd(sr)}, s{sOFF} offen nt")
        self.issued += 1
        self.last_issue = len(e.ins)
        return True

    def stream(self, k):
        for _ in range(k):
            self.issue()

    def tick(self):
        if self.cycles() >= self.pace:
            self.issue()

    def arrive(self, key):
        n = self.items.index(key)
        while self.issued < min(n + self.depth, len(self.items)):
            if not self.issue():
                break
        assert self.issued > n
        self.e.wait_vm(self.toks[key])

    def process_k1(self, upto=None, wait=False):
        e = self.e
        while self.k1_done < 64:
            key = ("K", 1, self.k1_done)
            n = self.items.index(key)
            if wait:
                self.arrive(key)
            elif n >= self.issued - self.depth + 1:
                break
            else:
                e.wait_vm(self.toks[key])
            self.qk_slow(key, self.k1_done)
            self.k1_done += 1
            self.tick()

    def idle(self, k):
        if self.mode == "W":
            for _ in range(k):
                self.process_k1()
                self.issue()
            self.process_k1()
        else:
            self.stream(k)

    def qk_slow(self, key, t):
        e = self.e
        hk, hv = self.home[key]
        if hk == "l":
            tok = e.lds(f"ds_read_b128 {self.T(24, 4)}, v{vL} offset:{hv}")
            e.wait_lg(tok)
            src = self.T(24, 4)
        else:
            src = hv
        acc = vT + 28
        e(f"v_mfma_f32_16x16x32_bf16 {v(acc, 4)}, {src}, {v(vQ1, 4)}, 0")
        U, sg = t >> 4, t & 15
        j = 4 * (sg & 3) + (sg >> 2)
        e(f"s_mov_b32 vcc_lo, {0x00010001 << j}")
        e(f"s_mov_b32 vcc_hi, {0x00010001 << j}")
        tm = vT + 24
        self.diag(tm, acc)
        e(f"v_cndmask_b32 v{vS1 + U}, v{vS1 + U}, v{tm}, vcc")

    def diag_ops(self, tm, acc):
        ops = [f"v_mov_b32_dpp v{tm}, v{acc} quad_perm:[0,0,0,0] row_mask:0xf bank_mask:0xf"]
        for r in (1, 2, 3):
            ops.append(f"v_add_f32_dpp v{tm}, v{acc + r}, v{tm} quad_perm:[{r},{r},{r},{r}] row_mask:0xf bank_mask:0xf")
        return ops

    def diag(self, tm, acc):
        for o in self.diag_ops(tm, acc):
            self.e(o)

    def mask_q(self, q, qm):
        for m in range(4):
            for i in range(4):
                self.e(f"v_cndmask_b32_e64 v{qm + 4 * m + i}, 0, v{q + i}, {sp(sBK + 2 * m)}")

    def qk_fast(self, keys, qm, S, acc, stage, groups, hook=None, arrive=None):
        e = self.e
        order = [4 * u + m for u in groups for m in range(4)]
        lds_q = [t for t in order if self.home.get(keys[t], ("r",))[0] == "l"]
        staged = {}
        free = list(stage)

        def prefetch():
            while lds_q and free:
                t = lds_q.pop(0)
                if arrive:
                    arrive(keys[t])
                r = free.pop(0)
                staged[t] = (r, e.lds(f"ds_read_b128 {v(r, 4)}, v{vL} offset:{self.home[keys[t]][1]}"))

        for gi, u in enumerate(groups + [None, None]):
            ops = []
            if gi >= 2:
                pu = groups[gi - 2]
                a = acc + 4 * ((gi - 2) % 3)
                dp = lambda r: f"quad_perm:[{r},{r},{r},{r}] row_mask:0xf bank_mask:0xf"
                ops = [f"v_mov_b32_dpp v{a}, v{a} {dp(0)}",
                       f"v_mov_b32_dpp v{a + 2}, v{a + 2} {dp(2)}",
                       f"v_add_f32_dpp v{a}, v{a + 1}, v{a} {dp(1)}",
                       f"v_add_f32_dpp v{a + 2}, v{a + 3}, v{a + 2} {dp(3)}",
                       f"v_add_f32 v{a}, v{a}, v{a + 2}",
                       f"v_cndmask_b32_e64 v{S + (pu >> 2)}, v{S + (pu >> 2)}, v{a}, {sp(sQ4 + 2 * (pu & 3))}"]
            if u is None:
                for o in ops:
                    e(o)
                continue
            a = acc + 4 * (gi % 3)
            for m in range(4):
                t = 4 * u + m
                prefetch()
                if t in staged:
                    r, tok = staged.pop(t)
                    e.wait_lg(tok)
                    src = v(r, 4)
                else:
                    r = None
                    if arrive:
                        arrive(keys[t])
                    src = self.home[keys[t]][1]
                c = "0" if m == 0 else v(a, 4)
                e(f"v_mfma_f32_16x16x32_bf16 {v(a, 4)}, {src}, {v(qm + 4 * m, 4)}, {c}")
                if r is not None:
                    free.append(r)
                if hook:
                    hook(t)
                if ops:
                    e(ops.pop(0))
                    if m == 3:
                        e(ops.pop(0))
                        e(ops.pop(0))
            self.tick()

    def wave_reduce(self, op, regs):
        e = self.e
        for ctl in ("quad_perm:[1,0,3,2] row_mask:0xf", "quad_perm:[2,3,0,1] row_mask:0xf",
                    "row_half_mirror row_mask:0xf", "row_mirror row_mask:0xf",
                    "row_bcast:15 row_mask:0xa", "row_bcast:31 row_mask:0xc"):
            for r in regs:
                e(f"{op}_dpp v{r}, v{r}, v{r} {ctl} bank_mask:0xf")

    def softmax(self, S, R, tm):
        e = self.e
        c = 128 ** -0.5 * math.log2(math.e)
        e(f"v_max3_f32 v{tm}, v{S}, v{S + 1}, v{S + 2}")
        e(f"v_max_f32 v{tm}, v{tm}, v{S + 3}")
        self.wave_reduce("v_max_f32", [tm])
        e(f"v_mul_f32 v{tm}, {fbits(c)}, v{tm}")
        e(f"v_mov_b32 v{tm + 1}, {fbits(c)}")
        e(f"v_readlane_b32 s{sM}, v{tm}, 63")
        for i in range(4):
            e(f"v_fma_f32 v{S + i}, v{S + i}, v{tm + 1}, -s{sM}")
        for i in range(4):
            e(f"v_exp_f32 v{S + i}, v{S + i}")
        for i in range(4):
            e(f"v_cvt_pk_bf16_f32 v{R + 2 * i}, v{S + i}, v{S + i}")
        for i in range(4):
            e(f"v_mov_b32 v{R + 2 * i + 1}, v{R + 2 * i}")
        e(f"v_add_f32 v{tm}, v{S}, v{S + 1}")
        for i in range(4):
            e(f"v_mov_b32_dpp v{R + 2 * i}, v{R + 2 * i + 1} row_shr:4 row_mask:0xf bank_mask:0xa")
        e(f"v_add_f32 v{tm + 1}, v{S + 2}, v{S + 3}")
        for i in range(4):
            e(f"v_mov_b32_dpp v{R + 2 * i + 1}, v{R + 2 * i + 1} row_shl:4 row_mask:0xf bank_mask:0x5")
        e(f"v_add_f32 v{tm}, v{tm}, v{tm + 1}")
        self.wave_reduce("v_add_f32", [tm])
        e(f"v_readlane_b32 s{sL}, v{tm}, 63")

    def pv(self, keys, R, O, AB, stage, hook=None, arrive=None):
        e = self.e
        steps = [(u, p) for u in range(16) for p in range(2)]
        order = [t for (u, p) in steps for t in (4 * u + p, 4 * u + p + 2)]
        lds_q = [t for t in order if self.home.get(keys[t], ("r",))[0] == "l"]
        staged = {}
        free = list(stage)

        def prefetch():
            while lds_q and free:
                t = lds_q.pop(0)
                if arrive:
                    arrive(keys[t])
                r = free.pop(0)
                staged[t] = (r, e.lds(f"ds_read_b128 {v(r, 4)}, v{vL} offset:{self.home[keys[t]][1]}"))

        def build(k):
            u, p = steps[k]
            c = u & 3
            a = AB + 4 * (k & 1)
            return [f"v_and_b32_dpp v{a + q}, v{R + 2 * (u >> 2) + p}, v{vMK + q} "
                    f"quad_perm:[{c},{c},{c},{c}] row_mask:0xf bank_mask:0xf" for q in range(4)]

        prefetch()
        for o in build(0):
            e(o)
        for k, (u, p) in enumerate(steps):
            nxt = build(k + 1) if k + 1 < len(steps) else []
            a = AB + 4 * (k & 1)
            for half, t in enumerate((4 * u + p, 4 * u + p + 2)):
                for o in nxt[2 * half:2 * half + 2]:
                    e(o)
                prefetch()
                if t in staged:
                    r, tok = staged.pop(t)
                    e.wait_lg(tok)
                    src = v(r, 4)
                else:
                    r = None
                    if arrive:
                        arrive(keys[t])
                    src = self.home[keys[t]][1]
                o_ = O + 4 * half
                c = "0" if k == 0 else v(o_, 4)
                e(f"v_mfma_f32_16x16x32_bf16 {v(o_, 4)}, {v(a, 4)}, {src}, {c}")
                if r is not None:
                    free.append(r)
                if hook:
                    hook(t)
            self.tick()

    def gather(self, loads, regs, tmp, between):
        e = self.e
        tok = None
        for l in loads:
            if l.startswith("buffer_"):
                tok = e.vmem(l)
            else:
                e(l)
        between()
        e.wait_vm(tok)
        chk = []
        rs = list(regs)
        chk.append(f"v_max3_u32 v{tmp}, v{rs[0]}, v{rs[1]}, v{rs[2]}")
        rs = rs[3:]
        while len(rs) >= 2:
            chk.append(f"v_max3_u32 v{tmp}, v{tmp}, v{rs[0]}, v{rs[1]}")
            rs = rs[2:]
        if rs:
            chk.append(f"v_max_u32 v{tmp}, v{tmp}, v{rs[0]}")
        chk.append(f"v_cmp_eq_u32 vcc, -1, v{tmp}")
        self.retry(loads, chk)

    def retry(self, loads, chk):
        e = self.e
        lr, ll, ok = e.label("retry"), e.label("rloop"), e.label("ok")
        for c in chk:
            e(c)
        e(f"s_cbranch_vccnz {lr}")
        e(f"{ok}:")
        blk = [f"{lr}:", f"s_mov_b32 s{sCNT}, {self.spin}", f"{ll}:"] + list(loads) + ["s_waitcnt vmcnt(0)"] + chk
        blk += [f"s_cbranch_vccz {ok}", f"s_sub_u32 s{sCNT}, s{sCNT}, 1", f"s_cmp_lg_u32 s{sCNT}, 0",
                f"s_cbranch_scc1 {ll}", f"s_branch {ok}"]
        self.ool.append(blk)

    def publish_local(self, ins):
        e = self.e
        ls, ld = e.label("slow"), e.label("pub")
        e(f"s_cmp_eq_u32 s{sFAST}, 0")
        e(f"s_cbranch_scc1 {ls}")
        tok = e.vmem(ins)
        e(f"{ld}:")
        self.ool.append([f"{ls}:", ins + " sc1", f"s_branch {ld}"])
        return tok

    def wave0(self, body):
        e = self.e
        l = e.label("w0")
        e(f"s_cmp_lg_u32 s{sW}, 0")
        e(f"s_cbranch_scc1 {l}")
        e.begin_cond()
        r = body()
        e.end_cond()
        e(f"{l}:")
        return r

    def barrier(self):
        self.e.wait_lg_all()
        self.e("s_barrier")

    def half_sum(self, a):
        e = self.e
        e(f"v_permlane32_swap_b32 v{a}, v{a + 2}")
        e(f"v_permlane32_swap_b32 v{a + 1}, v{a + 3}")
        e(f"v_add_f32 v{a}, v{a}, v{a + 2}")
        e(f"v_add_f32 v{a + 1}, v{a + 1}, v{a + 3}")

    def step_p(self, use, O):
        e = self.e
        T = lambda i: vT + i
        for r in range(4):
            e(f"v_cndmask_b32_e64 v{O + r}, v{O + r}, v{O + 4 + r}, {sp(sHI)}")
        a0, a1 = O + 4, O + 5
        e(f"v_and_b32 v{a0}, 15, v{vLANE}")
        e(f"v_lshlrev_b32 v{a0}, 5, v{a0}")
        e(f"v_bfe_u32 v{a1}, v{vLANE}, 4, 1")
        e(f"v_lshl_add_u32 v{a0}, v{a1}, 4, v{a0}")
        e(f"v_lshrrev_b32 v{a1}, 5, v{vLANE}")
        e(f"v_lshl_add_u32 v{a0}, v{a1}, 3, v{a0}")
        e(f"s_lshl_b32 s{sT0}, s{sW}, 9")
        e(f"v_add_u32 v{a0}, s{sT0}, v{a0}")
        self.half_sum(O)
        e.lds(f"ds_write_b64 v{a0}, {v(O, 2)} offset:{OW}")
        e(f"s_lshl_b32 s{sT0}, s{sW}, 3")
        e(f"v_mov_b32 v{O + 2}, s{sM}")
        e(f"v_mov_b32 v{O + 3}, s{sL}")
        e(f"v_mov_b32 v{a1}, s{sT0}")
        e("s_mov_b64 exec, 1")
        e.lds(f"ds_write_b64 v{a1}, {v(O + 2, 2)} offset:{MLW}")
        e("s_mov_b64 exec, -1")
        e(f"v_and_b32 v{T(12)}, 31, v{vLANE}")
        e(f"s_lshl_b32 s{sT0}, s{sW}, 7")
        e(f"v_lshl_add_u32 v{T(13)}, v{T(12)}, 2, s{sT0}")
        e(f"v_mov_b32 v{T(14)}, 0")
        e(f"v_lshlrev_b32 v{T(12)}, 2, v{T(12)}")
        e(f"v_add_u32 v{T(12)}, 512, v{T(12)}")
        e(f"v_cndmask_b32_e64 v{T(12)}, v{T(13)}, v{T(12)}, {sp(sHI)}")
        e(f"s_mul_i32 s{sT0}, s{sRHO}, 640")
        e(f"s_add_u32 s{sT0}, s{sT0}, {RA + use * 256 * 640}")
        self.barrier()
        e.lds(f"ds_read_b128 {v(T(0), 4)}, v{T(14)} offset:{MLW}")
        t1 = e.lds(f"ds_read_b128 {v(T(4), 4)}, v{T(14)} offset:{MLW + 16}")
        for w in range(4):
            t2 = e.lds(f"ds_read_b32 v{T(8 + w)}, v{T(13)} offset:{OW + 512 * w}")
        e.wait_lg(t1)
        e(f"v_max3_f32 v{T(14)}, v{T(0)}, v{T(2)}, v{T(4)}")
        e(f"v_max_f32 v{T(14)}, v{T(14)}, v{T(6)}")
        for w in range(4):
            e(f"v_sub_f32 v{T(2 * w)}, v{T(2 * w)}, v{T(14)}")
        for w in range(4):
            e(f"v_exp_f32 v{T(2 * w)}, v{T(2 * w)}")
        e.wait_lg(t2)
        e(f"v_mul_f32 v{T(15)}, v{T(0)}, v{T(8)}")
        e(f"v_mul_f32 v{T(13)}, v{T(0)}, v{T(1)}")
        for w in range(1, 4):
            e(f"v_fmac_f32 v{T(15)}, v{T(2 * w)}, v{T(8 + w)}")
            e(f"v_fmac_f32 v{T(13)}, v{T(2 * w)}, v{T(2 * w + 1)}")
        e(f"v_cndmask_b32_e64 v{T(14)}, v{T(14)}, v{T(13)}, {sp(sODD)}")
        e(f"v_cndmask_b32_e64 v{T(15)}, v{T(15)}, v{T(14)}, {sp(sHI)}")
        e(f"s_mov_b32 exec_hi, s{sPUBHI}")
        tok = self.publish_local(f"buffer_store_dword v{T(15)}, v{T(12)}, {srd(SRD_WS)}, s{sT0} offen")
        e("s_mov_b32 exec_hi, -1")
        return tok

    def step_a(self, use, between):
        e = self.e
        T = lambda i: vT + i
        e(f"v_lshrrev_b32 v{T(20)}, 5, v{vLANE}")
        e(f"v_and_b32 v{T(21)}, 31, v{vLANE}")
        e(f"v_lshlrev_b32 v{T(18)}, 4, v{T(21)}")
        e(f"v_mul_u32_u24 v{T(22)}, 640, v{T(20)}")
        e(f"v_add_u32 v{T(18)}, v{T(18)}, v{T(22)}")
        e(f"v_and_b32 v{T(19)}, 7, v{vLANE}")
        e(f"v_xor_b32 v{T(19)}, v{T(19)}, v{T(20)}")
        e(f"v_mul_u32_u24 v{T(19)}, 640, v{T(19)}")
        e(f"s_lshl_b32 s{sT1}, s{sG}, 2")
        e(f"s_add_u32 s{sT1}, s{sT1}, s{sW}")
        e(f"s_mul_i32 s{sT1}, s{sT1}, {8 * 640}")
        e(f"s_add_u32 s{sT1}, s{sT1}, {RA + use * 256 * 640}")
        loads = [f"buffer_load_dwordx2 {v(T(16), 2)}, v{T(19)}, {srd(SRD_WS)}, s{sT1} offen offset:512 sc1"]
        loads += [f"buffer_load_dwordx4 {v(T(4 * u), 4)}, v{T(18)}, {srd(SRD_WS)}, s{sT1} offen offset:{1280 * u} sc1"
                  for u in range(4)]

        def mid():
            e(f"v_lshlrev_b32 v{T(21)}, 3, v{T(21)}")
            e(f"v_lshl_add_u32 v{T(21)}, v{T(20)}, 2, v{T(21)}")
            e(f"s_lshl_b32 s{sT0}, s{sW}, 8")
            e(f"v_add_u32 v{T(21)}, s{sT0}, v{T(21)}")
            e(f"v_lshrrev_b32 v{T(22)}, 4, v{vLANE}")
            e(f"v_lshl_add_u32 v{T(23)}, v{T(22)}, 4, s{sT0}")
            e(f"v_and_b32 v{T(24)}, 15, v{vLANE}")
            e(f"v_lshlrev_b32 v{T(24)}, 3, v{T(24)}")
            e(f"v_lshl_add_u32 v{T(24)}, v{T(22)}, 8, v{T(24)}")
            e(f"v_add_u32 v{T(24)}, s{sLB}, v{T(24)}")
            e(f"s_lshl_b32 s{sT0}, s{sW}, 6")
            e(f"v_lshl_add_u32 v{T(25)}, v{T(22)}, 4, s{sT0}")
            between()

        self.gather(loads, [T(i) for i in range(18)], T(20), mid)
        m, l, t = T(16), T(17), T(20)
        e(f"v_max_f32_dpp v{t}, v{m}, v{m} quad_perm:[1,0,3,2] row_mask:0xf bank_mask:0xf")
        e(f"v_max_f32_dpp v{t}, v{t}, v{t} quad_perm:[2,3,0,1] row_mask:0xf bank_mask:0xf")
        e(f"v_max_f32_dpp v{t}, v{t}, v{t} row_half_mirror row_mask:0xf bank_mask:0xf")
        e(f"v_sub_f32 v{m}, v{m}, v{t}")
        e(f"v_exp_f32 v{m}, v{m}")
        e(f"v_mul_f32 v{l}, v{m}, v{l}")
        e(f"v_add_f32_dpp v{l}, v{l}, v{l} quad_perm:[1,0,3,2] row_mask:0xf bank_mask:0xf")
        e(f"v_add_f32_dpp v{l}, v{l}, v{l} quad_perm:[2,3,0,1] row_mask:0xf bank_mask:0xf")
        e(f"v_add_f32_dpp v{l}, v{l}, v{l} row_half_mirror row_mask:0xf bank_mask:0xf")
        e(f"v_rcp_f32 v{l}, v{l}")
        e(f"v_mul_f32 v{m}, v{m}, v{l}")
        acc = T(28)
        for k in range(4):
            e(f"v_mul_f32_dpp v{acc + k}, v{m}, v{T(k)} row_newbcast:0 row_mask:0xf bank_mask:0xf")
        for u in range(1, 4):
            for k in range(4):
                e(f"v_fmac_f32_dpp v{acc + k}, v{m}, v{T(4 * u + k)} row_newbcast:{2 * u} row_mask:0xf bank_mask:0xf")
        e.wait_vm(self.tok_wo)
        wt = []
        for n in range(4):
            e.lds(f"ds_read_b64_tr_b16 {v(T(4 * n), 2)}, v{T(24)} offset:{self.WOO + 1024 * n}")
            wt.append(e.lds(f"ds_read_b64_tr_b16 {v(T(4 * n + 2), 2)}, v{T(24)} offset:{self.WOO + 1024 * n + 128}"))
        self.half_sum(acc)
        e(f"v_cvt_pk_bf16_f32 v{acc}, v{acc}, v{acc + 1}")
        e.lds(f"ds_write_b32 v{T(21)}, v{acc} offset:{OBF}")
        bb = [T(16), T(28)]
        D = T(20)
        a_b, a_y = T(26), T(27)
        e(f"v_mov_b32 v{a_b}, v{T(23)}")
        e(f"v_mov_b32 v{a_y}, v{T(25)}")
        tb = [e.lds(f"ds_read_b128 {v(bb[0], 4)}, v{a_b} offset:{OBF}")]
        tb.append(e.lds(f"ds_read_b128 {v(bb[1], 4)}, v{a_b} offset:{OBF + 64}"))
        for n in range(4):
            e.wait_lg(tb[n])
            c = "0" if n == 0 else v(D, 4)
            e(f"v_mfma_f32_16x16x32_bf16 {v(D, 4)}, {v(T(4 * n), 4)}, {v(bb[n & 1], 4)}, {c}")
            if n < 2:
                tb.append(e.lds(f"ds_read_b128 {v(bb[n & 1], 4)}, v{a_b} offset:{OBF + 64 * (n + 2)}"))
        e(f"v_lshlrev_b32 v{T(0)}, 2, v{vLANE}")
        e(f"s_lshl_b32 s{sT0}, s{sG}, 11")
        e(f"s_lshl_b32 s{sT1}, s{sR}, 6")
        e(f"s_add_u32 s{sT0}, s{sT0}, s{sT1}")
        e(f"s_add_u32 s{sT0}, s{sT0}, {RB + use * 16384}")
        e("s_mov_b32 exec_lo, 0x00010001")
        e("s_mov_b32 exec_hi, 0x00010001")
        e.lds(f"ds_write_b128 v{a_y}, {v(D, 4)} offset:{YW}")
        e("s_mov_b64 exec, -1")
        self.barrier()

        def pub():
            e("s_mov_b64 exec, 0xffff")
            for w in range(4):
                e(f"ds_read_b32 v{T(2 + w)}, v{T(0)} offset:{YW + 64 * w}")
            e("s_waitcnt lgkmcnt(0)")
            e(f"v_add_f32 v{T(2)}, v{T(2)}, v{T(3)}")
            e(f"v_add_f32 v{T(4)}, v{T(4)}, v{T(5)}")
            e(f"v_add_f32 v{T(2)}, v{T(2)}, v{T(4)}")
            tok = e.vmem(f"buffer_store_dword v{T(2)}, v{T(0)}, {srd(SRD_WS)}, s{sT0} offen sc1", maybe=True)
            e("s_mov_b64 exec, -1")
            return tok

        return self.wave0(pub)

    def step_b(self, use, b, layer, between):
        e = self.e
        T = lambda i: vT + i
        e(f"v_lshrrev_b32 v{T(28)}, 5, v{vLANE}")
        e(f"v_and_b32 v{T(29)}, 31, v{vLANE}")
        e(f"s_lshl_b32 s{sT0}, s{sW}, 9")
        e(f"v_lshl_add_u32 v{T(30)}, v{T(29)}, 4, s{sT0}")
        e(f"v_lshl_add_u32 v{T(27)}, v{T(28)}, 11, v{T(30)}")
        e(f"v_lshl_add_u32 v{T(30)}, v{T(28)}, 3, v{T(30)}")
        e(f"s_mul_i32 s{sT0}, s{sW}, 768")
        e(f"v_mul_u32_u24 v{T(31)}, 12, v{vLANE}")
        e(f"v_add_u32 v{T(31)}, s{sT0}, v{T(31)}")
        e.vmem(f"buffer_load_dwordx3 {v(T(18), 3)}, v{T(31)}, {srd(SRD_W1)}, 0 offen")
        e.vmem(f"buffer_load_dwordx3 {v(T(22), 3)}, v{T(31)}, {srd(SRD_B1)}, 0 offen")
        if layer == 1:
            e(f"v_lshrrev_b32 v{T(29)}, 1, v{T(30)}")
            e.vmem(f"buffer_load_dword v{T(16)}, v{T(29)}, {srd(SRD_X)}, 0 offen offset:{1024 * b}")
        else:
            e(f"s_mov_b32 s{sT0}, {RC + 2048 * b}")
            e.vmem(f"buffer_load_dwordx2 {v(T(16), 2)}, v{T(30)}, {srd(SRD_WS)}, s{sT0} offen sc1")
        e(f"v_mov_b32 v{T(21)}, v{T(30)}")
        e.vmem(f"buffer_load_dwordx3 {v(T(28), 3)}, v{T(31)}, {srd(SRD_W2)}, 0 offen")
        loads = []
        for u in range(4):
            loads.append(f"s_mov_b32 s{sT1}, {RB + use * 16384 + 4096 * u}")
            loads.append(f"buffer_load_dwordx4 {v(T(4 * u), 4)}, v{T(27)}, {srd(SRD_WS)}, s{sT1} offen sc1")
        self.gather(loads, [T(i) for i in range(16)], T(25), between)
        for k in range(4):
            e(f"v_add_f32 v{T(k)}, v{T(k)}, v{T(4 + k)}")
            e(f"v_add_f32 v{T(8 + k)}, v{T(8 + k)}, v{T(12 + k)}")
        for k in range(4):
            e(f"v_add_f32 v{T(k)}, v{T(k)}, v{T(8 + k)}")
        if layer == 1:
            e(f"v_and_b32 v{T(17)}, 0xffff0000, v{T(16)}")
            e(f"v_lshlrev_b32 v{T(16)}, 16, v{T(16)}")
        self.half_sum(T(0))
        e(f"v_add_f32 v{T(16)}, v{T(16)}, v{T(0)}")
        e(f"v_add_f32 v{T(17)}, v{T(17)}, v{T(1)}")
        e.lds(f"ds_write_b64 v{T(21)}, {v(T(16), 2)} offset:{XS}")
        s1, s2 = T(26), T(27)
        e(f"v_add_f32 v{s1}, v{T(16)}, v{T(17)}")
        e(f"v_mul_f32 v{s2}, v{T(16)}, v{T(16)}")
        e(f"v_fmac_f32 v{s2}, v{T(17)}, v{T(17)}")
        e(f"s_lshl_b32 s{sT0}, s{sW}, 3")
        e(f"v_mov_b32 v{T(25)}, s{sT0}")
        self.wave_reduce("v_add_f32", [s1, s2])
        e("s_mov_b32 exec_lo, 0")
        e("s_mov_b32 exec_hi, 0x80000000")
        e.lds(f"ds_write_b64 v{T(25)}, {v(s1, 2)} offset:{ST}")
        e("s_mov_b64 exec, -1")
        W1, B1, W2 = T(0), T(6), [T(12), T(13), T(14), T(15), T(16), T(17)]
        for i in range(3):
            e(f"v_lshlrev_b32 v{W1 + 2 * i}, 16, v{T(18 + i)}")
            e(f"v_and_b32 v{W1 + 2 * i + 1}, 0xffff0000, v{T(18 + i)}")
            e(f"v_lshlrev_b32 v{B1 + 2 * i}, 16, v{T(22 + i)}")
            e(f"v_and_b32 v{B1 + 2 * i + 1}, 0xffff0000, v{T(22 + i)}")
        e(f"s_lshl_b32 s{sT0}, s2, 3")
        e(f"v_mov_b32 v{T(31)}, s{sT0}")
        e(f"v_mov_b32 v{T(21)}, 0")
        self.barrier()
        for i in range(3):
            e(f"v_lshlrev_b32 v{W2[2 * i]}, 16, v{T(28 + i)}")
            e(f"v_and_b32 v{W2[2 * i + 1]}, 0xffff0000, v{T(28 + i)}")
        e.lds(f"ds_read_b128 {v(T(22), 4)}, v{T(21)} offset:{ST}")
        e.lds(f"ds_read_b128 {v(T(26), 4)}, v{T(21)} offset:{ST + 16}")
        e.lds(f"ds_read_b64 {v(T(18), 2)}, v{T(31)} offset:{XS}")
        e.wait_lg_all()
        xo = T(18)
        e(f"v_add_f32 v{T(22)}, v{T(22)}, v{T(24)}")
        e(f"v_add_f32 v{T(23)}, v{T(23)}, v{T(25)}")
        e(f"v_add_f32 v{T(26)}, v{T(26)}, v{T(28)}")
        e(f"v_add_f32 v{T(27)}, v{T(27)}, v{T(29)}")
        e(f"v_add_f32 v{T(22)}, v{T(22)}, v{T(26)}")
        e(f"v_add_f32 v{T(23)}, v{T(23)}, v{T(27)}")
        mean, var, rs = T(22), T(23), T(24)
        self.mean_var(mean, var)
        e(f"v_add_f32 v{rs}, {fbits(1e-5)}, v{var}")
        e(f"v_rsq_f32 v{rs}, v{rs}")
        e(f"v_mul_f32 v{var}, v{var}, v{rs}")
        e(f"v_fmaak_f32 v{var}, v{var}, v{rs}, {fbits(1e-5)}")
        e(f"v_rsq_f32 v{var}, v{var}")
        h = T(20)
        e(f"v_sub_f32 v{h}, v{xo}, v{mean}")
        e(f"v_sub_f32 v{h + 1}, v{xo + 1}, v{mean}")
        e(f"v_mul_f32 v{rs}, v{rs}, v{var}")
        e(f"v_mul_f32 v{h}, v{h}, v{rs}")
        e(f"v_mul_f32 v{h + 1}, v{h + 1}, v{rs}")
        k = 2.0 * math.sqrt(2.0 / math.pi) * math.log2(math.e)
        c2 = T(22)
        e(f"v_mov_b32 v{c2}, {fbits(-k * 0.044715)}")
        acc = T(30)
        U, E = T(24), T(26)
        for f in range(6):
            for c in range(2):
                e(f"v_fma_f32 v{U + c}, v{h + c}, v{W1 + f}, v{B1 + f}")
            for c in range(2):
                e(f"v_mul_f32 v{E + c}, v{U + c}, v{U + c}")
            for c in range(2):
                e(f"v_fmaak_f32 v{E + c}, v{c2}, v{E + c}, {fbits(-k)}")
            for c in range(2):
                e(f"v_mul_f32 v{E + c}, v{U + c}, v{E + c}")
            for c in range(2):
                e(f"v_exp_f32 v{E + c}, v{E + c}")
            for c in range(2):
                e(f"v_add_f32 v{E + c}, 1.0, v{E + c}")
            for c in range(2):
                e(f"v_rcp_f32 v{E + c}, v{E + c}")
            for c in range(2):
                e(f"v_mul_f32 v{U + c}, v{U + c}, v{W2[f]}")
            for c in range(2):
                if f == 0:
                    e(f"v_mul_f32 v{acc + c}, v{U + c}, v{E + c}")
                else:
                    e(f"v_fmac_f32 v{acc + c}, v{U + c}, v{E + c}")
            self.tick()
        e(f"s_lshl_b32 s{sT0}, s{sW}, 3")
        e(f"v_mov_b32 v{T(25)}, s{sT0}")
        self.wave_reduce("v_add_f32", [acc, acc + 1])
        e("s_mov_b32 exec_lo, 0")
        e("s_mov_b32 exec_hi, 0x80000000")
        e.lds(f"ds_write_b64 v{T(25)}, {v(acc, 2)} offset:{MX}")
        e("s_mov_b64 exec, -1")
        e(f"v_mov_b32 v{T(21)}, 0")
        self.barrier()

        def pub():
            e("s_mov_b64 exec, 1")
            e(f"ds_read_b128 {v(T(0), 4)}, v{T(21)} offset:{MX}")
            e(f"ds_read_b128 {v(T(4), 4)}, v{T(21)} offset:{MX + 16}")
            e(f"v_add_f32 v{xo}, s{sB2}, v{xo}")
            e(f"v_add_f32 v{xo + 1}, s{sB2}, v{xo + 1}")
            if layer == 1:
                e(f"s_lshl_b32 s{sT0}, s2, 3")
                e(f"s_add_u32 s{sT0}, s{sT0}, {RC + 2048 * b}")
            else:
                e(f"s_lshl_b32 s{sT0}, s2, 2")
                e(f"s_add_u32 s{sT0}, s{sT0}, {1024 * b}")
            e("s_waitcnt lgkmcnt(0)")
            for c in range(2):
                e(f"v_add_f32 v{T(c)}, v{T(c)}, v{T(2 + c)}")
                e(f"v_add_f32 v{T(4 + c)}, v{T(4 + c)}, v{T(6 + c)}")
            for c in range(2):
                e(f"v_add_f32 v{T(c)}, v{T(c)}, v{T(4 + c)}")
            for c in range(2):
                e(f"v_add_f32 v{T(c)}, v{T(c)}, v{xo + c}")
            if layer == 1:
                tok = e.vmem(f"buffer_store_dwordx2 {v(T(0), 2)}, v{T(21)}, {srd(SRD_WS)}, s{sT0} offen sc1", maybe=True)
            else:
                e(f"v_cvt_pk_bf16_f32 v{T(0)}, v{T(0)}, v{T(1)}")
                tok = e.vmem(f"buffer_store_dword v{T(0)}, v{T(21)}, {srd(SRD_OUT)}, s{sT0} offen", maybe=True)
            e("s_mov_b64 exec, -1")
            return tok

        return self.wave0(pub)

    def mean_var(self, s1, s2):
        e = self.e
        e(f"v_mul_f32 v{s1}, {fbits(1 / 512)}, v{s1}")
        e(f"v_mul_f32 v{s2}, {fbits(1 / 512)}, v{s2}")
        e(f"v_fma_f32 v{s2}, -v{s1}, v{s1}, v{s2}")
        e(f"v_max_f32 v{s2}, 0, v{s2}")

    def step_c(self, use, b, first, between):
        e = self.e
        T = lambda i: vT + i
        e(f"s_lshl_b32 s{sT0}, s{sSPL}, 2")
        e(f"s_add_u32 s{sT0}, s{sT0}, s{sW}")
        e(f"s_lshl_b32 s{sT0}, s{sT0}, 6")
        e(f"v_lshrrev_b32 v{T(29)}, 4, v{vLANE}")
        e(f"v_lshl_add_u32 v{T(29)}, v{T(29)}, 4, s{sT0}")
        e(f"v_lshlrev_b32 v{T(28)}, 4, v{vLANE}")
        if first:
            e(f"v_lshrrev_b32 v{T(29)}, 1, v{T(29)}")
            e.vmem(f"buffer_load_dwordx4 {v(T(12), 4)}, v{T(28)}, {srd(SRD_X)}, 0 offen offset:{1024 * b}")
            tok = e.vmem(f"buffer_load_dwordx2 {v(T(16), 2)}, v{T(29)}, {srd(SRD_X)}, 0 offen offset:{1024 * b}")
            between()
            e.wait_vm(tok)
            for i in range(6):
                e(f"v_lshlrev_b32 v{T(2 * i)}, 16, v{T(12 + i)}")
                e(f"v_and_b32 v{T(2 * i + 1)}, 0xffff0000, v{T(12 + i)}")
        else:
            e(f"s_mov_b32 s{sT1}, {RC + 2048 * b}")
            loads = [f"buffer_load_dwordx4 {v(T(0), 4)}, v{T(28)}, {srd(SRD_WS)}, s{sT1} offen sc1",
                     f"buffer_load_dwordx4 {v(T(4), 4)}, v{T(28)}, {srd(SRD_WS)}, s{sT1} offen offset:1024 sc1",
                     f"buffer_load_dwordx4 {v(T(8), 4)}, v{T(29)}, {srd(SRD_WS)}, s{sT1} offen sc1"]
            self.gather(loads, [T(i) for i in range(12)], T(30), between)
        e.wait_vm(self.tok_wq)
        wt = [e.lds(f"ds_read_b128 {v(T(12 + 4 * n), 4)}, v{vL} offset:{self.WQO + 1024 * n}") for n in range(4)]
        s1, s2 = T(28), T(29)
        e(f"v_add_f32 v{s1}, v{T(0)}, v{T(1)}")
        e(f"v_mul_f32 v{s2}, v{T(0)}, v{T(0)}")
        e(f"v_fmac_f32 v{s2}, v{T(1)}, v{T(1)}")
        for i in range(2, 8):
            e(f"v_add_f32 v{s1}, v{s1}, v{T(i)}")
            e(f"v_fmac_f32 v{s2}, v{T(i)}, v{T(i)}")
        self.wave_reduce("v_add_f32", [s1, s2])
        self.mean_var(s1, s2)
        e(f"v_add_f32 v{s2}, {fbits(1e-5)}, v{s2}")
        e(f"v_rsq_f32 v{s2}, v{s2}")
        e(f"v_readlane_b32 s{sT0}, v{s1}, 63")
        e(f"v_readlane_b32 s{sT1}, v{s2}, 63")
        for n in range(4):
            e(f"v_subrev_f32 v{T(8 + n)}, s{sT0}, v{T(8 + n)}")
        for n in range(4):
            e(f"v_mul_f32 v{T(8 + n)}, s{sT1}, v{T(8 + n)}")
        for n in range(4):
            e(f"v_cvt_pk_bf16_f32 v{T(8 + n)}, v{T(8 + n)}, v{T(8 + n)}")
        D = T(0)
        ab = [T(4), T(28)]
        for q in range(4):
            e(f"v_and_b32 v{ab[0] + q}, v{T(8)}, v{vMK + q}")
        for n in range(4):
            if n < 3:
                for q in range(4):
                    e(f"v_and_b32 v{ab[(n + 1) & 1] + q}, v{T(9 + n)}, v{vMK + q}")
            e.wait_lg(wt[n])
            c = "0" if n == 0 else v(D, 4)
            e(f"v_mfma_f32_16x16x32_bf16 {v(D, 4)}, {v(ab[n & 1], 4)}, {v(T(12 + 4 * n), 4)}, {c}")
        e(f"v_and_b32 v{T(8)}, 15, v{vLANE}")
        e(f"v_lshlrev_b32 v{T(8)}, 5, v{T(8)}")
        e(f"v_bfe_u32 v{T(9)}, v{vLANE}, 4, 1")
        e(f"v_lshl_add_u32 v{T(8)}, v{T(9)}, 4, v{T(8)}")
        e(f"s_lshl_b32 s{sT0}, s{sW}, 9")
        e(f"v_add_u32 v{T(8)}, s{sT0}, v{T(8)}")
        e(f"s_lshl_b32 s{sT0}, s{sW}, 7")
        e(f"v_lshl_add_u32 v{T(9)}, v{vLANE}, 2, s{sT0}")
        e(f"s_lshl_b32 s{sT0}, s{sRHO}, 9")
        e(f"s_add_u32 s{sT0}, s{sT0}, {RD + use * 256 * 512}")
        e("s_mov_b32 exec_hi, 0")
        e.lds(f"ds_write_b128 v{T(8)}, {v(D, 4)} offset:{QW}")
        self.barrier()
        for w in range(4):
            e.lds(f"ds_read_b32 v{T(4 + w)}, v{T(9)} offset:{QW + 512 * w}")
        e.wait_lg_all()
        e(f"v_add_f32 v{T(4)}, v{T(4)}, v{T(5)}")
        e(f"v_add_f32 v{T(6)}, v{T(6)}, v{T(7)}")
        e(f"v_add_f32 v{T(4)}, v{T(4)}, v{T(6)}")
        tok = self.publish_local(f"buffer_store_dword v{T(4)}, v{T(9)}, {srd(SRD_WS)}, s{sT0} offen")
        e("s_mov_b32 exec_hi, -1")
        return tok

    def step_d(self, use, q, between):
        e = self.e
        T = lambda i: vT + i
        e(f"v_bfe_u32 v{T(17)}, v{vLANE}, 2, 2")
        e(f"v_lshlrev_b32 v{T(16)}, 10, v{T(17)}")
        e(f"v_lshrrev_b32 v{T(17)}, 4, v{vLANE}")
        e(f"v_lshl_add_u32 v{T(16)}, v{T(17)}, 7, v{T(16)}")
        e(f"v_and_b32 v{T(17)}, 3, v{vLANE}")
        e(f"v_lshl_add_u32 v{T(16)}, v{T(17)}, 5, v{T(16)}")
        e(f"s_lshr_b32 s{sT1}, s{sRHO}, 3")
        e(f"s_lshl_b32 s{sT1}, s{sT1}, 12")
        e(f"s_add_u32 s{sT1}, s{sT1}, {RD + use * 256 * 512}")
        loads = [f"buffer_load_dwordx4 {v(T(4 * i), 4)}, v{T(16)}, {srd(SRD_WS)}, s{sT1} offen offset:{o} sc1"
                 for i, o in enumerate((0, 16, 512, 528))]
        self.gather(loads, [T(i) for i in range(16)], T(17), between)
        for i in range(8):
            e(f"v_add_f32 v{T(i)}, v{T(i)}, v{T(8 + i)}")
        for ror in (4, 8):
            for i in range(8):
                e(f"v_add_f32_dpp v{T(i)}, v{T(i)}, v{T(i)} row_ror:{ror} row_mask:0xf bank_mask:0xf")
        for i in range(4):
            e(f"v_cvt_pk_bf16_f32 v{q + i}, v{T(2 * i)}, v{T(2 * i + 1)}")

    def prologue(self):
        e = self.e
        T = lambda i: vT + i
        e("s_cmp_ge_u32 s2, 256")
        e("s_cbranch_scc1 L_end")
        self.stamp("start")
        e(f"s_load_dwordx16 s[{sKA}:{sKA + 15}], s[0:1], 0")
        e(f"s_load_dwordx8 s[{sKA + 16}:{sKA + 23}], s[0:1], 64")
        e(f"s_load_dwordx2 s[{sKA + 24}:{sKA + 25}], s[0:1], 96")
        e(f"v_lshrrev_b32 v{T(0)}, 6, v0")
        e(f"v_and_b32 v{vLANE}, 63, v0")
        e(f"v_readfirstlane_b32 s{sW}, v{T(0)}")
        e(f"s_and_b32 s{sG}, s2, 7")
        e(f"s_lshr_b32 s{sR}, s2, 3")
        e(f"s_lshl_b32 s{sRHO}, s{sG}, 5")
        e(f"s_add_u32 s{sRHO}, s{sRHO}, s{sR}")
        e(f"s_and_b32 s{sSPL}, s{sRHO}, 7")
        e(f"s_lshr_b32 s{sT0}, s{sRHO}, 3")
        e(f"s_lshl_b32 s{sROT}, s{sSPL}, 3")
        e(f"s_add_u32 s{sROT}, s{sROT}, s{sT0}")
        e(f"s_lshl_b32 s{sT0}, s{sRHO}, 18")
        e(f"s_lshl_b32 s{sT1}, s{sW}, 10")
        e(f"s_add_u32 s{sT0}, s{sT0}, s{sT1}")
        e(f"v_and_b32 v{T(0)}, 3, v{vLANE}")
        e(f"v_bfe_u32 v{T(1)}, v{vLANE}, 2, 2")
        e(f"v_lshrrev_b32 v{T(2)}, 4, v{vLANE}")
        e(f"v_lshl_add_u32 v{vK}, v{T(0)}, 4, s{sT0}")
        e(f"v_lshl_add_u32 v{vK}, v{T(1)}, 8, v{vK}")
        e(f"v_lshl_add_u32 v{vK}, v{T(2)}, 6, v{vK}")
        e(f"v_lshl_add_u32 v{vV}, v{vLANE}, 4, s{sT0}")
        e(f"s_mul_i32 s{sLB}, s{sW}, {self.wave_lds}")
        e(f"s_add_u32 s{sLB}, s{sLB}, {SCRATCH}")
        e(f"v_lshl_add_u32 v{vL}, v{vLANE}, 4, s{sLB}")
        ptr = lambda i: sKA + 2 * i

        def mk(base, i, nbytes):
            e(f"s_mov_b32 s{base}, s{ptr(i)}")
            e(f"s_mov_b32 s{base + 1}, s{ptr(i) + 1}")
            e(f"s_mov_b32 s{base + 2}, {nbytes}")
            e(f"s_mov_b32 s{base + 3}, 0x20000")

        e("s_waitcnt lgkmcnt(0)")
        mk(SRD_K, 1, 0x8000000)
        self.stream(self.depth)
        e(f"s_load_dword s{sB2}, s[{ptr(9)}:{ptr(9) + 1}], 0")
        mk(SRD_V, 2, 0x8000000)
        mk(SRD_WS, 12, 0x20000000)
        mk(SRD_X, 0, 2048)
        mk(SRD_WQ, 3, 0x400000)
        mk(SRD_WO, 4, 0x400000)
        mk(SRD_W1, 6, 2752)
        mk(SRD_B1, 7, 2752)
        mk(SRD_W2, 8, 2752)
        mk(SRD_OUT, 10, 2048)
        mk(SRD_DBG, 11, 256)
        e("s_waitcnt lgkmcnt(0)")
        e(f"s_lshl_b32 s{sB2}, s{sB2}, 16")
        for i in range(4):
            e(f"v_mov_b32 v{T(4 + i)}, -1")
        e(f"s_mul_i32 s{sT0}, s2, 5120")
        e(f"s_mul_i32 s{sT1}, s{sW}, 1280")
        e(f"s_add_u32 s{sT0}, s{sT0}, s{sT1}")
        e(f"v_lshlrev_b32 v{T(0)}, 4, v{vLANE}")
        e(f"v_lshlrev_b32 v{T(1)}, 2, v{vLANE}")
        e.vmem(f"buffer_store_dwordx4 {v(T(4), 4)}, v{T(0)}, {srd(SRD_WS)}, s{sT0} offen sc1")
        tok_clear = e.vmem(f"buffer_store_dword v{T(4)}, v{T(1)}, {srd(SRD_WS)}, s{sT0} offen offset:1024 sc1")
        e(f"s_lshl_b32 s{sT0}, s{sSPL}, 2")
        e(f"s_add_u32 s{sT0}, s{sT0}, s{sW}")
        e(f"s_lshl_b32 s{sT0}, s{sT0}, 17")
        e(f"s_lshr_b32 s{sT1}, s{sRHO}, 3")
        e(f"s_lshl_b32 s{sT1}, s{sT1}, 8")
        e(f"s_add_u32 s{sT0}, s{sT0}, s{sT1}")
        e(f"v_and_b32 v{T(3)}, 15, v{vLANE}")
        e(f"v_lshlrev_b32 v{T(3)}, 4, v{T(3)}")
        e(f"v_lshl_add_u32 v{T(3)}, v{T(2)}, 15, v{T(3)}")
        for n in range(4):
            e(f"s_add_u32 m0, s{sLB}, {self.WQO + 1024 * n}")
            e(f"s_add_u32 s{sT1}, s{sT0}, {8192 * n}")
            self.tok_wq = e.vmem(f"buffer_load_dwordx4 v{T(3)}, {srd(SRD_WQ)}, s{sT1} offen {self.wq_pol} lds")
        e(f"s_mov_b32 s{sHI}, 0")
        e(f"s_mov_b32 s{sHI + 1}, -1")
        e(f"s_mov_b32 s{sODD}, 0xaaaaaaaa")
        e(f"s_mov_b32 s{sODD + 1}, 0xaaaaaaaa")
        for c in range(4):
            for hh in range(2):
                e(f"s_mov_b32 s{sQ4 + 2 * c + hh}, {0x11111111 << c}")
                e(f"s_mov_b32 s{sBK + 2 * c + hh}, {0x000f000f << (4 * c)}")
        e(f"s_cmp_eq_u32 s{sW}, 0")
        e(f"s_cselect_b32 s{sPUBHI}, -1, 0")
        e(f"v_and_b32 v{T(8)}, 1, v{vLANE}")
        e(f"v_lshlrev_b32 v{T(8)}, 4, v{T(8)}")
        e(f"v_mov_b32 v{T(9)}, 0xffff")
        e(f"v_lshlrev_b32 v{T(8)}, v{T(8)}, v{T(9)}")
        e(f"v_bfe_u32 v{T(9)}, v{vLANE}, 1, 2")
        for q in range(4):
            e(f"v_cmp_eq_u32 vcc, {q}, v{T(9)}")
            e(f"v_cndmask_b32 v{vMK + q}, 0, v{T(8)}, vcc")
        e(f"s_getreg_b32 s{sXCC}, hwreg(HW_REG_XCC_ID, 0, 4)")
        e(f"s_lshl_b32 s{sXCC}, s{sXCC}, 3")
        self.stream(4)
        e.wait_vm(tok_clear)
        e("s_barrier")

        def arrive():
            e(f"s_lshl_b64 {sp(sTP)}, 1, s{sXCC}")
            e(f"s_lshl_b32 s{sT0}, s{sG}, 3")
            e(f"v_mov_b32 v{T(4)}, s{sTP}")
            e(f"v_mov_b32 v{T(5)}, s{sTP + 1}")
            e(f"v_mov_b32 v{T(6)}, s{sT0}")
            e("s_mov_b64 exec, 1")
            e.vmem(f"buffer_atomic_add_x2 {v(T(4), 2)}, v{T(6)}, {srd(SRD_DBG)}, 0 offen sc1", maybe=True)
            e("s_mov_b64 exec, -1")

        self.wave0(arrive)
        e(f"s_lshl_b32 s{sT0}, s{sG}, 2")
        e(f"s_add_u32 s{sT0}, s{sT0}, s{sW}")
        e(f"s_lshl_b32 s{sT0}, s{sT0}, 17")
        e(f"s_lshl_b32 s{sT1}, s{sR}, 5")
        e(f"s_add_u32 s{sT0}, s{sT0}, s{sT1}")
        e(f"v_lshrrev_b32 v{T(8)}, 1, v{vLANE}")
        e(f"v_and_b32 v{T(9)}, 1, v{vLANE}")
        e(f"v_lshlrev_b32 v{T(9)}, 4, v{T(9)}")
        e(f"v_lshl_add_u32 v{T(8)}, v{T(8)}, 10, v{T(9)}")
        for n in range(4):
            self.stream(1)
            e(f"s_add_u32 m0, s{sLB}, {self.WOO + 1024 * n}")
            e(f"s_add_u32 s{sT1}, s{sT0}, {32768 * n}")
            self.tok_wo = e.vmem(f"buffer_load_dwordx4 v{T(8)}, {srd(SRD_WO)}, s{sT1} offen {self.wo_pol} lds")

    def handshake(self):
        e = self.e
        T = lambda i: vT + i
        e(f"v_and_b32 v{T(2)}, 7, v{vLANE}")
        e(f"v_lshlrev_b32 v{T(2)}, 3, v{T(2)}")
        ld = f"buffer_load_dwordx2 {v(T(0), 2)}, v{T(2)}, {srd(SRD_DBG)}, 0 offen sc1"
        tok = e.vmem(ld)
        self.stream(self.depth - 1)
        e.wait_vm(tok)
        chk = [f"v_sad_u8 v{T(3)}, v{T(0)}, 0, 0", f"v_sad_u8 v{T(3)}, v{T(1)}, 0, v{T(3)}",
               f"v_cmp_ne_u32 vcc, 32, v{T(3)}"]
        self.retry([ld], chk)
        e(f"v_readlane_b32 s{sTQ}, v{T(0)}, s{sG}")
        e(f"v_readlane_b32 s{sTQ + 1}, v{T(1)}, s{sG}")
        e(f"s_lshl_b64 {sp(sTP)}, 32, s{sXCC}")
        e("s_nop 1")
        e(f"s_cmp_eq_u64 {sp(sTP)}, {sp(sTQ)}")
        e(f"s_cselect_b32 s{sFAST}, {0 if self.force_slow else 1}, 0")

    def free_homes(self):
        return self.freed

    def build(self):
        e = self.e
        T = lambda i: vT + i
        D = self.depth
        K0 = [("K", 0, t) for t in range(64)]
        V0 = [("V", 0, t) for t in range(64)]
        K1 = [("K", 1, t) for t in range(64)]
        V1 = [("V", 1, t) for t in range(64)]
        self.items = K0 + V0 + K1 + V1
        for t in range(64):
            self.home[K0[t]] = self.reg_home(t)
            if t < self.nhome:
                self.home[V0[t]] = ("l", self.HOME + 1024 * t)
            else:
                self.home[V0[t]] = self.reg_home(64 + t - self.nhome)
        self.next_home = 0
        self.freed = 0
        follow = lambda: self.stream(D - 1)

        self.prologue()
        self.stamp("prologue")
        self.stream(self.hs_at - self.issued)
        self.handshake()
        self.stamp("handshake")
        self.step_c(1, 1, True, follow)
        self.step_c(0, 0, True, follow)
        self.step_d(1, vQ1, follow)
        self.step_d(0, T(28), follow)
        self.stamp("q1")
        QM, ACC = T(0), T(16)
        S0 = vS1
        self.mask_q(T(28), QM)
        self.qk_fast(K0, QM, S0, ACC, [], list(range(16)), arrive=self.arrive)
        R, O, AB, STG = T(0), T(16), T(8), [T(24), T(28)]
        self.softmax(S0, R, T(8))
        self.mode = "W"
        self.pv(V0, R, O, AB, STG, arrive=self.arrive)
        self.stamp("pv0")
        w = self.win
        self.step_p(0, O)
        self.idle(w[0])
        self.step_a(0, follow)
        self.stamp("a0")
        self.idle(w[1])
        self.step_b(0, 0, 1, follow)
        self.stamp("b0")
        self.idle(w[2])
        self.step_c(2, 0, False, follow)
        self.stamp("c0")
        self.idle(w[3])
        self.step_d(2, T(28), follow)
        self.stamp("d0")
        self.n_ring = self.issued - 128
        assert self.n_ring <= 64
        n_rr = max(self.n_ring - self.ring, 0)
        RR = [("K", 1, t, "again") for t in range(n_rr - 1, -1, -1)]
        self.items += RR
        self.mode = "C"
        self.mask_q(T(28), QM)

        def free_k(t):
            self.freed = t + 1

        self.qk_fast(K0, QM, T(28), ACC, [], list(range(16)), hook=free_k)
        self.softmax(T(28), R, T(8))
        self.pv(V0, R, O, AB, STG)
        self.freed = 64 + self.nvslot
        self.stamp("pass2_0")
        self.step_p(1, O)
        self.process_k1()
        self.stream(self.shadow[0])
        self.step_a(1, follow)
        self.process_k1()
        self.stream(self.shadow[1])
        self.step_b(1, 0, 2, follow)
        self.stamp("out0")
        self.process_k1(wait=True)
        self.softmax(vS1, R, T(8))
        self.pv(V1, R, O, AB, STG, arrive=self.arrive)
        self.stamp("pv1")
        self.mode = "T"
        self.pace = 1 << 30
        rr = self.tail_rr

        def settle(tok):
            e.wait_vm(tok)
            e("s_barrier")

        tok = self.step_p(2, O)
        settle(tok)
        tok = self.step_a(2, lambda: self.stream(rr[0]))
        self.stamp("a1")
        settle(tok)
        tok = self.step_b(2, 1, 1, lambda: self.stream(rr[1]))
        self.stamp("b1")
        settle(tok)
        tok = self.step_c(3, 1, False, lambda: self.stream(rr[2]))
        self.stamp("c1")
        settle(tok)
        self.step_d(3, T(28), lambda: self.stream(rr[3]))
        self.stamp("d1")
        K1b = [("K", 1, t, "again") if t < n_rr else K1[t] for t in range(64)]
        self.mask_q(T(28), QM)
        spare = [self.nwork + 4 * (k - 64) for k in range(128 - self.ring if n_rr else 128 - self.n_ring, 64 + self.nvslot)]
        assert len(spare) >= 2
        self.qk_fast(K1b, QM, vS1, ACC, spare, list(range(15, -1, -1)), arrive=self.arrive)
        self.softmax(vS1, R, T(8))
        self.pv(V1, R, O, AB, STG)
        self.stamp("pass2_1")
        tok = self.step_p(3, O)
        settle(tok)
        tok = self.step_a(3, lambda: None)
        self.stamp("a3")
        settle(tok)
        self.step_b(3, 1, 2, lambda: None)
        self.stamp("end")
        self.epilogue()

    def epilogue(self):
        e = self.e
        self.dump_stamps()
        e("L_end:")
        e("s_endpgm")
        for blk in self.ool:
            for l in blk:
                e(l)

    def text(self):
        self.build()
        head = [l for l in open(REF).read().split("\n") if l.startswith(";") and "@launch" not in l]
        body = self.e.finish()
        out = "\n".join(head) + "\n"
        out += "; @launch grid=(256,1,1) block=(256,1,1) lds=163840\n"
        out += '.amdgcn_target "amdgcn-amd-amdhsa--gfx950"\n.text\n'
        out += f".globl {KNAME}\n.p2align 8\n.type {KNAME},@function\n{KNAME}:\n"
        out += body
        out += '.section .rodata,"a"\n.p2align 6\n'
        out += f".amdhsa_kernel {KNAME}\n"
        out += "  .amdhsa_next_free_vgpr 512\n  .amdhsa_next_free_sgpr 102\n  .amdhsa_accum_offset 256\n"
        out += "  .amdhsa_group_segment_fixed_size 0\n  .amdhsa_kernarg_size 104\n"
        out += "  .amdhsa_user_sgpr_count 2\n  .amdhsa_user_sgpr_kernarg_segment_ptr 1\n"
        out += "  .amdhsa_system_sgpr_workgroup_id_x 1\n.end_amdhsa_kernel\n"
        return out


if __name__ == "__main__":
    cfg = eval(sys.argv[2]) if len(sys.argv) > 2 else {}
    g = Gen(**cfg)
    open(sys.argv[1], "w").write(g.text())
    print("ring", g.ring, "n_ring", g.n_ring, "items", len(g.items), "instructions", len(g.e.ins))
```

```python
import math
import struct
import sys

from asmlib import Emitter

KNAME = "interleave_layers__gqa_block_cached__mixer_token_mlp__decode_kernel"
REF = "interleave_layers__gqa_block_cached__mixer_token_mlp__decode.s.ref"


def fbits(x):
    return "0x%08x" % struct.unpack("<I", struct.pack("<f", x))[0]


RA = 0
RD = 4 * 256 * 640
RB = RD + 4 * 256 * 512
RC = RB + 4 * 8 * 2048
XCH_END = RC + 2 * 2048
assert XCH_END <= 256 * 5120
STAMP_OFF = 0x10000000
STAMP_REGS = [94, 95, 96, 97, 98, 99, 100, 101, 90, 91, 92, 93, 0, 1] + list(range(24, 32)) + list(range(48, 52))

OW, MLW, OBF, YW, XS, ST, MX, QW = 0, 2048, 2304, 3328, 3584, 5632, 5696, 5760
SCRATCH = 8192

sW = 3
SRD_K, SRD_V, SRD_WS, SRD_X, SRD_WQ, SRD_WO, SRD_W1, SRD_B1, SRD_W2, SRD_OUT, SRD_DBG = (
    8, 12, 16, 20, 24, 28, 32, 36, 40, 44, 48)
sROT, sOFF, sG, sR, sRHO, sFAST, sLB, sB2, sPUBHI, sCNT, sXCC, sT0, sT1, sM, sL, sSPL = (
    4, 5, 6, 7, 52, 53, 54, 55, 56, 57, 58, 59, 60, 61, 62, 63)
sHI = 64
sODD = 66
sQ4 = 68
sBK = 76
sTP = 84
sTQ = 86
sSTMP = 88
sKA = 68

vLANE, vK, vV, vL = 0, 1, 2, 3
vMK = 4
vQ1 = 8
vS1 = 12
vT = 16


def srd(b):
    return f"s[{b}:{b + 3}]"


def v(a, n=1):
    return f"v{a}" if n == 1 else f"v[{a}:{a + n - 1}]"


def sp(a):
    return f"s[{a}:{a + 1}]"


class Gen:
    def __init__(self, depth=6, nwork=48, pace=300, stamps=False, spin=1 << 16,
                 win=(4, 4, 4, 2), tail_rr=(4, 4, 4, 4), wo_pol="", wq_pol="nt", force_slow=False,
                 shadow=(8, 8), hs_at=26, calib=0):
        self.e = Emitter()
        self.depth = depth
        self.nwork = nwork
        self.pace = pace
        self.stamps = stamps
        self.spin = spin
        self.win = win
        self.tail_rr = list(tail_rr)
        self.wo_pol = wo_pol
        self.wq_pol = wq_pol
        self.force_slow = force_slow
        self.shadow = shadow
        self.hs_at = hs_at
        self.calib = calib
        self.nvslot = (256 - nwork) // 4
        self.nhome = 128 - 64 - self.nvslot
        self.wave_lds = (163840 - SCRATCH) // 4
        self.WQO, self.WOO, self.HOME = 0, 4096, 8192
        self.RING = self.HOME + self.nhome * 1024
        self.ring = (self.wave_lds - self.RING) // 1024
        self.ool = []
        self.nstamp = 0
        self.stamp_names = []
        self.last_issue = 0
        self.items = []
        self.issued = 0
        self.toks = {}
        self.order = []
        self.home = {}
        self.k1_done = 0
        self.mode = "A"

    def T(self, i, n=1):
        assert vT + i + n <= self.nwork, (i, n)
        return v(vT + i, n)

    def stamp(self, name):
        if not self.stamps:
            return
        e = self.e
        e(f"s_memrealtime {sp(sSTMP)}")
        e.wait_lg_all()
        e(f"s_mov_b32 s{STAMP_REGS[self.nstamp]}, s{sSTMP}")
        self.stamp_names.append(name)
        self.nstamp += 1

    def dump_stamps(self):
        if not self.stamps:
            return
        e = self.e
        for k in range(self.nstamp):
            e(f"v_writelane_b32 v{vT}, s{STAMP_REGS[k]}, {k}")
        e(f"s_lshl_b32 s{sT0}, s2, 2")
        e(f"s_add_u32 s{sT0}, s{sT0}, s{sW}")
        e(f"s_lshl_b32 s{sT0}, s{sT0}, 7")
        e(f"s_add_u32 s{sT0}, s{sT0}, {STAMP_OFF}")
        e(f"v_lshlrev_b32 v{vT + 1}, 2, v{vLANE}")
        e("s_mov_b32 exec_hi, 0")
        e(f"buffer_store_dword v{vT}, v{vT + 1}, {srd(SRD_WS)}, s{sT0} offen")

    def cycles(self):
        t = 0
        for i in self.e.ins[self.last_issue:]:
            t += 16 if i.mfma else 4 * i.states()
        return t

    def reg_home(self, k):
        if k < 64:
            return ("r", f"a[{4 * k}:{4 * k + 3}]")
        b = self.nwork + 4 * (k - 64)
        assert b + 3 < 256
        return ("r", v(b, 4))

    def issue(self):
        e = self.e
        if self.issued >= len(self.items):
            return False
        key = self.items[self.issued]
        kind, b, t = key[:3]
        if kind == "K" and b == 1 and len(key) == 3 and self.mode == "W":
            assert t - self.k1_done < self.ring, "ring overrun"
            self.home[key] = ("l", self.RING + (t % self.ring) * 1024)
        elif key not in self.home:
            if self.mode == "W":
                return False
            self.home[key] = self.reg_home(self.next_home)
            assert self.next_home < self.free_homes(), "home not free yet"
            self.next_home += 1
        if self.issued >= self.depth:
            e.wait_vm(self.toks[self.items[self.issued - self.depth]])
        if b == 1 and t == 0 and len(key) == 3:
            r = vK if kind == "K" else vV
            e(f"v_add_u32 v{r}, 0x4000000, v{r}")
        hk, hv = self.home[key]
        e(f"s_add_u32 s{sOFF}, s{sROT}, {t}")
        if hk == "l":
            e(f"s_add_u32 m0, s{sLB}, {hv}")
        e(f"s_and_b32 s{sOFF}, s{sOFF}, 63")
        e(f"s_lshl_b32 s{sOFF}, s{sOFF}, 12")
        va, sr = (vK, SRD_K) if kind == "K" else (vV, SRD_V)
        if hk == "l":
            self.toks[key] = e.vmem(f"buffer_load_dwordx4 v{va}, {srd(sr)}, s{sOFF} offen nt lds")
        else:
            self.toks[key] = e.vmem(f"buffer_load_dwordx4 {hv}, v{va}, {srd(sr)}, s{sOFF} offen nt")
        self.issued += 1
        self.last_issue = len(e.ins)
        return True

    def stream(self, k):
        for _ in range(k):
            self.issue()

    def tick(self):
        if self.cycles() >= self.pace:
            self.issue()

    def arrive(self, key):
        n = self.items.index(key)
        while self.issued < min(n + self.depth, len(self.items)):
            if not self.issue():
                break
        assert self.issued > n
        self.e.wait_vm(self.toks[key])

    def process_k1(self, upto=None, wait=False):
        e = self.e
        while self.k1_done < 64:
            key = ("K", 1, self.k1_done)
            n = self.items.index(key)
            if wait:
                self.arrive(key)
            elif n >= self.issued - self.depth + 1:
                break
            else:
                e.wait_vm(self.toks[key])
            self.qk_slow(key, self.k1_done)
            self.k1_done += 1
            self.tick()

    def idle(self, k):
        if self.mode == "W":
            for _ in range(k):
                self.process_k1()
                self.issue()
            self.process_k1()
        else:
            self.stream(k)

    def qk_slow(self, key, t):
        e = self.e
        hk, hv = self.home[key]
        if hk == "l":
            tok = e.lds(f"ds_read_b128 {self.T(24, 4)}, v{vL} offset:{hv}")
            e.wait_lg(tok)
            src = self.T(24, 4)
        else:
            src = hv
        acc = vT + 28
        e(f"v_mfma_f32_16x16x32_bf16 {v(acc, 4)}, {src}, {v(vQ1, 4)}, 0")
        U, sg = t >> 4, t & 15
        j = 4 * (sg & 3) + (sg >> 2)
        e(f"s_mov_b32 vcc_lo, {0x00010001 << j}")
        e(f"s_mov_b32 vcc_hi, {0x00010001 << j}")
        tm = vT + 24
        self.diag(tm, acc)
        e(f"v_cndmask_b32 v{vS1 + U}, v{vS1 + U}, v{tm}, vcc")

    def diag_ops(self, tm, acc):
        ops = [f"v_mov_b32_dpp v{tm}, v{acc} quad_perm:[0,0,0,0] row_mask:0xf bank_mask:0xf"]
        for r in (1, 2, 3):
            ops.append(f"v_add_f32_dpp v{tm}, v{acc + r}, v{tm} quad_perm:[{r},{r},{r},{r}] row_mask:0xf bank_mask:0xf")
        return ops

    def diag(self, tm, acc):
        for o in self.diag_ops(tm, acc):
            self.e(o)

    def mask_q(self, q, qm):
        for m in range(4):
            for i in range(4):
                self.e(f"v_cndmask_b32_e64 v{qm + 4 * m + i}, 0, v{q + i}, {sp(sBK + 2 * m)}")

    def qk_fast(self, keys, qm, S, acc, stage, groups, hook=None, arrive=None):
        e = self.e
        order = [4 * u + m for u in groups for m in range(4)]
        lds_q = [t for t in order if self.home.get(keys[t], ("r",))[0] == "l"]
        staged = {}
        free = list(stage)

        def prefetch():
            while lds_q and free:
                t = lds_q.pop(0)
                if arrive:
                    arrive(keys[t])
                r = free.pop(0)
                staged[t] = (r, e.lds(f"ds_read_b128 {v(r, 4)}, v{vL} offset:{self.home[keys[t]][1]}"))

        for gi, u in enumerate(groups + [None, None]):
            ops = []
            if gi >= 2:
                pu = groups[gi - 2]
                a = acc + 4 * ((gi - 2) % 3)
                dp = lambda r: f"quad_perm:[{r},{r},{r},{r}] row_mask:0xf bank_mask:0xf"
                ops = [f"v_mov_b32_dpp v{a}, v{a} {dp(0)}",
                       f"v_mov_b32_dpp v{a + 2}, v{a + 2} {dp(2)}",
                       f"v_add_f32_dpp v{a}, v{a + 1}, v{a} {dp(1)}",
                       f"v_add_f32_dpp v{a + 2}, v{a + 3}, v{a + 2} {dp(3)}",
                       f"v_add_f32 v{a}, v{a}, v{a + 2}",
                       f"v_cndmask_b32_e64 v{S + (pu >> 2)}, v{S + (pu >> 2)}, v{a}, {sp(sQ4 + 2 * (pu & 3))}"]
            if u is None:
                for o in ops:
                    e(o)
                continue
            a = acc + 4 * (gi % 3)
            for m in range(4):
                t = 4 * u + m
                prefetch()
                if t in staged:
                    r, tok = staged.pop(t)
                    e.wait_lg(tok)
                    src = v(r, 4)
                else:
                    r = None
                    if arrive:
                        arrive(keys[t])
                    src = self.home[keys[t]][1]
                c = "0" if m == 0 else v(a, 4)
                e(f"v_mfma_f32_16x16x32_bf16 {v(a, 4)}, {src}, {v(qm + 4 * m, 4)}, {c}")
                if r is not None:
                    free.append(r)
                if hook:
                    hook(t)
                if ops:
                    e(ops.pop(0))
                    if m == 3:
                        e(ops.pop(0))
                        e(ops.pop(0))
            self.tick()

    def wave_reduce(self, op, regs):
        e = self.e
        for ctl in ("quad_perm:[1,0,3,2] row_mask:0xf", "quad_perm:[2,3,0,1] row_mask:0xf",
                    "row_half_mirror row_mask:0xf", "row_mirror row_mask:0xf",
                    "row_bcast:15 row_mask:0xa", "row_bcast:31 row_mask:0xc"):
            for r in regs:
                e(f"{op}_dpp v{r}, v{r}, v{r} {ctl} bank_mask:0xf")

    def softmax(self, S, R, tm):
        e = self.e
        c = 128 ** -0.5 * math.log2(math.e)
        e(f"v_max3_f32 v{tm}, v{S}, v{S + 1}, v{S + 2}")
        e(f"v_max_f32 v{tm}, v{tm}, v{S + 3}")
        self.wave_reduce("v_max_f32", [tm])
        e(f"v_mul_f32 v{tm}, {fbits(c)}, v{tm}")
        e(f"v_mov_b32 v{tm + 1}, {fbits(c)}")
        e(f"v_readlane_b32 s{sM}, v{tm}, 63")
        for i in range(4):
            e(f"v_fma_f32 v{S + i}, v{S + i}, v{tm + 1}, -s{sM}")
        for i in range(4):
            e(f"v_exp_f32 v{S + i}, v{S + i}")
        for i in range(4):
            e(f"v_cvt_pk_bf16_f32 v{R + 2 * i}, v{S + i}, v{S + i}")
        for i in range(4):
            e(f"v_mov_b32 v{R + 2 * i + 1}, v{R + 2 * i}")
        e(f"v_add_f32 v{tm}, v{S}, v{S + 1}")
        for i in range(4):
            e(f"v_mov_b32_dpp v{R + 2 * i}, v{R + 2 * i + 1} row_shr:4 row_mask:0xf bank_mask:0xa")
        e(f"v_add_f32 v{tm + 1}, v{S + 2}, v{S + 3}")
        for i in range(4):
            e(f"v_mov_b32_dpp v{R + 2 * i + 1}, v{R + 2 * i + 1} row_shl:4 row_mask:0xf bank_mask:0x5")
        e(f"v_add_f32 v{tm}, v{tm}, v{tm + 1}")
        self.wave_reduce("v_add_f32", [tm])
        e(f"v_readlane_b32 s{sL}, v{tm}, 63")

    def pv(self, keys, R, O, AB, stage, hook=None, arrive=None):
        e = self.e
        steps = [(u, p) for u in range(16) for p in range(2)]
        order = [t for (u, p) in steps for t in (4 * u + p, 4 * u + p + 2)]
        lds_q = [t for t in order if self.home.get(keys[t], ("r",))[0] == "l"]
        staged = {}
        free = list(stage)

        def prefetch():
            while lds_q and free:
                t = lds_q.pop(0)
                if arrive:
                    arrive(keys[t])
                r = free.pop(0)
                staged[t] = (r, e.lds(f"ds_read_b128 {v(r, 4)}, v{vL} offset:{self.home[keys[t]][1]}"))

        def build(k):
            u, p = steps[k]
            c = u & 3
            a = AB + 4 * (k & 1)
            return [f"v_and_b32_dpp v{a + q}, v{R + 2 * (u >> 2) + p}, v{vMK + q} "
                    f"quad_perm:[{c},{c},{c},{c}] row_mask:0xf bank_mask:0xf" for q in range(4)]

        prefetch()
        for o in build(0):
            e(o)
        for k, (u, p) in enumerate(steps):
            nxt = build(k + 1) if k + 1 < len(steps) else []
            a = AB + 4 * (k & 1)
            for half, t in enumerate((4 * u + p, 4 * u + p + 2)):
                for o in nxt[2 * half:2 * half + 2]:
                    e(o)
                prefetch()
                if t in staged:
                    r, tok = staged.pop(t)
                    e.wait_lg(tok)
                    src = v(r, 4)
                else:
                    r = None
                    if arrive:
                        arrive(keys[t])
                    src = self.home[keys[t]][1]
                o_ = O + 4 * half
                c = "0" if k == 0 else v(o_, 4)
                e(f"v_mfma_f32_16x16x32_bf16 {v(o_, 4)}, {v(a, 4)}, {src}, {c}")
                if r is not None:
                    free.append(r)
                if hook:
                    hook(t)
            self.tick()

    def gather(self, loads, regs, tmp, between):
        e = self.e
        tok = None
        for l in loads:
            if l.startswith("buffer_"):
                tok = e.vmem(l)
            else:
                e(l)
        between()
        e.wait_vm(tok)
        chk = []
        rs = list(regs)
        chk.append(f"v_max3_u32 v{tmp}, v{rs[0]}, v{rs[1]}, v{rs[2]}")
        rs = rs[3:]
        while len(rs) >= 2:
            chk.append(f"v_max3_u32 v{tmp}, v{tmp}, v{rs[0]}, v{rs[1]}")
            rs = rs[2:]
        if rs:
            chk.append(f"v_max_u32 v{tmp}, v{tmp}, v{rs[0]}")
        chk.append(f"v_cmp_eq_u32 vcc, -1, v{tmp}")
        self.retry(loads, chk)

    def retry(self, loads, chk):
        e = self.e
        lr, ll, ok = e.label("retry"), e.label("rloop"), e.label("ok")
        for c in chk:
            e(c)
        e(f"s_cbranch_vccnz {lr}")
        e(f"{ok}:")
        blk = [f"{lr}:", f"s_mov_b32 s{sCNT}, {self.spin}", f"{ll}:"] + list(loads) + ["s_waitcnt vmcnt(0)"] + chk
        blk += [f"s_cbranch_vccz {ok}", f"s_sub_u32 s{sCNT}, s{sCNT}, 1", f"s_cmp_lg_u32 s{sCNT}, 0",
                f"s_cbranch_scc1 {ll}", f"s_branch {ok}"]
        self.ool.append(blk)

    def publish_local(self, ins):
        e = self.e
        ls, ld = e.label("slow"), e.label("pub")
        e(f"s_cmp_eq_u32 s{sFAST}, 0")
        e(f"s_cbranch_scc1 {ls}")
        tok = e.vmem(ins)
        e(f"{ld}:")
        self.ool.append([f"{ls}:", ins + " sc1", f"s_branch {ld}"])
        return tok

    def wave0(self, body):
        e = self.e
        l = e.label("w0")
        e(f"s_cmp_lg_u32 s{sW}, 0")
        e(f"s_cbranch_scc1 {l}")
        e.begin_cond()
        r = body()
        e.end_cond()
        e(f"{l}:")
        return r

    def barrier(self):
        self.e.wait_lg_all()
        self.e("s_barrier")

    def half_sum(self, a):
        e = self.e
        e(f"v_permlane32_swap_b32 v{a}, v{a + 2}")
        e(f"v_permlane32_swap_b32 v{a + 1}, v{a + 3}")
        e(f"v_add_f32 v{a}, v{a}, v{a + 2}")
        e(f"v_add_f32 v{a + 1}, v{a + 1}, v{a + 3}")

    def step_p(self, use, O):
        e = self.e
        T = lambda i: vT + i
        for r in range(4):
            e(f"v_cndmask_b32_e64 v{O + r}, v{O + r}, v{O + 4 + r}, {sp(sHI)}")
        a0, a1 = O + 4, O + 5
        e(f"v_and_b32 v{a0}, 15, v{vLANE}")
        e(f"v_lshlrev_b32 v{a0}, 5, v{a0}")
        e(f"v_bfe_u32 v{a1}, v{vLANE}, 4, 1")
        e(f"v_lshl_add_u32 v{a0}, v{a1}, 4, v{a0}")
        e(f"v_lshrrev_b32 v{a1}, 5, v{vLANE}")
        e(f"v_lshl_add_u32 v{a0}, v{a1}, 3, v{a0}")
        e(f"s_lshl_b32 s{sT0}, s{sW}, 9")
        e(f"v_add_u32 v{a0}, s{sT0}, v{a0}")
        self.half_sum(O)
        e.lds(f"ds_write_b64 v{a0}, {v(O, 2)} offset:{OW}")
        e(f"s_lshl_b32 s{sT0}, s{sW}, 3")
        e(f"v_mov_b32 v{O + 2}, s{sM}")
        e(f"v_mov_b32 v{O + 3}, s{sL}")
        e(f"v_mov_b32 v{a1}, s{sT0}")
        e("s_mov_b64 exec, 1")
        e.lds(f"ds_write_b64 v{a1}, {v(O + 2, 2)} offset:{MLW}")
        e("s_mov_b64 exec, -1")
        e(f"v_and_b32 v{T(12)}, 31, v{vLANE}")
        e(f"s_lshl_b32 s{sT0}, s{sW}, 7")
        e(f"v_lshl_add_u32 v{T(13)}, v{T(12)}, 2, s{sT0}")
        e(f"v_mov_b32 v{T(14)}, 0")
        e(f"v_lshlrev_b32 v{T(12)}, 2, v{T(12)}")
        e(f"v_add_u32 v{T(12)}, 512, v{T(12)}")
        e(f"v_cndmask_b32_e64 v{T(12)}, v{T(13)}, v{T(12)}, {sp(sHI)}")
        e(f"s_mul_i32 s{sT0}, s{sRHO}, 640")
        e(f"s_add_u32 s{sT0}, s{sT0}, {RA + use * 256 * 640}")
        self.barrier()
        e.lds(f"ds_read_b128 {v(T(0), 4)}, v{T(14)} offset:{MLW}")
        t1 = e.lds(f"ds_read_b128 {v(T(4), 4)}, v{T(14)} offset:{MLW + 16}")
        for w in range(4):
            t2 = e.lds(f"ds_read_b32 v{T(8 + w)}, v{T(13)} offset:{OW + 512 * w}")
        e.wait_lg(t1)
        e(f"v_max3_f32 v{T(14)}, v{T(0)}, v{T(2)}, v{T(4)}")
        e(f"v_max_f32 v{T(14)}, v{T(14)}, v{T(6)}")
        for w in range(4):
            e(f"v_sub_f32 v{T(2 * w)}, v{T(2 * w)}, v{T(14)}")
        for w in range(4):
            e(f"v_exp_f32 v{T(2 * w)}, v{T(2 * w)}")
        e.wait_lg(t2)
        e(f"v_mul_f32 v{T(15)}, v{T(0)}, v{T(8)}")
        e(f"v_mul_f32 v{T(13)}, v{T(0)}, v{T(1)}")
        for w in range(1, 4):
            e(f"v_fmac_f32 v{T(15)}, v{T(2 * w)}, v{T(8 + w)}")
            e(f"v_fmac_f32 v{T(13)}, v{T(2 * w)}, v{T(2 * w + 1)}")
        e(f"v_cndmask_b32_e64 v{T(14)}, v{T(14)}, v{T(13)}, {sp(sODD)}")
        e(f"v_cndmask_b32_e64 v{T(15)}, v{T(15)}, v{T(14)}, {sp(sHI)}")
        e(f"s_mov_b32 exec_hi, s{sPUBHI}")
        tok = self.publish_local(f"buffer_store_dword v{T(15)}, v{T(12)}, {srd(SRD_WS)}, s{sT0} offen")
        e("s_mov_b32 exec_hi, -1")
        return tok

    def step_a(self, use, between):
        e = self.e
        T = lambda i: vT + i
        e(f"v_lshrrev_b32 v{T(20)}, 5, v{vLANE}")
        e(f"v_and_b32 v{T(21)}, 31, v{vLANE}")
        e(f"v_lshlrev_b32 v{T(18)}, 4, v{T(21)}")
        e(f"v_mul_u32_u24 v{T(22)}, 640, v{T(20)}")
        e(f"v_add_u32 v{T(18)}, v{T(18)}, v{T(22)}")
        e(f"v_and_b32 v{T(19)}, 7, v{vLANE}")
        e(f"v_xor_b32 v{T(19)}, v{T(19)}, v{T(20)}")
        e(f"v_mul_u32_u24 v{T(19)}, 640, v{T(19)}")
        e(f"s_lshl_b32 s{sT1}, s{sG}, 2")
        e(f"s_add_u32 s{sT1}, s{sT1}, s{sW}")
        e(f"s_mul_i32 s{sT1}, s{sT1}, {8 * 640}")
        e(f"s_add_u32 s{sT1}, s{sT1}, {RA + use * 256 * 640}")
        loads = [f"buffer_load_dwordx2 {v(T(16), 2)}, v{T(19)}, {srd(SRD_WS)}, s{sT1} offen offset:512 sc1"]
        loads += [f"buffer_load_dwordx4 {v(T(4 * u), 4)}, v{T(18)}, {srd(SRD_WS)}, s{sT1} offen offset:{1280 * u} sc1"
                  for u in range(4)]

        def mid():
            e(f"v_lshlrev_b32 v{T(21)}, 3, v{T(21)}")
            e(f"v_lshl_add_u32 v{T(21)}, v{T(20)}, 2, v{T(21)}")
            e(f"s_lshl_b32 s{sT0}, s{sW}, 8")
            e(f"v_add_u32 v{T(21)}, s{sT0}, v{T(21)}")
            e(f"v_lshrrev_b32 v{T(22)}, 4, v{vLANE}")
            e(f"v_lshl_add_u32 v{T(23)}, v{T(22)}, 4, s{sT0}")
            e(f"v_and_b32 v{T(24)}, 15, v{vLANE}")
            e(f"v_lshlrev_b32 v{T(24)}, 3, v{T(24)}")
            e(f"v_lshl_add_u32 v{T(24)}, v{T(22)}, 8, v{T(24)}")
            e(f"v_add_u32 v{T(24)}, s{sLB}, v{T(24)}")
            e(f"s_lshl_b32 s{sT0}, s{sW}, 6")
            e(f"v_lshl_add_u32 v{T(25)}, v{T(22)}, 4, s{sT0}")
            between()

        self.gather(loads, [T(i) for i in range(18)], T(20), mid)
        m, l, t = T(16), T(17), T(20)
        e(f"v_max_f32_dpp v{t}, v{m}, v{m} quad_perm:[1,0,3,2] row_mask:0xf bank_mask:0xf")
        e(f"v_max_f32_dpp v{t}, v{t}, v{t} quad_perm:[2,3,0,1] row_mask:0xf bank_mask:0xf")
        e(f"v_max_f32_dpp v{t}, v{t}, v{t} row_half_mirror row_mask:0xf bank_mask:0xf")
        e(f"v_sub_f32 v{m}, v{m}, v{t}")
        e(f"v_exp_f32 v{m}, v{m}")
        e(f"v_mul_f32 v{l}, v{m}, v{l}")
        e(f"v_add_f32_dpp v{l}, v{l}, v{l} quad_perm:[1,0,3,2] row_mask:0xf bank_mask:0xf")
        e(f"v_add_f32_dpp v{l}, v{l}, v{l} quad_perm:[2,3,0,1] row_mask:0xf bank_mask:0xf")
        e(f"v_add_f32_dpp v{l}, v{l}, v{l} row_half_mirror row_mask:0xf bank_mask:0xf")
        e(f"v_rcp_f32 v{l}, v{l}")
        e(f"v_mul_f32 v{m}, v{m}, v{l}")
        acc = T(28)
        for k in range(4):
            e(f"v_mul_f32_dpp v{acc + k}, v{m}, v{T(k)} row_newbcast:0 row_mask:0xf bank_mask:0xf")
        for u in range(1, 4):
            for k in range(4):
                e(f"v_fmac_f32_dpp v{acc + k}, v{m}, v{T(4 * u + k)} row_newbcast:{2 * u} row_mask:0xf bank_mask:0xf")
        e.wait_vm(self.tok_wo)
        wt = []
        for n in range(4):
            e.lds(f"ds_read_b64_tr_b16 {v(T(4 * n), 2)}, v{T(24)} offset:{self.WOO + 1024 * n}")
            wt.append(e.lds(f"ds_read_b64_tr_b16 {v(T(4 * n + 2), 2)}, v{T(24)} offset:{self.WOO + 1024 * n + 128}"))
        self.half_sum(acc)
        e(f"v_cvt_pk_bf16_f32 v{acc}, v{acc}, v{acc + 1}")
        e.lds(f"ds_write_b32 v{T(21)}, v{acc} offset:{OBF}")
        bb = [T(16), T(28)]
        D = T(20)
        a_b, a_y = T(26), T(27)
        e(f"v_mov_b32 v{a_b}, v{T(23)}")
        e(f"v_mov_b32 v{a_y}, v{T(25)}")
        tb = [e.lds(f"ds_read_b128 {v(bb[0], 4)}, v{a_b} offset:{OBF}")]
        tb.append(e.lds(f"ds_read_b128 {v(bb[1], 4)}, v{a_b} offset:{OBF + 64}"))
        for n in range(4):
            e.wait_lg(tb[n])
            c = "0" if n == 0 else v(D, 4)
            e(f"v_mfma_f32_16x16x32_bf16 {v(D, 4)}, {v(T(4 * n), 4)}, {v(bb[n & 1], 4)}, {c}")
            if n < 2:
                tb.append(e.lds(f"ds_read_b128 {v(bb[n & 1], 4)}, v{a_b} offset:{OBF + 64 * (n + 2)}"))
        e(f"v_lshlrev_b32 v{T(0)}, 2, v{vLANE}")
        e(f"s_lshl_b32 s{sT0}, s{sG}, 11")
        e(f"s_lshl_b32 s{sT1}, s{sR}, 6")
        e(f"s_add_u32 s{sT0}, s{sT0}, s{sT1}")
        e(f"s_add_u32 s{sT0}, s{sT0}, {RB + use * 16384}")
        e("s_mov_b32 exec_lo, 0x00010001")
        e("s_mov_b32 exec_hi, 0x00010001")
        e.lds(f"ds_write_b128 v{a_y}, {v(D, 4)} offset:{YW}")
        e("s_mov_b64 exec, -1")
        self.barrier()

        def pub():
            e("s_mov_b64 exec, 0xffff")
            for w in range(4):
                e(f"ds_read_b32 v{T(2 + w)}, v{T(0)} offset:{YW + 64 * w}")
            e("s_waitcnt lgkmcnt(0)")
            e(f"v_add_f32 v{T(2)}, v{T(2)}, v{T(3)}")
            e(f"v_add_f32 v{T(4)}, v{T(4)}, v{T(5)}")
            e(f"v_add_f32 v{T(2)}, v{T(2)}, v{T(4)}")
            tok = e.vmem(f"buffer_store_dword v{T(2)}, v{T(0)}, {srd(SRD_WS)}, s{sT0} offen sc1", maybe=True)
            e("s_mov_b64 exec, -1")
            return tok

        return self.wave0(pub)

    def step_b(self, use, b, layer, between):
        e = self.e
        T = lambda i: vT + i
        e(f"v_lshrrev_b32 v{T(28)}, 5, v{vLANE}")
        e(f"v_and_b32 v{T(29)}, 31, v{vLANE}")
        e(f"s_lshl_b32 s{sT0}, s{sW}, 9")
        e(f"v_lshl_add_u32 v{T(30)}, v{T(29)}, 4, s{sT0}")
        e(f"v_lshl_add_u32 v{T(27)}, v{T(28)}, 11, v{T(30)}")
        e(f"v_lshl_add_u32 v{T(30)}, v{T(28)}, 3, v{T(30)}")
        e(f"s_mul_i32 s{sT0}, s{sW}, 768")
        e(f"v_mul_u32_u24 v{T(31)}, 12, v{vLANE}")
        e(f"v_add_u32 v{T(31)}, s{sT0}, v{T(31)}")
        e.vmem(f"buffer_load_dwordx3 {v(T(18), 3)}, v{T(31)}, {srd(SRD_W1)}, 0 offen")
        e.vmem(f"buffer_load_dwordx3 {v(T(22), 3)}, v{T(31)}, {srd(SRD_B1)}, 0 offen")
        if layer == 1:
            e(f"v_lshrrev_b32 v{T(29)}, 1, v{T(30)}")
            e.vmem(f"buffer_load_dword v{T(16)}, v{T(29)}, {srd(SRD_X)}, 0 offen offset:{1024 * b}")
        else:
            e(f"s_mov_b32 s{sT0}, {RC + 2048 * b}")
            e.vmem(f"buffer_load_dwordx2 {v(T(16), 2)}, v{T(30)}, {srd(SRD_WS)}, s{sT0} offen sc1")
        e(f"v_mov_b32 v{T(21)}, v{T(30)}")
        e.vmem(f"buffer_load_dwordx3 {v(T(28), 3)}, v{T(31)}, {srd(SRD_W2)}, 0 offen")
        loads = []
        for u in range(4):
            loads.append(f"s_mov_b32 s{sT1}, {RB + use * 16384 + 4096 * u}")
            loads.append(f"buffer_load_dwordx4 {v(T(4 * u), 4)}, v{T(27)}, {srd(SRD_WS)}, s{sT1} offen sc1")
        self.gather(loads, [T(i) for i in range(16)], T(25), between)
        for k in range(4):
            e(f"v_add_f32 v{T(k)}, v{T(k)}, v{T(4 + k)}")
            e(f"v_add_f32 v{T(8 + k)}, v{T(8 + k)}, v{T(12 + k)}")
        for k in range(4):
            e(f"v_add_f32 v{T(k)}, v{T(k)}, v{T(8 + k)}")
        if layer == 1:
            e(f"v_and_b32 v{T(17)}, 0xffff0000, v{T(16)}")
            e(f"v_lshlrev_b32 v{T(16)}, 16, v{T(16)}")
        self.half_sum(T(0))
        e(f"v_add_f32 v{T(16)}, v{T(16)}, v{T(0)}")
        e(f"v_add_f32 v{T(17)}, v{T(17)}, v{T(1)}")
        e.lds(f"ds_write_b64 v{T(21)}, {v(T(16), 2)} offset:{XS}")
        s1, s2 = T(26), T(27)
        e(f"v_add_f32 v{s1}, v{T(16)}, v{T(17)}")
        e(f"v_mul_f32 v{s2}, v{T(16)}, v{T(16)}")
        e(f"v_fmac_f32 v{s2}, v{T(17)}, v{T(17)}")
        e(f"s_lshl_b32 s{sT0}, s{sW}, 3")
        e(f"v_mov_b32 v{T(25)}, s{sT0}")
        self.wave_reduce("v_add_f32", [s1, s2])
        e("s_mov_b32 exec_lo, 0")
        e("s_mov_b32 exec_hi, 0x80000000")
        e.lds(f"ds_write_b64 v{T(25)}, {v(s1, 2)} offset:{ST}")
        e("s_mov_b64 exec, -1")
        W1, B1, W2 = T(0), T(6), [T(12), T(13), T(14), T(15), T(16), T(17)]
        for i in range(3):
            e(f"v_lshlrev_b32 v{W1 + 2 * i}, 16, v{T(18 + i)}")
            e(f"v_and_b32 v{W1 + 2 * i + 1}, 0xffff0000, v{T(18 + i)}")
            e(f"v_lshlrev_b32 v{B1 + 2 * i}, 16, v{T(22 + i)}")
            e(f"v_and_b32 v{B1 + 2 * i + 1}, 0xffff0000, v{T(22 + i)}")
        e(f"s_lshl_b32 s{sT0}, s2, 3")
        e(f"v_mov_b32 v{T(31)}, s{sT0}")
        e(f"v_mov_b32 v{T(21)}, 0")
        self.barrier()
        for i in range(3):
            e(f"v_lshlrev_b32 v{W2[2 * i]}, 16, v{T(28 + i)}")
            e(f"v_and_b32 v{W2[2 * i + 1]}, 0xffff0000, v{T(28 + i)}")
        e.lds(f"ds_read_b128 {v(T(22), 4)}, v{T(21)} offset:{ST}")
        e.lds(f"ds_read_b128 {v(T(26), 4)}, v{T(21)} offset:{ST + 16}")
        e.lds(f"ds_read_b64 {v(T(18), 2)}, v{T(31)} offset:{XS}")
        e.wait_lg_all()
        xo = T(18)
        e(f"v_add_f32 v{T(22)}, v{T(22)}, v{T(24)}")
        e(f"v_add_f32 v{T(23)}, v{T(23)}, v{T(25)}")
        e(f"v_add_f32 v{T(26)}, v{T(26)}, v{T(28)}")
        e(f"v_add_f32 v{T(27)}, v{T(27)}, v{T(29)}")
        e(f"v_add_f32 v{T(22)}, v{T(22)}, v{T(26)}")
        e(f"v_add_f32 v{T(23)}, v{T(23)}, v{T(27)}")
        mean, var, rs = T(22), T(23), T(24)
        self.mean_var(mean, var)
        e(f"v_add_f32 v{rs}, {fbits(1e-5)}, v{var}")
        e(f"v_rsq_f32 v{rs}, v{rs}")
        e(f"v_mul_f32 v{var}, v{var}, v{rs}")
        e(f"v_fmaak_f32 v{var}, v{var}, v{rs}, {fbits(1e-5)}")
        e(f"v_rsq_f32 v{var}, v{var}")
        h = T(20)
        e(f"v_sub_f32 v{h}, v{xo}, v{mean}")
        e(f"v_sub_f32 v{h + 1}, v{xo + 1}, v{mean}")
        e(f"v_mul_f32 v{rs}, v{rs}, v{var}")
        e(f"v_mul_f32 v{h}, v{h}, v{rs}")
        e(f"v_mul_f32 v{h + 1}, v{h + 1}, v{rs}")
        k = 2.0 * math.sqrt(2.0 / math.pi) * math.log2(math.e)
        c2 = T(22)
        e(f"v_mov_b32 v{c2}, {fbits(-k * 0.044715)}")
        acc = T(30)
        U, E = T(24), T(26)
        for f in range(6):
            for c in range(2):
                e(f"v_fma_f32 v{U + c}, v{h + c}, v{W1 + f}, v{B1 + f}")
            for c in range(2):
                e(f"v_mul_f32 v{E + c}, v{U + c}, v{U + c}")
            for c in range(2):
                e(f"v_fmaak_f32 v{E + c}, v{c2}, v{E + c}, {fbits(-k)}")
            for c in range(2):
                e(f"v_mul_f32 v{E + c}, v{U + c}, v{E + c}")
            for c in range(2):
                e(f"v_exp_f32 v{E + c}, v{E + c}")
            for c in range(2):
                e(f"v_add_f32 v{E + c}, 1.0, v{E + c}")
            for c in range(2):
                e(f"v_rcp_f32 v{E + c}, v{E + c}")
            for c in range(2):
                e(f"v_mul_f32 v{U + c}, v{U + c}, v{W2[f]}")
            for c in range(2):
                if f == 0:
                    e(f"v_mul_f32 v{acc + c}, v{U + c}, v{E + c}")
                else:
                    e(f"v_fmac_f32 v{acc + c}, v{U + c}, v{E + c}")
            self.tick()
        e(f"s_lshl_b32 s{sT0}, s{sW}, 3")
        e(f"v_mov_b32 v{T(25)}, s{sT0}")
        self.wave_reduce("v_add_f32", [acc, acc + 1])
        e("s_mov_b32 exec_lo, 0")
        e("s_mov_b32 exec_hi, 0x80000000")
        e.lds(f"ds_write_b64 v{T(25)}, {v(acc, 2)} offset:{MX}")
        e("s_mov_b64 exec, -1")
        e(f"v_mov_b32 v{T(21)}, 0")
        self.barrier()

        def pub():
            e("s_mov_b64 exec, 1")
            e(f"ds_read_b128 {v(T(0), 4)}, v{T(21)} offset:{MX}")
            e(f"ds_read_b128 {v(T(4), 4)}, v{T(21)} offset:{MX + 16}")
            e(f"v_add_f32 v{xo}, s{sB2}, v{xo}")
            e(f"v_add_f32 v{xo + 1}, s{sB2}, v{xo + 1}")
            if layer == 1:
                e(f"s_lshl_b32 s{sT0}, s2, 3")
                e(f"s_add_u32 s{sT0}, s{sT0}, {RC + 2048 * b}")
            else:
                e(f"s_lshl_b32 s{sT0}, s2, 2")
                e(f"s_add_u32 s{sT0}, s{sT0}, {1024 * b}")
            e("s_waitcnt lgkmcnt(0)")
            for c in range(2):
                e(f"v_add_f32 v{T(c)}, v{T(c)}, v{T(2 + c)}")
                e(f"v_add_f32 v{T(4 + c)}, v{T(4 + c)}, v{T(6 + c)}")
            for c in range(2):
                e(f"v_add_f32 v{T(c)}, v{T(c)}, v{T(4 + c)}")
            for c in range(2):
                e(f"v_add_f32 v{T(c)}, v{T(c)}, v{xo + c}")
            if layer == 1:
                tok = e.vmem(f"buffer_store_dwordx2 {v(T(0), 2)}, v{T(21)}, {srd(SRD_WS)}, s{sT0} offen sc1", maybe=True)
            else:
                e(f"v_cvt_pk_bf16_f32 v{T(0)}, v{T(0)}, v{T(1)}")
                tok = e.vmem(f"buffer_store_dword v{T(0)}, v{T(21)}, {srd(SRD_OUT)}, s{sT0} offen", maybe=True)
            e("s_mov_b64 exec, -1")
            return tok

        return self.wave0(pub)

    def mean_var(self, s1, s2):
        e = self.e
        e(f"v_mul_f32 v{s1}, {fbits(1 / 512)}, v{s1}")
        e(f"v_mul_f32 v{s2}, {fbits(1 / 512)}, v{s2}")
        e(f"v_fma_f32 v{s2}, -v{s1}, v{s1}, v{s2}")
        e(f"v_max_f32 v{s2}, 0, v{s2}")

    def step_c(self, use, b, first, between):
        e = self.e
        T = lambda i: vT + i
        e(f"s_lshl_b32 s{sT0}, s{sSPL}, 2")
        e(f"s_add_u32 s{sT0}, s{sT0}, s{sW}")
        e(f"s_lshl_b32 s{sT0}, s{sT0}, 6")
        e(f"v_lshrrev_b32 v{T(29)}, 4, v{vLANE}")
        e(f"v_lshl_add_u32 v{T(29)}, v{T(29)}, 4, s{sT0}")
        e(f"v_lshlrev_b32 v{T(28)}, 4, v{vLANE}")
        if first:
            e(f"v_lshrrev_b32 v{T(29)}, 1, v{T(29)}")
            e.vmem(f"buffer_load_dwordx4 {v(T(12), 4)}, v{T(28)}, {srd(SRD_X)}, 0 offen offset:{1024 * b}")
            tok = e.vmem(f"buffer_load_dwordx2 {v(T(16), 2)}, v{T(29)}, {srd(SRD_X)}, 0 offen offset:{1024 * b}")
            between()
            e.wait_vm(tok)
            for i in range(6):
                e(f"v_lshlrev_b32 v{T(2 * i)}, 16, v{T(12 + i)}")
                e(f"v_and_b32 v{T(2 * i + 1)}, 0xffff0000, v{T(12 + i)}")
        else:
            e(f"s_mov_b32 s{sT1}, {RC + 2048 * b}")
            loads = [f"buffer_load_dwordx4 {v(T(0), 4)}, v{T(28)}, {srd(SRD_WS)}, s{sT1} offen sc1",
                     f"buffer_load_dwordx4 {v(T(4), 4)}, v{T(28)}, {srd(SRD_WS)}, s{sT1} offen offset:1024 sc1",
                     f"buffer_load_dwordx4 {v(T(8), 4)}, v{T(29)}, {srd(SRD_WS)}, s{sT1} offen sc1"]
            self.gather(loads, [T(i) for i in range(12)], T(30), between)
        e.wait_vm(self.tok_wq)
        wt = [e.lds(f"ds_read_b128 {v(T(12 + 4 * n), 4)}, v{vL} offset:{self.WQO + 1024 * n}") for n in range(4)]
        s1, s2 = T(28), T(29)
        e(f"v_add_f32 v{s1}, v{T(0)}, v{T(1)}")
        e(f"v_mul_f32 v{s2}, v{T(0)}, v{T(0)}")
        e(f"v_fmac_f32 v{s2}, v{T(1)}, v{T(1)}")
        for i in range(2, 8):
            e(f"v_add_f32 v{s1}, v{s1}, v{T(i)}")
            e(f"v_fmac_f32 v{s2}, v{T(i)}, v{T(i)}")
        self.wave_reduce("v_add_f32", [s1, s2])
        self.mean_var(s1, s2)
        e(f"v_add_f32 v{s2}, {fbits(1e-5)}, v{s2}")
        e(f"v_rsq_f32 v{s2}, v{s2}")
        e(f"v_readlane_b32 s{sT0}, v{s1}, 63")
        e(f"v_readlane_b32 s{sT1}, v{s2}, 63")
        for n in range(4):
            e(f"v_subrev_f32 v{T(8 + n)}, s{sT0}, v{T(8 + n)}")
        for n in range(4):
            e(f"v_mul_f32 v{T(8 + n)}, s{sT1}, v{T(8 + n)}")
        for n in range(4):
            e(f"v_cvt_pk_bf16_f32 v{T(8 + n)}, v{T(8 + n)}, v{T(8 + n)}")
        D = T(0)
        ab = [T(4), T(28)]
        for q in range(4):
            e(f"v_and_b32 v{ab[0] + q}, v{T(8)}, v{vMK + q}")
        for n in range(4):
            if n < 3:
                for q in range(4):
                    e(f"v_and_b32 v{ab[(n + 1) & 1] + q}, v{T(9 + n)}, v{vMK + q}")
            e.wait_lg(wt[n])
            c = "0" if n == 0 else v(D, 4)
            e(f"v_mfma_f32_16x16x32_bf16 {v(D, 4)}, {v(ab[n & 1], 4)}, {v(T(12 + 4 * n), 4)}, {c}")
        e(f"v_and_b32 v{T(8)}, 15, v{vLANE}")
        e(f"v_lshlrev_b32 v{T(8)}, 5, v{T(8)}")
        e(f"v_bfe_u32 v{T(9)}, v{vLANE}, 4, 1")
        e(f"v_lshl_add_u32 v{T(8)}, v{T(9)}, 4, v{T(8)}")
        e(f"s_lshl_b32 s{sT0}, s{sW}, 9")
        e(f"v_add_u32 v{T(8)}, s{sT0}, v{T(8)}")
        e(f"s_lshl_b32 s{sT0}, s{sW}, 7")
        e(f"v_lshl_add_u32 v{T(9)}, v{vLANE}, 2, s{sT0}")
        e(f"s_lshl_b32 s{sT0}, s{sRHO}, 9")
        e(f"s_add_u32 s{sT0}, s{sT0}, {RD + use * 256 * 512}")
        e("s_mov_b32 exec_hi, 0")
        e.lds(f"ds_write_b128 v{T(8)}, {v(D, 4)} offset:{QW}")
        self.barrier()
        for w in range(4):
            e.lds(f"ds_read_b32 v{T(4 + w)}, v{T(9)} offset:{QW + 512 * w}")
        e.wait_lg_all()
        e(f"v_add_f32 v{T(4)}, v{T(4)}, v{T(5)}")
        e(f"v_add_f32 v{T(6)}, v{T(6)}, v{T(7)}")
        e(f"v_add_f32 v{T(4)}, v{T(4)}, v{T(6)}")
        tok = self.publish_local(f"buffer_store_dword v{T(4)}, v{T(9)}, {srd(SRD_WS)}, s{sT0} offen")
        e("s_mov_b32 exec_hi, -1")
        return tok

    def step_d(self, use, q, between):
        e = self.e
        T = lambda i: vT + i
        e(f"v_bfe_u32 v{T(17)}, v{vLANE}, 2, 2")
        e(f"v_lshlrev_b32 v{T(16)}, 10, v{T(17)}")
        e(f"v_lshrrev_b32 v{T(17)}, 4, v{vLANE}")
        e(f"v_lshl_add_u32 v{T(16)}, v{T(17)}, 7, v{T(16)}")
        e(f"v_and_b32 v{T(17)}, 3, v{vLANE}")
        e(f"v_lshl_add_u32 v{T(16)}, v{T(17)}, 5, v{T(16)}")
        e(f"s_lshr_b32 s{sT1}, s{sRHO}, 3")
        e(f"s_lshl_b32 s{sT1}, s{sT1}, 12")
        e(f"s_add_u32 s{sT1}, s{sT1}, {RD + use * 256 * 512}")
        loads = [f"buffer_load_dwordx4 {v(T(4 * i), 4)}, v{T(16)}, {srd(SRD_WS)}, s{sT1} offen offset:{o} sc1"
                 for i, o in enumerate((0, 16, 512, 528))]
        self.gather(loads, [T(i) for i in range(16)], T(17), between)
        for i in range(8):
            e(f"v_add_f32 v{T(i)}, v{T(i)}, v{T(8 + i)}")
        for ror in (4, 8):
            for i in range(8):
                e(f"v_add_f32_dpp v{T(i)}, v{T(i)}, v{T(i)} row_ror:{ror} row_mask:0xf bank_mask:0xf")
        for i in range(4):
            e(f"v_cvt_pk_bf16_f32 v{q + i}, v{T(2 * i)}, v{T(2 * i + 1)}")

    def prologue(self):
        e = self.e
        T = lambda i: vT + i
        e("s_cmp_ge_u32 s2, 256")
        e("s_cbranch_scc1 L_end")
        self.stamp("start")
        if self.calib:
            e("s_memrealtime s[94:95]")
        e(f"s_load_dwordx16 s[{sKA}:{sKA + 15}], s[0:1], 0")
        e(f"s_load_dwordx8 s[{sKA + 16}:{sKA + 23}], s[0:1], 64")
        e(f"s_load_dwordx2 s[{sKA + 24}:{sKA + 25}], s[0:1], 96")
        e(f"v_lshrrev_b32 v{T(0)}, 6, v0")
        e(f"v_and_b32 v{vLANE}, 63, v0")
        e(f"v_readfirstlane_b32 s{sW}, v{T(0)}")
        e(f"s_and_b32 s{sG}, s2, 7")
        e(f"s_lshr_b32 s{sR}, s2, 3")
        e(f"s_lshl_b32 s{sRHO}, s{sG}, 5")
        e(f"s_add_u32 s{sRHO}, s{sRHO}, s{sR}")
        e(f"s_and_b32 s{sSPL}, s{sRHO}, 7")
        e(f"s_lshr_b32 s{sT0}, s{sRHO}, 3")
        e(f"s_lshl_b32 s{sROT}, s{sSPL}, 3")
        e(f"s_add_u32 s{sROT}, s{sROT}, s{sT0}")
        e(f"s_lshl_b32 s{sT0}, s{sRHO}, 18")
        e(f"s_lshl_b32 s{sT1}, s{sW}, 10")
        e(f"s_add_u32 s{sT0}, s{sT0}, s{sT1}")
        e(f"v_and_b32 v{T(0)}, 3, v{vLANE}")
        e(f"v_bfe_u32 v{T(1)}, v{vLANE}, 2, 2")
        e(f"v_lshrrev_b32 v{T(2)}, 4, v{vLANE}")
        e(f"v_lshl_add_u32 v{vK}, v{T(0)}, 4, s{sT0}")
        e(f"v_lshl_add_u32 v{vK}, v{T(1)}, 8, v{vK}")
        e(f"v_lshl_add_u32 v{vK}, v{T(2)}, 6, v{vK}")
        e(f"v_lshl_add_u32 v{vV}, v{vLANE}, 4, s{sT0}")
        e(f"s_mul_i32 s{sLB}, s{sW}, {self.wave_lds}")
        e(f"s_add_u32 s{sLB}, s{sLB}, {SCRATCH}")
        e(f"v_lshl_add_u32 v{vL}, v{vLANE}, 4, s{sLB}")
        ptr = lambda i: sKA + 2 * i

        def mk(base, i, nbytes):
            e(f"s_mov_b32 s{base}, s{ptr(i)}")
            e(f"s_mov_b32 s{base + 1}, s{ptr(i) + 1}")
            e(f"s_mov_b32 s{base + 2}, {nbytes}")
            e(f"s_mov_b32 s{base + 3}, 0x20000")

        e("s_waitcnt lgkmcnt(0)")
        mk(SRD_K, 1, 0x8000000)
        self.stream(self.depth)
        e(f"s_load_dword s{sB2}, s[{ptr(9)}:{ptr(9) + 1}], 0")
        mk(SRD_V, 2, 0x8000000)
        mk(SRD_WS, 12, 0x20000000)
        mk(SRD_X, 0, 2048)
        mk(SRD_WQ, 3, 0x400000)
        mk(SRD_WO, 4, 0x400000)
        mk(SRD_W1, 6, 2752)
        mk(SRD_B1, 7, 2752)
        mk(SRD_W2, 8, 2752)
        mk(SRD_OUT, 10, 2048)
        mk(SRD_DBG, 11, 256)
        e("s_waitcnt lgkmcnt(0)")
        e(f"s_lshl_b32 s{sB2}, s{sB2}, 16")
        for i in range(4):
            e(f"v_mov_b32 v{T(4 + i)}, -1")
        e(f"s_mul_i32 s{sT0}, s2, 5120")
        e(f"s_mul_i32 s{sT1}, s{sW}, 1280")
        e(f"s_add_u32 s{sT0}, s{sT0}, s{sT1}")
        e(f"v_lshlrev_b32 v{T(0)}, 4, v{vLANE}")
        e(f"v_lshlrev_b32 v{T(1)}, 2, v{vLANE}")
        e.vmem(f"buffer_store_dwordx4 {v(T(4), 4)}, v{T(0)}, {srd(SRD_WS)}, s{sT0} offen sc1")
        tok_clear = e.vmem(f"buffer_store_dword v{T(4)}, v{T(1)}, {srd(SRD_WS)}, s{sT0} offen offset:1024 sc1")
        e(f"s_lshl_b32 s{sT0}, s{sSPL}, 2")
        e(f"s_add_u32 s{sT0}, s{sT0}, s{sW}")
        e(f"s_lshl_b32 s{sT0}, s{sT0}, 17")
        e(f"s_lshr_b32 s{sT1}, s{sRHO}, 3")
        e(f"s_lshl_b32 s{sT1}, s{sT1}, 8")
        e(f"s_add_u32 s{sT0}, s{sT0}, s{sT1}")
        e(f"v_and_b32 v{T(3)}, 15, v{vLANE}")
        e(f"v_lshlrev_b32 v{T(3)}, 4, v{T(3)}")
        e(f"v_lshl_add_u32 v{T(3)}, v{T(2)}, 15, v{T(3)}")
        for n in range(4):
            e(f"s_add_u32 m0, s{sLB}, {self.WQO + 1024 * n}")
            e(f"s_add_u32 s{sT1}, s{sT0}, {8192 * n}")
            self.tok_wq = e.vmem(f"buffer_load_dwordx4 v{T(3)}, {srd(SRD_WQ)}, s{sT1} offen {self.wq_pol} lds")
        e(f"s_mov_b32 s{sHI}, 0")
        e(f"s_mov_b32 s{sHI + 1}, -1")
        e(f"s_mov_b32 s{sODD}, 0xaaaaaaaa")
        e(f"s_mov_b32 s{sODD + 1}, 0xaaaaaaaa")
        for c in range(4):
            for hh in range(2):
                e(f"s_mov_b32 s{sQ4 + 2 * c + hh}, {0x11111111 << c}")
                e(f"s_mov_b32 s{sBK + 2 * c + hh}, {0x000f000f << (4 * c)}")
        e(f"s_cmp_eq_u32 s{sW}, 0")
        e(f"s_cselect_b32 s{sPUBHI}, -1, 0")
        e(f"v_and_b32 v{T(8)}, 1, v{vLANE}")
        e(f"v_lshlrev_b32 v{T(8)}, 4, v{T(8)}")
        e(f"v_mov_b32 v{T(9)}, 0xffff")
        e(f"v_lshlrev_b32 v{T(8)}, v{T(8)}, v{T(9)}")
        e(f"v_bfe_u32 v{T(9)}, v{vLANE}, 1, 2")
        for q in range(4):
            e(f"v_cmp_eq_u32 vcc, {q}, v{T(9)}")
            e(f"v_cndmask_b32 v{vMK + q}, 0, v{T(8)}, vcc")
        e(f"s_getreg_b32 s{sXCC}, hwreg(HW_REG_XCC_ID, 0, 4)")
        e(f"s_lshl_b32 s{sXCC}, s{sXCC}, 3")
        self.stream(4)
        e.wait_vm(tok_clear)
        e("s_barrier")

        def arrive():
            e(f"s_lshl_b64 {sp(sTP)}, 1, s{sXCC}")
            e(f"s_lshl_b32 s{sT0}, s{sG}, 3")
            e(f"v_mov_b32 v{T(4)}, s{sTP}")
            e(f"v_mov_b32 v{T(5)}, s{sTP + 1}")
            e(f"v_mov_b32 v{T(6)}, s{sT0}")
            e("s_mov_b64 exec, 1")
            e.vmem(f"buffer_atomic_add_x2 {v(T(4), 2)}, v{T(6)}, {srd(SRD_DBG)}, 0 offen sc1", maybe=True)
            e("s_mov_b64 exec, -1")

        self.wave0(arrive)
        e(f"s_lshl_b32 s{sT0}, s{sG}, 2")
        e(f"s_add_u32 s{sT0}, s{sT0}, s{sW}")
        e(f"s_lshl_b32 s{sT0}, s{sT0}, 17")
        e(f"s_lshl_b32 s{sT1}, s{sR}, 5")
        e(f"s_add_u32 s{sT0}, s{sT0}, s{sT1}")
        e(f"v_lshrrev_b32 v{T(8)}, 1, v{vLANE}")
        e(f"v_and_b32 v{T(9)}, 1, v{vLANE}")
        e(f"v_lshlrev_b32 v{T(9)}, 4, v{T(9)}")
        e(f"v_lshl_add_u32 v{T(8)}, v{T(8)}, 10, v{T(9)}")
        for n in range(4):
            self.stream(1)
            e(f"s_add_u32 m0, s{sLB}, {self.WOO + 1024 * n}")
            e(f"s_add_u32 s{sT1}, s{sT0}, {32768 * n}")
            self.tok_wo = e.vmem(f"buffer_load_dwordx4 v{T(8)}, {srd(SRD_WO)}, s{sT1} offen {self.wo_pol} lds")

    def handshake(self):
        e = self.e
        T = lambda i: vT + i
        e(f"v_and_b32 v{T(2)}, 7, v{vLANE}")
        e(f"v_lshlrev_b32 v{T(2)}, 3, v{T(2)}")
        ld = f"buffer_load_dwordx2 {v(T(0), 2)}, v{T(2)}, {srd(SRD_DBG)}, 0 offen sc1"
        tok = e.vmem(ld)
        self.stream(self.depth - 1)
        e.wait_vm(tok)
        chk = [f"v_sad_u8 v{T(3)}, v{T(0)}, 0, 0", f"v_sad_u8 v{T(3)}, v{T(1)}, 0, v{T(3)}",
               f"v_cmp_gt_u32 vcc, 32, v{T(3)}"]
        self.retry([ld], chk)
        e(f"v_readlane_b32 s{sTQ}, v{T(0)}, s{sG}")
        e(f"v_readlane_b32 s{sTQ + 1}, v{T(1)}, s{sG}")
        e(f"s_lshl_b64 {sp(sTP)}, 32, s{sXCC}")
        e("s_nop 1")
        e(f"s_cmp_eq_u64 {sp(sTP)}, {sp(sTQ)}")
        e(f"s_cselect_b32 s{sFAST}, {0 if self.force_slow else 1}, 0")

    def free_homes(self):
        return self.freed

    def build(self):
        e = self.e
        T = lambda i: vT + i
        D = self.depth
        K0 = [("K", 0, t) for t in range(64)]
        V0 = [("V", 0, t) for t in range(64)]
        K1 = [("K", 1, t) for t in range(64)]
        V1 = [("V", 1, t) for t in range(64)]
        self.items = K0 + V0 + K1 + V1
        for t in range(64):
            self.home[K0[t]] = self.reg_home(t)
            if t < self.nhome:
                self.home[V0[t]] = ("l", self.HOME + 1024 * t)
            else:
                self.home[V0[t]] = self.reg_home(64 + t - self.nhome)
        self.next_home = 0
        self.freed = 0
        follow = lambda: self.stream(D - 1)

        self.prologue()
        self.stamp("prologue")
        self.stream(self.hs_at - self.issued)
        self.handshake()
        self.stamp("handshake")
        self.step_c(1, 1, True, follow)
        self.step_c(0, 0, True, follow)
        self.step_d(1, vQ1, follow)
        self.step_d(0, T(28), follow)
        self.stamp("q1")
        QM, ACC = T(0), T(16)
        S0 = vS1
        self.mask_q(T(28), QM)
        self.qk_fast(K0, QM, S0, ACC, [], list(range(16)), arrive=self.arrive)
        R, O, AB, STG = T(0), T(16), T(8), [T(24), T(28)]
        self.softmax(S0, R, T(8))
        self.mode = "W"
        self.pv(V0, R, O, AB, STG, arrive=self.arrive)
        self.stamp("pv0")
        w = self.win
        self.step_p(0, O)
        self.idle(w[0])
        self.step_a(0, follow)
        self.stamp("a0")
        self.idle(w[1])
        self.step_b(0, 0, 1, follow)
        self.stamp("b0")
        self.idle(w[2])
        self.step_c(2, 0, False, follow)
        self.stamp("c0")
        self.idle(w[3])
        self.step_d(2, T(28), follow)
        self.stamp("d0")
        self.n_ring = self.issued - 128
        assert self.n_ring <= 64
        n_rr = max(self.n_ring - self.ring, 0)
        RR = [("K", 1, t, "again") for t in range(n_rr - 1, -1, -1)]
        self.items += RR
        self.mode = "C"
        self.mask_q(T(28), QM)

        def free_k(t):
            self.freed = t + 1

        self.qk_fast(K0, QM, T(28), ACC, [], list(range(16)), hook=free_k)
        self.softmax(T(28), R, T(8))
        self.pv(V0, R, O, AB, STG)
        self.freed = 64 + self.nvslot
        self.stamp("pass2_0")
        self.step_p(1, O)
        self.process_k1()
        self.stream(self.shadow[0])
        self.step_a(1, follow)
        self.process_k1()
        self.stream(self.shadow[1])
        self.step_b(1, 0, 2, follow)
        self.stamp("out0")
        self.process_k1(wait=True)
        self.softmax(vS1, R, T(8))
        self.pv(V1, R, O, AB, STG, arrive=self.arrive)
        self.stamp("pv1")
        self.mode = "T"
        self.pace = 1 << 30
        rr = self.tail_rr

        def settle(tok):
            e.wait_vm(tok)
            e("s_barrier")

        tok = self.step_p(2, O)
        settle(tok)
        tok = self.step_a(2, lambda: self.stream(rr[0]))
        self.stamp("a1")
        settle(tok)
        tok = self.step_b(2, 1, 1, lambda: self.stream(rr[1]))
        self.stamp("b1")
        settle(tok)
        tok = self.step_c(3, 1, False, lambda: self.stream(rr[2]))
        self.stamp("c1")
        settle(tok)
        self.step_d(3, T(28), lambda: self.stream(rr[3]))
        self.stamp("d1")
        K1b = [("K", 1, t, "again") if t < n_rr else K1[t] for t in range(64)]
        self.mask_q(T(28), QM)
        spare = [self.nwork + 4 * (k - 64) for k in range(128 - self.ring if n_rr else 128 - self.n_ring, 64 + self.nvslot)]
        assert len(spare) >= 2
        self.qk_fast(K1b, QM, vS1, ACC, spare, list(range(15, -1, -1)), arrive=self.arrive)
        self.softmax(vS1, R, T(8))
        self.pv(V1, R, O, AB, STG)
        self.stamp("pass2_1")
        tok = self.step_p(3, O)
        settle(tok)
        tok = self.step_a(3, lambda: None)
        self.stamp("a3")
        settle(tok)
        self.step_b(3, 1, 2, lambda: None)
        self.stamp("end")
        self.epilogue()

    def epilogue(self):
        e = self.e
        self.dump_stamps()
        if self.calib:
            e(f"s_add_u32 s94, s94, {self.calib * 100}")
            e("L_cal:")
            e("s_memrealtime s[96:97]")
            e("s_waitcnt lgkmcnt(0)")
            e("s_sub_u32 s96, s96, s94")
            e("s_cmp_lt_i32 s96, 0")
            e("s_cbranch_scc1 L_cal")
        e("L_end:")
        e("s_endpgm")
        for blk in self.ool:
            for l in blk:
                e(l)

    def text(self):
        self.build()
        head = [l for l in open(REF).read().split("\n") if l.startswith(";") and "@launch" not in l]
        body = self.e.finish()
        out = "\n".join(head) + "\n"
        out += "; @launch grid=(256,1,1) block=(256,1,1) lds=163840\n"
        out += '.amdgcn_target "amdgcn-amd-amdhsa--gfx950"\n.text\n'
        out += f".globl {KNAME}\n.p2align 8\n.type {KNAME},@function\n{KNAME}:\n"
        out += body
        out += '.section .rodata,"a"\n.p2align 6\n'
        out += f".amdhsa_kernel {KNAME}\n"
        out += "  .amdhsa_next_free_vgpr 512\n  .amdhsa_next_free_sgpr 102\n  .amdhsa_accum_offset 256\n"
        out += "  .amdhsa_group_segment_fixed_size 0\n  .amdhsa_kernarg_size 104\n"
        out += "  .amdhsa_user_sgpr_count 2\n  .amdhsa_user_sgpr_kernarg_segment_ptr 1\n"
        out += "  .amdhsa_system_sgpr_workgroup_id_x 1\n.end_amdhsa_kernel\n"
        return out


if __name__ == "__main__":
    cfg = eval(sys.argv[2]) if len(sys.argv) > 2 else {}
    g = Gen(**cfg)
    open(sys.argv[1], "w").write(g.text())
    print("ring", g.ring, "n_ring", g.n_ring, "items", len(g.items), "instructions", len(g.e.ins))
```

```python
import math
import re
import struct
import sys

from asmlib import Emitter

KNAME = "interleave_layers__gqa_block_cached__mixer_token_mlp__decode_kernel"
REF = "interleave_layers__gqa_block_cached__mixer_token_mlp__decode.s.ref"


def fbits(x):
    return "0x%08x" % struct.unpack("<I", struct.pack("<f", x))[0]


RA = 0
RD = RA + 256 * 640
RB = RD + 2 * 256 * 512
RC = RB + 4 * 8 * 2048
TB = RC + 2 * 2048
RX = TB + 8192 * 4
NONCE = RX + 256 * 8
XCH_END = NONCE + 128
STAMP_OFF = 0x10000000
STAMP_REGS = [94, 95, 96, 97, 98, 99, 100, 101, 92, 93, 0, 1] + list(range(24, 32))
TAGC = (0, 0x35, 0x6a, 0x9f)
TB_EXP = 100
TB_BASE = TB_EXP << 7
GELU_K = 2.0 * math.sqrt(2.0 / math.pi) * math.log2(math.e)

OW = QW = TW = 0
MLW = ST = 2048
ST2, YW, XS, OBF = 2112, 2176, 2432, 2688
SCRATCH = 4096

sW = 3
SRD_K, SRD_V, SRD_WS, SRD_X, SRD_WQ, SRD_WO, SRD_W1, SRD_B1, SRD_W2, SRD_OUT = (
    8, 12, 16, 20, 24, 28, 32, 36, 40, 44)
sTG = 48
sROT, sOFF, sG, sR, sRHO, sFAST, sLB, sB2, sPUBHI, sCNT, sXCC, sT0, sT1, sM, sL, sSPL = (
    4, 5, 6, 7, 52, 53, 54, 55, 56, 57, 58, 59, 60, 61, 62, 63)
sHI = 64
sODD = 66
sQ4 = 68
sBK = 76
sTP = 84
sN = 86
sFF = 87
sSTMP = 88
sTB = 90
sWOB = 91
sKA = 68

vLANE, vK, vV, vL = 0, 1, 2, 3
vMK = 4
vT = 8


def srd(b):
    return f"s[{b}:{b + 3}]"


def v(a, n=1):
    return f"v{a}" if n == 1 else f"v[{a}:{a + n - 1}]"


def sp(a):
    return f"s[{a}:{a + 1}]"


class Gen:
    def __init__(self, depth=6, pace=300, stamps=False, spin=1 << 16,
                 win=((0, 0, 5, 0), (0, 0, 0, 7), (0, 0, 4, 0)),
                 wo_pol="nt", wq_pol="nt", force_slow=False, depth_a=8, depth_a_until=64, depth_s=9,
                 shadow=(10, 0), c_at=14, x_at=40, wo_at=(20, 34, 48, 76), calib=0, codepf=True, prewrite=True,
                 tiny=TB_BASE, tb_warm=104):
        self.e = Emitter()
        self.depth = depth
        self.nwork = 40
        self.pace = pace
        self.stamps = stamps
        self.spin = spin
        self.win = win
        self.depth_a = depth_a
        self.depth_a_until = depth_a_until
        self.depth_s = depth_s
        self.depth_now = None
        self.wo_pol = wo_pol
        self.wq_pol = wq_pol
        self.force_slow = force_slow
        self.shadow = shadow
        self.c_at = c_at
        self.x_at = x_at
        self.wo_at = list(wo_at)
        self.calib = calib
        self.codepf = codepf
        self.prewrite = prewrite
        self.tiny = tiny
        self.tb_warm = tb_warm
        self.nvslot = (256 - self.nwork) // 4
        self.nhome = 128 - 64 - self.nvslot
        self.wave_lds = (163840 - SCRATCH) // 4
        self.WQO, self.WOO, self.HOME = 0, 4096, 8192
        self.RING = self.HOME + self.nhome * 1024
        self.ring = (self.wave_lds - self.RING) // 1024
        self.ool = []
        self.nstamp = 0
        self.stamp_names = []
        self.last_issue = 0
        self.items = []
        self.issued = 0
        self.toks = {}
        self.home = {}
        self.mode = "A"
        self.ctx = ""
        self.wo_done = 0
        self.tok_wo = None

    def T(self, i, n=1):
        assert i + n <= 32, (i, n)
        return v(vT + i, n)

    def mark(self, name):
        self.ctx = ""
        self.stamp(name)

    def stamp(self, name):
        if not self.stamps:
            return
        name = self.ctx + name
        if name != "start" and not re.fullmatch(self.stamps, name):
            return
        e = self.e
        e(f"s_memrealtime {sp(sSTMP)}")
        e.wait_lg_all()
        e(f"s_mov_b32 s{STAMP_REGS[self.nstamp]}, s{sSTMP}")
        self.stamp_names.append(name)
        self.nstamp += 1

    def dump_stamps(self):
        if not self.stamps:
            return
        e = self.e
        for k in range(self.nstamp):
            e(f"v_writelane_b32 v{vT}, s{STAMP_REGS[k]}, {k}")
        e(f"s_lshl_b32 s{sT0}, s2, 2")
        e(f"s_add_u32 s{sT0}, s{sT0}, s{sW}")
        e(f"s_lshl_b32 s{sT0}, s{sT0}, 7")
        e(f"s_add_u32 s{sT0}, s{sT0}, {STAMP_OFF}")
        e(f"v_lshlrev_b32 v{vT + 1}, 2, v{vLANE}")
        e("s_mov_b32 exec_hi, 0")
        e(f"buffer_store_dword v{vT}, v{vT + 1}, {srd(SRD_WS)}, s{sT0} offen")

    def cycles(self):
        t = 0
        for i in self.e.ins[self.last_issue:]:
            t += 16 if i.mfma else 4 * i.states()
        return t

    def reg_home(self, k):
        if k < 64:
            return ("r", f"a[{4 * k}:{4 * k + 3}]")
        b = self.nwork + 4 * (k - 64)
        assert b + 3 < 256
        return ("r", v(b, 4))

    def cur_depth(self):
        if self.depth_now:
            return self.depth_now
        return self.depth_a if self.issued < self.depth_a_until else self.depth

    def issue(self, paced=True):
        e = self.e
        if self.issued >= len(self.items):
            return False
        key = self.items[self.issued]
        kind, b, t = key
        if key not in self.home:
            if self.mode == "W":
                if t >= self.ring:
                    return False
                self.home[key] = ("l", self.RING + t * 1024)
            else:
                self.home[key] = self.reg_home(self.next_home)
                assert self.next_home < self.freed, "home not free yet"
                self.next_home += 1
        if paced:
            self.drain(self.cur_depth() - 1)
        if b == 1 and t == 0:
            r = vK if kind == "K" else vV
            e(f"v_add_u32 v{r}, 0x4000000, v{r}")
        hk, hv = self.home[key]
        e(f"s_add_u32 s{sOFF}, s{sROT}, {t}")
        if hk == "l":
            e(f"s_add_u32 m0, s{sLB}, {hv}")
        e(f"s_and_b32 s{sOFF}, s{sOFF}, 63")
        e(f"s_lshl_b32 s{sOFF}, s{sOFF}, 12")
        va, sr = (vK, SRD_K) if kind == "K" else (vV, SRD_V)
        if hk == "l":
            self.toks[key] = e.vmem(f"buffer_load_dwordx4 v{va}, {srd(sr)}, s{sOFF} offen nt lds")
        else:
            self.toks[key] = e.vmem(f"buffer_load_dwordx4 {hv}, v{va}, {srd(sr)}, s{sOFF} offen nt")
        self.issued += 1
        self.last_issue = len(e.ins)
        if self.issued == self.tb_warm:
            self.warm_table()
        if self.wo_done < 4 and self.issued >= self.wo_at[self.wo_done]:
            self.load_wo(self.wo_done)
            self.wo_done += 1
        return True

    def drain(self, k):
        if self.issued > k:
            self.e.wait_vm(self.toks[self.items[self.issued - k - 1]])

    def in_flight(self):
        live = {id(t) for t, _ in self.e.vm}
        return sum(1 for key in self.items[:self.issued] if id(self.toks[key]) in live)

    def stream(self, k):
        for _ in range(k):
            self.issue()

    def burst(self, k):
        for _ in range(k):
            self.issue(paced=False)

    def tick(self):
        if self.cycles() >= self.pace:
            self.stream(1)

    def arrive(self, key):
        n = self.items.index(key)
        while self.issued < min(n + self.cur_depth(), len(self.items)):
            if not self.issue():
                break
        assert self.issued > n
        self.e.wait_vm(self.toks[key])

    def mask_q(self, q, qm):
        for m in range(4):
            for i in range(4):
                self.e(f"v_cndmask_b32_e64 v{qm + 4 * m + i}, 0, v{q + i}, {sp(sBK + 2 * m)}")

    def qk_fast(self, keys, qm, S, acc, stage, groups, hook=None, arrive=None):
        e = self.e
        order = [4 * u + m for u in groups for m in range(4)]
        lds_q = [t for t in order if self.home.get(keys[t], ("r",))[0] == "l"]
        staged = {}
        free = list(stage)

        def prefetch():
            while lds_q and free:
                t = lds_q.pop(0)
                if arrive:
                    arrive(keys[t])
                r = free.pop(0)
                staged[t] = (r, e.lds(f"ds_read_b128 {v(r, 4)}, v{vL} offset:{self.home[keys[t]][1]}"))

        for gi, u in enumerate(groups + [None, None]):
            ops = []
            if gi >= 2:
                pu = groups[gi - 2]
                a = acc + 4 * ((gi - 2) % 3)
                dp = lambda r: f"quad_perm:[{r},{r},{r},{r}] row_mask:0xf bank_mask:0xf"
                ops = [f"v_mov_b32_dpp v{a}, v{a} {dp(0)}",
                       f"v_mov_b32_dpp v{a + 2}, v{a + 2} {dp(2)}",
                       f"v_add_f32_dpp v{a}, v{a + 1}, v{a} {dp(1)}",
                       f"v_add_f32_dpp v{a + 2}, v{a + 3}, v{a + 2} {dp(3)}",
                       f"v_add_f32 v{a}, v{a}, v{a + 2}",
                       f"v_cndmask_b32_e64 v{S + (pu >> 2)}, v{S + (pu >> 2)}, v{a}, {sp(sQ4 + 2 * (pu & 3))}"]
            if u is None:
                for o in ops:
                    e(o)
                continue
            a = acc + 4 * (gi % 3)
            for m in range(4):
                t = 4 * u + m
                prefetch()
                if t in staged:
                    r, tok = staged.pop(t)
                    e.wait_lg(tok)
                    src = v(r, 4)
                else:
                    r = None
                    if arrive:
                        arrive(keys[t])
                    src = self.home[keys[t]][1]
                c = "0" if m == 0 else v(a, 4)
                e(f"v_mfma_f32_16x16x32_bf16 {v(a, 4)}, {src}, {v(qm + 4 * m, 4)}, {c}")
                if r is not None:
                    free.append(r)
                if hook:
                    hook(t)
                if ops:
                    e(ops.pop(0))
                    if m == 3:
                        e(ops.pop(0))
                        e(ops.pop(0))
            self.tick()

    def wave_reduce(self, op, regs):
        e = self.e
        for ctl in ("quad_perm:[1,0,3,2] row_mask:0xf", "quad_perm:[2,3,0,1] row_mask:0xf",
                    "row_half_mirror row_mask:0xf", "row_mirror row_mask:0xf",
                    "row_bcast:15 row_mask:0xa", "row_bcast:31 row_mask:0xc"):
            for r in regs:
                e(f"{op}_dpp v{r}, v{r}, v{r} {ctl} bank_mask:0xf")

    def softmax(self, S, R, tm):
        e = self.e
        c = 128 ** -0.5 * math.log2(math.e)
        e(f"v_max3_f32 v{tm}, v{S}, v{S + 1}, v{S + 2}")
        e(f"v_max_f32 v{tm}, v{tm}, v{S + 3}")
        self.wave_reduce("v_max_f32", [tm])
        e(f"v_mul_f32 v{tm}, {fbits(c)}, v{tm}")
        e(f"v_mov_b32 v{tm + 1}, {fbits(c)}")
        e(f"v_readlane_b32 s{sM}, v{tm}, 63")
        for i in range(4):
            e(f"v_fma_f32 v{S + i}, v{S + i}, v{tm + 1}, -s{sM}")
        for i in range(4):
            e(f"v_exp_f32 v{S + i}, v{S + i}")
        for i in range(4):
            e(f"v_cvt_pk_bf16_f32 v{R + 2 * i}, v{S + i}, v{S + i}")
        for i in range(4):
            e(f"v_mov_b32 v{R + 2 * i + 1}, v{R + 2 * i}")
        e(f"v_add_f32 v{tm}, v{S}, v{S + 1}")
        for i in range(4):
            e(f"v_mov_b32_dpp v{R + 2 * i}, v{R + 2 * i + 1} row_shr:4 row_mask:0xf bank_mask:0xa")
        e(f"v_add_f32 v{tm + 1}, v{S + 2}, v{S + 3}")
        for i in range(4):
            e(f"v_mov_b32_dpp v{R + 2 * i + 1}, v{R + 2 * i + 1} row_shl:4 row_mask:0xf bank_mask:0x5")
        e(f"v_add_f32 v{tm}, v{tm}, v{tm + 1}")
        self.wave_reduce("v_add_f32", [tm])
        e(f"v_readlane_b32 s{sL}, v{tm}, 63")

    def pv(self, keys, R, O, AB, stage, hook=None, arrive=None):
        e = self.e
        steps = [(u, p) for u in range(16) for p in range(2)]
        order = [t for (u, p) in steps for t in (4 * u + p, 4 * u + p + 2)]
        lds_q = [t for t in order if self.home.get(keys[t], ("r",))[0] == "l"]
        staged = {}
        free = list(stage)

        def prefetch():
            while lds_q and free:
                t = lds_q.pop(0)
                if arrive:
                    arrive(keys[t])
                r = free.pop(0)
                staged[t] = (r, e.lds(f"ds_read_b128 {v(r, 4)}, v{vL} offset:{self.home[keys[t]][1]}"))

        def build(k):
            u, p = steps[k]
            c = u & 3
            a = AB + 4 * (k & 1)
            return [f"v_and_b32_dpp v{a + q}, v{R + 2 * (u >> 2) + p}, v{vMK + q} "
                    f"quad_perm:[{c},{c},{c},{c}] row_mask:0xf bank_mask:0xf" for q in range(4)]

        prefetch()
        for o in build(0):
            e(o)
        for k, (u, p) in enumerate(steps):
            nxt = build(k + 1) if k + 1 < len(steps) else []
            a = AB + 4 * (k & 1)
            for half, t in enumerate((4 * u + p, 4 * u + p + 2)):
                for o in nxt[2 * half:2 * half + 2]:
                    e(o)
                prefetch()
                if t in staged:
                    r, tok = staged.pop(t)
                    e.wait_lg(tok)
                    src = v(r, 4)
                else:
                    r = None
                    if arrive:
                        arrive(keys[t])
                    src = self.home[keys[t]][1]
                o_ = O + 4 * half
                c = "0" if k == 0 else v(o_, 4)
                e(f"v_mfma_f32_16x16x32_bf16 {v(o_, 4)}, {v(a, 4)}, {src}, {c}")
                if r is not None:
                    free.append(r)
                if hook:
                    hook(t)
            self.tick()

    def tag_reg(self, dst, use):
        e = self.e
        e(f"s_add_u32 s{sTG}, s{sTB}, {use}")
        e(f"v_and_b32 v{dst}, 3, v{vLANE}")
        e(f"v_mul_u32_u24 v{dst}, {TAGC[1]}, v{dst}")
        e(f"v_add_u32 v{dst}, s{sTG}, v{dst}")

    def tag(self, val, tg):
        self.e(f"v_bfi_b32 v{val}, s{sFF}, v{tg}, v{val}")

    def gather(self, use, loads, regs, tmp, hooks):
        e = self.e
        tok = None
        for k in range(4):
            e(f"s_add_u32 s{sTG + k}, s{sTB}, {use + TAGC[k]}")
            e(f"s_and_b32 s{sTG + k}, s{sTG + k}, 0xff")
        self.stamp("prep")
        hooks[0]()
        for l in loads:
            if l.startswith("buffer_"):
                tok = e.vmem(l)
            else:
                e(l)
        self.stamp("iss")
        hooks[1]()
        e.wait_vm(tok)
        self.stamp("first")
        chk = [f"v_xor_b32 v{r}, s{sTG + k}, v{r}" for r, k in regs]
        rs = [r for r, _ in regs]
        chk.append(f"v_or3_b32 v{tmp}, v{rs[0]}, v{rs[1]}, v{rs[2]}")
        rs = rs[3:]
        while len(rs) >= 2:
            chk.append(f"v_or3_b32 v{tmp}, v{tmp}, v{rs[0]}, v{rs[1]}")
            rs = rs[2:]
        if rs:
            chk.append(f"v_or_b32 v{tmp}, v{tmp}, v{rs[0]}")
        chk.append(f"v_and_b32 v{tmp}, 0xff, v{tmp}")
        chk.append(f"v_cmp_ne_u32 vcc, 0, v{tmp}")
        self.retry(loads, chk)
        hooks[2]()

    def retry(self, loads, chk):
        e = self.e
        lr, ll, ok = e.label("retry"), e.label("rloop"), e.label("ok")
        cnt = []
        name = self.ctx + "#retry"
        if self.stamps and re.fullmatch(self.stamps, name):
            r = STAMP_REGS[self.nstamp]
            e(f"s_mov_b32 s{r}, 0")
            cnt = [f"s_add_u32 s{r}, s{r}, 1"]
            self.stamp_names.append(name)
            self.nstamp += 1
        for c in chk:
            e(c)
        e(f"s_cbranch_vccnz {lr}")
        e(f"{ok}:")
        self.stamp("got")
        lx = e.label("rdone")
        blk = [f"{lr}:", f"s_mov_b32 s{sCNT}, {self.spin}", f"{ll}:", "s_mov_b64 exec, vcc"]
        blk += cnt + list(loads) + ["s_waitcnt vmcnt(0)"] + chk
        blk += [f"s_cbranch_vccz {lx}", f"s_sub_u32 s{sCNT}, s{sCNT}, 1", f"s_cmp_lg_u32 s{sCNT}, 0",
                f"s_cbranch_scc1 {ll}", f"{lx}:", "s_mov_b64 exec, -1", f"s_branch {ok}"]
        self.ool.append(blk)

    def publish_local(self, ins, local=True):
        e = self.e
        if not local:
            return e.vmem(ins + " sc1")
        ls, ld = e.label("slow"), e.label("pub")
        e(f"s_cmp_eq_u32 s{sFAST}, 0")
        e(f"s_cbranch_scc1 {ls}")
        tok = e.vmem(ins)
        e(f"{ld}:")
        self.ool.append([f"{ls}:", ins + " sc1", f"s_branch {ld}"])
        return tok

    def wave0(self, body):
        e = self.e
        l = e.label("w0")
        e(f"s_cmp_lg_u32 s{sW}, 0")
        e(f"s_cbranch_scc1 {l}")
        e.begin_cond()
        r = body()
        e.end_cond()
        e(f"{l}:")
        return r

    def barrier(self):
        self.e.wait_lg_all()
        self.e("s_barrier")
        self.stamp("bar")

    def half_sum(self, a):
        e = self.e
        e(f"v_permlane32_swap_b32 v{a}, v{a + 2}")
        e(f"v_permlane32_swap_b32 v{a + 1}, v{a + 3}")
        e(f"v_add_f32 v{a}, v{a}, v{a + 2}")
        e(f"v_add_f32 v{a + 1}, v{a + 1}, v{a + 3}")

    def step_p(self, use, O):
        self.ctx = f"p{use}."
        e = self.e
        T = lambda i: vT + i
        for r in range(4):
            e(f"v_cndmask_b32_e64 v{O + r}, v{O + r}, v{O + 4 + r}, {sp(sHI)}")
        a0, a1 = O + 4, O + 5
        e(f"v_and_b32 v{a0}, 15, v{vLANE}")
        e(f"v_lshlrev_b32 v{a0}, 5, v{a0}")
        e(f"v_bfe_u32 v{a1}, v{vLANE}, 4, 1")
        e(f"v_lshl_add_u32 v{a0}, v{a1}, 4, v{a0}")
        e(f"v_lshrrev_b32 v{a1}, 5, v{vLANE}")
        e(f"v_lshl_add_u32 v{a0}, v{a1}, 3, v{a0}")
        e(f"s_lshl_b32 s{sT0}, s{sW}, 9")
        e(f"v_add_u32 v{a0}, s{sT0}, v{a0}")
        self.half_sum(O)
        e.lds(f"ds_write_b64 v{a0}, {v(O, 2)} offset:{OW}")
        e(f"s_lshl_b32 s{sT0}, s{sW}, 3")
        e(f"v_mov_b32 v{O + 2}, s{sM}")
        e(f"v_mov_b32 v{O + 3}, s{sL}")
        e(f"v_mov_b32 v{a1}, s{sT0}")
        e("s_mov_b64 exec, 1")
        e.lds(f"ds_write_b64 v{a1}, {v(O + 2, 2)} offset:{MLW}")
        e("s_mov_b64 exec, -1")
        e(f"v_and_b32 v{T(12)}, 31, v{vLANE}")
        e(f"s_lshl_b32 s{sT0}, s{sW}, 7")
        e(f"v_lshl_add_u32 v{T(13)}, v{T(12)}, 2, s{sT0}")
        e(f"v_mov_b32 v{T(14)}, 0")
        e(f"v_lshlrev_b32 v{T(12)}, 2, v{T(12)}")
        e(f"v_add_u32 v{T(12)}, 512, v{T(12)}")
        e(f"v_cndmask_b32_e64 v{T(12)}, v{T(13)}, v{T(12)}, {sp(sHI)}")
        e(f"s_mul_i32 s{sT0}, s{sRHO}, 640")
        e(f"s_add_u32 s{sT0}, s{sT0}, {RA}")
        self.tag_reg(T(24), use)
        self.barrier()
        e.lds(f"ds_read_b128 {v(T(0), 4)}, v{T(14)} offset:{MLW}")
        t1 = e.lds(f"ds_read_b128 {v(T(4), 4)}, v{T(14)} offset:{MLW + 16}")
        for w in range(4):
            t2 = e.lds(f"ds_read_b32 v{T(8 + w)}, v{T(13)} offset:{OW + 512 * w}")
        e.wait_lg(t1)
        e(f"v_max3_f32 v{T(14)}, v{T(0)}, v{T(2)}, v{T(4)}")
        e(f"v_max_f32 v{T(14)}, v{T(14)}, v{T(6)}")
        for w in range(4):
            e(f"v_sub_f32 v{T(2 * w)}, v{T(2 * w)}, v{T(14)}")
        for w in range(4):
            e(f"v_exp_f32 v{T(2 * w)}, v{T(2 * w)}")
        e.wait_lg(t2)
        e(f"v_mul_f32 v{T(15)}, v{T(0)}, v{T(8)}")
        e(f"v_mul_f32 v{T(13)}, v{T(0)}, v{T(1)}")
        for w in range(1, 4):
            e(f"v_fmac_f32 v{T(15)}, v{T(2 * w)}, v{T(8 + w)}")
            e(f"v_fmac_f32 v{T(13)}, v{T(2 * w)}, v{T(2 * w + 1)}")
        e(f"v_cndmask_b32_e64 v{T(14)}, v{T(14)}, v{T(13)}, {sp(sODD)}")
        e(f"v_cndmask_b32_e64 v{T(15)}, v{T(15)}, v{T(14)}, {sp(sHI)}")
        self.tag(T(15), T(24))
        e(f"s_mov_b32 exec_hi, s{sPUBHI}")
        tok = self.publish_local(f"buffer_store_dword v{T(15)}, v{T(12)}, {srd(SRD_WS)}, s{sT0} offen")
        e("s_mov_b32 exec_hi, -1")
        return tok

    def step_a(self, use, hooks):
        self.ctx = f"a{use}."
        e = self.e
        T = lambda i: vT + i
        e(f"v_lshrrev_b32 v{T(20)}, 5, v{vLANE}")
        e(f"v_and_b32 v{T(21)}, 31, v{vLANE}")
        e(f"v_lshlrev_b32 v{T(28)}, 4, v{T(21)}")
        e(f"v_mul_u32_u24 v{T(22)}, 640, v{T(20)}")
        e(f"v_add_u32 v{T(28)}, v{T(28)}, v{T(22)}")
        e(f"v_and_b32 v{T(29)}, 7, v{vLANE}")
        e(f"v_xor_b32 v{T(29)}, v{T(29)}, v{T(20)}")
        e(f"v_mul_u32_u24 v{T(29)}, 640, v{T(29)}")
        e(f"s_lshl_b32 s{sT1}, s{sG}, 2")
        e(f"s_add_u32 s{sT1}, s{sT1}, s{sW}")
        e(f"s_mul_i32 s{sT1}, s{sT1}, {8 * 640}")
        e(f"s_add_u32 s{sT1}, s{sT1}, {RA}")
        loads = [f"buffer_load_dwordx4 {v(T(16), 4)}, v{T(29)}, {srd(SRD_WS)}, s{sT1} offen offset:512 sc1"]
        loads += [f"buffer_load_dwordx4 {v(T(4 * u), 4)}, v{T(28)}, {srd(SRD_WS)}, s{sT1} offen offset:{1280 * u} sc1"
                  for u in range(4)]
        e(f"v_lshlrev_b32 v{T(21)}, 3, v{T(21)}")
        e(f"v_lshl_add_u32 v{T(21)}, v{T(20)}, 2, v{T(21)}")
        e(f"s_lshl_b32 s{sT0}, s{sW}, 8")
        e(f"v_add_u32 v{T(21)}, s{sT0}, v{T(21)}")
        e(f"v_lshrrev_b32 v{T(22)}, 4, v{vLANE}")
        e(f"v_lshl_add_u32 v{T(26)}, v{T(22)}, 4, s{sT0}")
        e(f"v_and_b32 v{T(24)}, 15, v{vLANE}")
        e(f"v_lshlrev_b32 v{T(24)}, 3, v{T(24)}")
        e(f"v_lshl_add_u32 v{T(24)}, v{T(22)}, 8, v{T(24)}")
        e(f"v_add_u32 v{T(24)}, s{sLB}, v{T(24)}")
        e(f"s_lshl_b32 s{sT0}, s{sW}, 6")
        e(f"v_lshl_add_u32 v{T(27)}, v{T(22)}, 4, s{sT0}")
        self.tag_reg(T(25), use)
        self.gather(use, loads, [(T(i), i & 3) for i in range(20)], T(20), hooks)
        m, l, t = T(16), T(17), T(20)
        e(f"v_max_f32_dpp v{t}, v{m}, v{m} quad_perm:[1,0,3,2] row_mask:0xf bank_mask:0xf")
        e(f"v_max_f32_dpp v{t}, v{t}, v{t} quad_perm:[2,3,0,1] row_mask:0xf bank_mask:0xf")
        e(f"v_max_f32_dpp v{t}, v{t}, v{t} row_half_mirror row_mask:0xf bank_mask:0xf")
        e(f"v_sub_f32 v{m}, v{m}, v{t}")
        e(f"v_exp_f32 v{m}, v{m}")
        e(f"v_mul_f32 v{l}, v{m}, v{l}")
        e(f"v_add_f32_dpp v{l}, v{l}, v{l} quad_perm:[1,0,3,2] row_mask:0xf bank_mask:0xf")
        e(f"v_add_f32_dpp v{l}, v{l}, v{l} quad_perm:[2,3,0,1] row_mask:0xf bank_mask:0xf")
        e(f"v_add_f32_dpp v{l}, v{l}, v{l} row_half_mirror row_mask:0xf bank_mask:0xf")
        e(f"v_rcp_f32 v{l}, v{l}")
        e(f"v_mul_f32 v{m}, v{m}, v{l}")
        acc = T(28)
        for k in range(4):
            e(f"v_mul_f32_dpp v{acc + k}, v{m}, v{T(k)} row_newbcast:0 row_mask:0xf bank_mask:0xf")
        for u in range(1, 4):
            for k in range(4):
                e(f"v_fmac_f32_dpp v{acc + k}, v{m}, v{T(4 * u + k)} row_newbcast:{2 * u} row_mask:0xf bank_mask:0xf")
        e.wait_vm(self.tok_wo)
        wt = []
        for n in range(4):
            e.lds(f"ds_read_b64_tr_b16 {v(T(4 * n), 2)}, v{T(24)} offset:{self.WOO + 1024 * n}")
            wt.append(e.lds(f"ds_read_b64_tr_b16 {v(T(4 * n + 2), 2)}, v{T(24)} offset:{self.WOO + 1024 * n + 128}"))
        self.half_sum(acc)
        e(f"v_cvt_pk_bf16_f32 v{acc}, v{acc}, v{acc + 1}")
        e.lds(f"ds_write_b32 v{T(21)}, v{acc} offset:{OBF}")
        bb = [T(16), T(28)]
        D = T(20)
        a_b, a_y = T(26), T(27)
        tb = [e.lds(f"ds_read_b128 {v(bb[0], 4)}, v{a_b} offset:{OBF}")]
        tb.append(e.lds(f"ds_read_b128 {v(bb[1], 4)}, v{a_b} offset:{OBF + 64}"))
        for n in range(4):
            e.wait_lg(tb[n])
            c = "0" if n == 0 else v(D, 4)
            e(f"v_mfma_f32_16x16x32_bf16 {v(D, 4)}, {v(T(4 * n), 4)}, {v(bb[n & 1], 4)}, {c}")
            if n < 2:
                tb.append(e.lds(f"ds_read_b128 {v(bb[n & 1], 4)}, v{a_b} offset:{OBF + 64 * (n + 2)}"))
        e(f"v_lshlrev_b32 v{T(0)}, 2, v{vLANE}")
        e(f"s_lshl_b32 s{sT0}, s{sG}, 11")
        e(f"s_lshl_b32 s{sT1}, s{sR}, 6")
        e(f"s_add_u32 s{sT0}, s{sT0}, s{sT1}")
        e(f"s_add_u32 s{sT0}, s{sT0}, {RB + use * 16384}")
        e("s_mov_b32 exec_lo, 0x00010001")
        e("s_mov_b32 exec_hi, 0x00010001")
        e.lds(f"ds_write_b128 v{a_y}, {v(D, 4)} offset:{YW}")
        e("s_mov_b64 exec, -1")
        self.barrier()

        def pub():
            e("s_mov_b64 exec, 0xffff")
            for w in range(4):
                e(f"ds_read_b32 v{T(2 + w)}, v{T(0)} offset:{YW + 64 * w}")
            e("s_waitcnt lgkmcnt(0)")
            e(f"v_add_f32 v{T(2)}, v{T(2)}, v{T(3)}")
            e(f"v_add_f32 v{T(4)}, v{T(4)}, v{T(5)}")
            e(f"v_add_f32 v{T(2)}, v{T(2)}, v{T(4)}")
            self.tag(T(2), T(25))
            tok = e.vmem(f"buffer_store_dword v{T(2)}, v{T(0)}, {srd(SRD_WS)}, s{sT0} offen sc1", maybe=True)
            e("s_mov_b64 exec, -1")
            return tok

        return self.wave0(pub)

    def build_table(self):
        self.ctx = "t."
        e = self.e
        T = lambda i: vT + i
        LA, LB = self.RING, self.RING + 172 * 16
        e(f"s_mul_i32 s{sT0}, s{sW}, 688")
        e(f"v_lshlrev_b32 v{T(28)}, 4, v{vLANE}")
        e.vmem(f"buffer_load_dwordx4 {v(T(0), 4)}, v{T(28)}, {srd(SRD_W1)}, s{sT0} offen")
        e.vmem(f"buffer_load_dwordx4 {v(T(4), 4)}, v{T(28)}, {srd(SRD_B1)}, s{sT0} offen")
        tok = e.vmem(f"buffer_load_dwordx4 {v(T(8), 4)}, v{T(28)}, {srd(SRD_W2)}, s{sT0} offen")
        self.stream(self.cur_depth() - 1)
        e(f"v_lshl_add_u32 v{T(29)}, v{vLANE}, 6, s{sLB}")
        e(f"v_lshl_add_u32 v{T(30)}, v{vLANE}, 5, s{sLB}")
        e.wait_vm(tok)
        e("s_mov_b32 exec_hi, 0x7ff")
        for p in range(4):
            q = T(12 + 6 * (p & 1))
            e(f"v_lshlrev_b32 v{q}, 16, v{T(p)}")
            e(f"v_and_b32 v{q + 1}, 0xffff0000, v{T(p)}")
            e(f"v_lshlrev_b32 v{q + 2}, 16, v{T(4 + p)}")
            e(f"v_and_b32 v{q + 3}, 0xffff0000, v{T(4 + p)}")
            e(f"v_lshlrev_b32 v{q + 4}, 16, v{T(8 + p)}")
            e(f"v_and_b32 v{q + 5}, 0xffff0000, v{T(8 + p)}")
            e.lds(f"ds_write_b128 v{T(29)}, {v(q, 4)} offset:{LA + 16 * p}")
            e.lds(f"ds_write_b64 v{T(30)}, {v(q + 4, 2)} offset:{LB + 8 * p}")
            if p == 1:
                e.wait_lg_all()
        e("s_mov_b32 exec_hi, -1")
        H, aA, aB, U, E, ACC = T(24), T(26), T(27), T(0), T(2), T(4)
        e(f"s_and_b32 s{sT0}, s2, 127")
        e(f"s_lshl_b32 s{sT0}, s{sT0}, 5")
        e(f"v_and_b32 v{H}, 31, v{vLANE}")
        e(f"v_add_u32 v{H}, s{sT0}, v{H}")
        e(f"v_cmp_ne_u32 vcc, 0, v{H}")
        e(f"s_lshr_b32 s{sT0}, s2, 7")
        e(f"s_lshl_b32 s{sT0}, s{sT0}, 15")
        e(f"s_add_u32 s{sT0}, s{sT0}, {TB_BASE}")
        e(f"v_add_u32 v{H}, s{sT0}, v{H}")
        e(f"v_lshlrev_b32 v{H}, 16, v{H}")
        e(f"v_cndmask_b32 v{H}, 0, v{H}, vcc")
        e(f"v_lshrrev_b32 v{aB}, 5, v{vLANE}")
        e(f"v_mul_u32_u24 v{aA}, {86 * 16}, v{aB}")
        e(f"v_mul_u32_u24 v{aB}, {86 * 8}, v{aB}")
        e(f"v_add_u32 v{aA}, s{sLB}, v{aA}")
        e(f"v_add_u32 v{aB}, s{sLB}, v{aB}")
        e(f"s_mov_b32 s{sTG}, {fbits(-GELU_K * 0.044715)}")
        e(f"s_mov_b32 s{sTG + 1}, {fbits(-GELU_K)}")
        e(f"v_mov_b32 v{ACC}, 0")
        e(f"v_mov_b32 v{ACC + 1}, 0")
        e.wait_lg_all()
        buf = [T(8), T(16)]

        def fetch(i):
            q = buf[i & 1]
            e.lds(f"ds_read_b128 {v(q, 4)}, v{aA} offset:{LA + 16 * i}")
            return e.lds(f"ds_read_b64 {v(q + 4, 2)}, v{aB} offset:{LB + 8 * i}")

        tk = fetch(0)
        for i in range(86):
            nx = fetch(i + 1) if i < 85 else None
            q = buf[i & 1]
            e.wait_lg(tk)
            self.gelu_pair(H, q, q + 2, q + 4, U, E, ACC)
            tk = nx
            self.tick()
        e(f"v_add_f32 v{ACC}, v{ACC}, v{ACC + 1}")
        e(f"s_lshl_b32 s{sT0}, s{sW}, 7")
        e(f"v_mov_b32 v{ACC + 1}, v{ACC}")
        e(f"v_lshlrev_b32 v{T(7)}, 2, v{vLANE}")
        e(f"v_add_u32 v{T(6)}, s{sT0}, v{T(7)}")
        e(f"v_permlane32_swap_b32 v{ACC}, v{ACC + 1}")
        e(f"v_add_f32 v{ACC}, v{ACC}, v{ACC + 1}")
        self.barrier()
        e("s_mov_b32 exec_hi, 0")
        e.lds(f"ds_write_b32 v{T(6)}, v{ACC} offset:{TW}")
        e("s_mov_b32 exec_hi, -1")
        self.barrier()

        def pub():
            e("s_mov_b32 exec_hi, 0")
            for w in range(4):
                e(f"ds_read_b32 v{T(w)}, v{T(7)} offset:{TW + 128 * w}")
            e(f"s_lshl_b32 s{sT0}, s2, 7")
            e(f"s_add_u32 s{sT0}, s{sT0}, {TB}")
            e("s_waitcnt lgkmcnt(0)")
            e(f"v_add_f32 v{T(0)}, v{T(0)}, v{T(1)}")
            e(f"v_add_f32 v{T(2)}, v{T(2)}, v{T(3)}")
            e(f"v_add_f32 v{T(0)}, v{T(0)}, v{T(2)}")
            e(f"v_add_f32 v{T(0)}, s{sB2}, v{T(0)}")
            e.vmem(f"buffer_store_dword v{T(0)}, v{T(7)}, {srd(SRD_WS)}, s{sT0} offen sc1", maybe=True)
            e("s_mov_b32 exec_hi, -1")

        self.wave0(pub)

    def gelu_pair(self, H, W1, B1, W2, U, E, ACC):
        e = self.e
        c = sp(sTG)
        e(f"v_pk_fma_f32 {v(U, 2)}, {v(H, 2)}, {v(W1, 2)}, {v(B1, 2)} op_sel_hi:[0,1,1]")
        e(f"v_pk_mul_f32 {v(E, 2)}, {v(U, 2)}, {v(U, 2)}")
        e(f"v_pk_fma_f32 {v(E, 2)}, {v(E, 2)}, {c}, {c} op_sel:[0,0,1] op_sel_hi:[1,0,1]")
        e(f"v_pk_mul_f32 {v(E, 2)}, {v(U, 2)}, {v(E, 2)}")
        e(f"v_exp_f32 v{E}, v{E}")
        e(f"v_exp_f32 v{E + 1}, v{E + 1}")
        e(f"v_pk_mul_f32 {v(U, 2)}, {v(U, 2)}, {v(W2, 2)}")
        e(f"v_pk_add_f32 {v(E, 2)}, {v(E, 2)}, 1.0 op_sel_hi:[1,0]")
        e(f"v_rcp_f32 v{E}, v{E}")
        e(f"v_rcp_f32 v{E + 1}, v{E + 1}")
        e(f"v_pk_fma_f32 {v(ACC, 2)}, {v(U, 2)}, {v(E, 2)}, {v(ACC, 2)}")

    def warm_table(self):
        e = self.e
        e(f"s_lshl_b32 s{sOFF}, s{sR}, 2")
        e(f"s_add_u32 s{sOFF}, s{sOFF}, s{sW}")
        e(f"s_lshl_b32 s{sOFF}, s{sOFF}, 8")
        e(f"s_add_u32 s{sOFF}, s{sOFF}, {TB}")
        e(f"s_add_u32 m0, s{sLB}, {self.RING}")
        e(f"v_lshlrev_b32 v{vMK}, 2, v{vLANE}")
        e.vmem(f"buffer_load_dword v{vMK}, {srd(SRD_WS)}, s{sOFF} offen sc1 lds")
        self.lane_masks((0,))

    def mixer_direct(self, pk, y, flags, back):
        T = lambda i: vT + i
        e = self.e
        lines = []
        A = lines.append
        h, f, U, E, acc, w = T(0), T(1), T(2), T(3), T(4), T(5)
        for c in range(2):
            l0, l1, l2 = e.label("mx"), e.label("mxf"), e.label("mxe")
            A(f"{l0}:")
            A(f"s_cmp_eq_u64 {sp(flags[c])}, 0")
            A(f"s_cbranch_scc1 {l2}")
            A(f"s_ff1_i32_b64 s{sCNT}, {sp(flags[c])}")
            A(f"s_bitset0_b64 {sp(flags[c])}, s{sCNT}")
            A(f"v_readlane_b32 s{sOFF}, v{pk}, s{sCNT}")
            A(f"s_lshl_b32 s{sOFF}, s{sOFF}, 16" if c == 0 else f"s_and_b32 s{sOFF}, s{sOFF}, 0xffff0000")
            A(f"v_mov_b32 v{h}, s{sOFF}")
            A(f"v_lshlrev_b32 v{f}, 1, v{vLANE}")
            A(f"v_mov_b32 v{acc}, 0")
            A(f"s_mov_b32 s{sOFF}, 0")
            A(f"{l1}:")
            A(f"buffer_load_ushort v{w}, v{f}, {srd(SRD_W1)}, s{sOFF} offen")
            A(f"buffer_load_ushort v{w + 1}, v{f}, {srd(SRD_B1)}, s{sOFF} offen")
            A(f"buffer_load_ushort v{w + 2}, v{f}, {srd(SRD_W2)}, s{sOFF} offen")
            A("s_waitcnt vmcnt(0)")
            for i in range(3):
                A(f"v_lshlrev_b32 v{w + i}, 16, v{w + i}")
            A(f"v_fma_f32 v{U}, v{h}, v{w}, v{w + 1}")
            A(f"v_mul_f32 v{E}, v{U}, v{U}")
            A(f"v_mul_f32 v{E}, {fbits(-GELU_K * 0.044715)}, v{E}")
            A(f"v_add_f32 v{E}, {fbits(-GELU_K)}, v{E}")
            A(f"v_mul_f32 v{E}, v{U}, v{E}")
            A(f"v_exp_f32 v{E}, v{E}")
            A(f"v_mul_f32 v{U}, v{U}, v{w + 2}")
            A(f"v_add_f32 v{E}, 1.0, v{E}")
            A(f"v_rcp_f32 v{E}, v{E}")
            A(f"s_add_u32 s{sOFF}, s{sOFF}, 128")
            A(f"s_cmp_lt_u32 s{sOFF}, 2752")
            A(f"v_fmac_f32 v{acc}, v{U}, v{E}")
            A(f"s_cbranch_scc1 {l1}")
            for ctl in ("quad_perm:[1,0,3,2] row_mask:0xf", "quad_perm:[2,3,0,1] row_mask:0xf",
                        "row_half_mirror row_mask:0xf", "row_mirror row_mask:0xf",
                        "row_bcast:15 row_mask:0xa", "row_bcast:31 row_mask:0xc"):
                A(f"v_add_f32_dpp v{acc}, v{acc}, v{acc} {ctl} bank_mask:0xf")
            A(f"v_add_f32 v{acc}, s{sB2}, v{acc}")
            A(f"v_readlane_b32 s{sOFF}, v{acc}, 63")
            A(f"s_mov_b32 m0, s{sCNT}")
            A("s_nop 3")
            A(f"v_writelane_b32 v{y + c}, s{sOFF}, m0")
            A(f"s_branch {l0}")
            A(f"{l2}:")
        A(f"s_branch {back}")
        return lines

    def step_b(self, use, b, layer, hooks):
        self.ctx = f"b{use}."
        e = self.e
        T = lambda i: vT + i
        e(f"v_lshrrev_b32 v{T(28)}, 5, v{vLANE}")
        e(f"v_and_b32 v{T(29)}, 31, v{vLANE}")
        e(f"s_lshl_b32 s{sT0}, s{sW}, 9")
        e(f"v_lshl_add_u32 v{T(30)}, v{T(29)}, 4, s{sT0}")
        e(f"v_lshl_add_u32 v{T(27)}, v{T(28)}, 11, v{T(30)}")
        e(f"v_lshl_add_u32 v{T(30)}, v{T(28)}, 3, v{T(30)}")
        loads = []
        if layer == 1:
            e(f"v_lshrrev_b32 v{T(29)}, 1, v{T(30)}")
            e.vmem(f"buffer_load_dword v{T(16)}, v{T(29)}, {srd(SRD_X)}, 0 offen offset:{1024 * b}")
            e(f"s_mov_b32 s{sM}, {RB + use * 16384}")
        else:
            e(f"s_xor_b32 s{sL}, s2, 1")
            e(f"s_lshl_b32 s{sT0}, s{sL}, 11")
            e(f"s_add_u32 s{sT0}, s{sT0}, {RC}")
            e.vmem(f"buffer_load_dwordx2 {v(T(16), 2)}, v{T(30)}, {srd(SRD_WS)}, s{sT0} offen sc1")
            e(f"s_lshl_b32 s{sM}, s{sL}, 15")
            e(f"s_add_u32 s{sM}, s{sM}, {RB + 16384}")
            e(f"s_lshl_b32 s{sT0}, s2, 1")
            e(f"s_sub_u32 s{sTB}, s{sTB}, s{sT0}")
        for u in range(4):
            loads.append(f"s_add_u32 s{sT1}, s{sM}, {4096 * u}")
            loads.append(f"buffer_load_dwordx4 {v(T(4 * u), 4)}, v{T(27)}, {srd(SRD_WS)}, s{sT1} offen sc1")
        e(f"s_lshl_b32 s{sT0}, s{sW}, 3")
        e(f"v_mov_b32 v{T(26)}, s{sT0}")
        e(f"v_mov_b32 v{T(31)}, 0")
        self.gather(use, loads, [(T(i), i & 3) for i in range(16)], T(25), hooks)
        x = T(16)
        for k in range(4):
            e(f"v_add_f32 v{T(k)}, v{T(k)}, v{T(4 + k)}")
            e(f"v_add_f32 v{T(8 + k)}, v{T(8 + k)}, v{T(12 + k)}")
        for k in range(4):
            e(f"v_add_f32 v{T(k)}, v{T(k)}, v{T(8 + k)}")
        if layer == 1:
            e(f"v_and_b32 v{x + 1}, 0xffff0000, v{x}")
            e(f"v_lshlrev_b32 v{x}, 16, v{x}")
        self.half_sum(T(0))
        e(f"v_add_f32 v{x}, v{x}, v{T(0)}")
        e(f"v_add_f32 v{x + 1}, v{x + 1}, v{T(1)}")
        self.pair_stats(x, T(18), T(26), ST)
        self.barrier()
        mean, var, rs = self.read_stats(T(0), T(31), ST)
        e(f"v_add_f32 v{rs}, {fbits(1e-5)}, v{var}")
        e(f"v_rsq_f32 v{rs}, v{rs}")
        h = T(18)
        e(f"v_sub_f32 v{h}, v{x}, v{mean}")
        e(f"v_mul_f32 v{var}, v{var}, v{rs}")
        e(f"v_fmaak_f32 v{var}, v{var}, v{rs}, {fbits(1e-5)}")
        e(f"v_rsq_f32 v{var}, v{var}")
        e(f"v_sub_f32 v{h + 1}, v{x + 1}, v{mean}")
        e(f"v_mul_f32 v{rs}, v{rs}, v{var}")
        e(f"v_mul_f32 v{h}, v{h}, v{rs}")
        e(f"v_mul_f32 v{h + 1}, v{h + 1}, v{rs}")
        pk, y = T(28), T(20)
        e(f"v_cvt_pk_bf16_f32 v{pk}, v{h}, v{h + 1}")
        e(f"s_movk_i32 s{sT0}, 0xfff")
        e(f"s_mov_b32 s{sT1}, {TB}")
        e(f"v_and_b32 v{T(8)}, 0x7fff, v{pk}")
        e(f"v_bfe_u32 v{T(9)}, v{pk}, 16, 15")
        e(f"v_bfe_u32 v{T(10)}, v{pk}, 15, 1")
        e(f"v_lshrrev_b32 v{T(11)}, 31, v{pk}")
        for c in range(2):
            e(f"v_subrev_u32 v{T(12 + c)}, {TB_BASE}, v{T(8 + c)}")
        for c in range(2):
            e(f"v_med3_i32 v{T(12 + c)}, v{T(12 + c)}, 0, s{sT0}")
        for c in range(2):
            e(f"v_lshl_add_u32 v{T(12 + c)}, v{T(10 + c)}, 12, v{T(12 + c)}")
        for c in range(2):
            e(f"v_lshlrev_b32 v{T(12 + c)}, 2, v{T(12 + c)}")
            tok = e.vmem(f"buffer_load_dword v{y + c}, v{T(12 + c)}, {srd(SRD_WS)}, s{sT1} offen sc1")
        hooks[3]()
        e(f"s_mov_b32 s{sT0}, {self.tiny}")
        for c in range(2):
            e(f"v_add_u32 v{T(8 + c)}, -1, v{T(8 + c)}")
        e(f"v_cmp_gt_u32 {sp(sTG)}, s{sT0}, v{T(8)}")
        e(f"v_cmp_gt_u32 {sp(sTG + 2)}, s{sT0}, v{T(9)}")
        if layer == 1:
            e(f"s_lshl_b32 s{sT0}, s{sSPL}, 8")
            e(f"v_subrev_u32 v{T(24)}, s{sT0}, v{T(30)}")
            e(f"s_movk_i32 s{sT0}, 0x100")
            e(f"v_cmp_gt_u32 {sp(sTP)}, s{sT0}, v{T(24)}")
            e(f"s_lshl_b32 s{sT0}, s{sW}, 6")
            e(f"v_lshrrev_b32 v{T(25)}, 4, v{vLANE}")
            e(f"v_lshl_add_u32 v{T(25)}, v{T(25)}, 4, s{sT0}")
        e(f"s_or_b64 vcc, {sp(sTG)}, {sp(sTG + 2)}")
        e.wait_vm(tok)
        lm, lb = e.label("tiny"), e.label("mixed")
        e(f"s_cbranch_vccnz {lm}")
        e(f"{lb}:")
        self.ool.append([f"{lm}:"] + self.mixer_direct(pk, y, (sTG, sTG + 2), lb))
        self.stamp("mix")
        e(f"v_add_f32 v{x}, v{x}, v{y}")
        e(f"v_add_f32 v{x + 1}, v{x + 1}, v{y + 1}")
        if layer == 2:
            e(f"v_lshrrev_b32 v{T(29)}, 1, v{T(30)}")
            e(f"s_lshl_b32 s{sT0}, s{sL}, 10")
            e(f"v_cvt_pk_bf16_f32 v{x}, v{x}, v{x + 1}")
            e.vmem(f"buffer_store_dword v{x}, v{T(29)}, {srd(SRD_OUT)}, s{sT0} offen")
            return None
        e(f"s_mov_b64 exec, {sp(sTP)}")
        e.lds(f"ds_write_b64 v{T(24)}, {v(x, 2)} offset:{XS}")
        e("s_mov_b64 exec, -1")
        self.pair_stats(x, T(18), T(26), ST2)
        l = e.label("keep")
        e(f"s_cmp_lg_u32 s2, {1 - b}")
        e(f"s_cbranch_scc1 {l}")
        e.begin_cond()
        e(f"s_mov_b32 s{sT0}, {RC + 2048 * b}")
        e.vmem(f"buffer_store_dwordx2 {v(x, 2)}, v{T(30)}, {srd(SRD_WS)}, s{sT0} offen sc1", maybe=True)
        e.end_cond()
        e(f"{l}:")
        self.barrier()
        e.lds(f"ds_read_b128 {v(T(8), 4)}, v{T(25)} offset:{XS}")
        mean, var, rs = self.read_stats(T(0), T(31), ST2)
        wt = [e.lds(f"ds_read_b128 {v(T(12 + 4 * n), 4)}, v{vL} offset:{self.WQO + 1024 * n}") for n in range(4)]
        e(f"v_add_f32 v{rs}, {fbits(1e-5)}, v{var}")
        e(f"v_rsq_f32 v{rs}, v{rs}")
        for n in range(4):
            e(f"v_sub_f32 v{T(8 + n)}, v{T(8 + n)}, v{mean}")
        for n in range(4):
            e(f"v_mul_f32 v{T(8 + n)}, v{rs}, v{T(8 + n)}")
        return self.q_slice(2 + b, wt, True)

    def pair_stats(self, x, s1, addr, where):
        e = self.e
        e(f"v_add_f32 v{s1}, v{x}, v{x + 1}")
        e(f"v_mul_f32 v{s1 + 1}, v{x}, v{x}")
        e(f"v_fmac_f32 v{s1 + 1}, v{x + 1}, v{x + 1}")
        self.wave_reduce("v_add_f32", [s1, s1 + 1])
        e("s_mov_b32 exec_lo, 0")
        e("s_mov_b32 exec_hi, 0x80000000")
        e.lds(f"ds_write_b64 v{addr}, {v(s1, 2)} offset:{where}")
        e("s_mov_b64 exec, -1")

    def read_stats(self, r, zero, where):
        e = self.e
        e.lds(f"ds_read_b128 {v(r, 4)}, v{zero} offset:{where}")
        tok = e.lds(f"ds_read_b128 {v(r + 4, 4)}, v{zero} offset:{where + 16}")
        e.wait_lg(tok)
        e(f"v_pk_add_f32 {v(r, 2)}, {v(r, 2)}, {v(r + 2, 2)}")
        e(f"v_pk_add_f32 {v(r + 4, 2)}, {v(r + 4, 2)}, {v(r + 6, 2)}")
        e(f"v_pk_add_f32 {v(r, 2)}, {v(r, 2)}, {v(r + 4, 2)}")
        self.mean_var(r, r + 1)
        return r, r + 1, r + 2

    def mean_var(self, s1, s2):
        e = self.e
        e(f"v_mul_f32 v{s1}, {fbits(1 / 512)}, v{s1}")
        e(f"v_mul_f32 v{s2}, {fbits(1 / 512)}, v{s2}")
        e(f"v_fma_f32 v{s2}, -v{s1}, v{s1}, v{s2}")
        e(f"v_max_f32 v{s2}, 0, v{s2}")

    def step_c(self, b, hooks):
        self.ctx = f"c{b}."
        e = self.e
        T = lambda i: vT + i
        e(f"s_lshl_b32 s{sT0}, s{sSPL}, 2")
        e(f"s_add_u32 s{sT0}, s{sT0}, s{sW}")
        e(f"s_lshl_b32 s{sT0}, s{sT0}, 5")
        e(f"v_lshrrev_b32 v{T(29)}, 4, v{vLANE}")
        e(f"v_lshl_add_u32 v{T(29)}, v{T(29)}, 3, s{sT0}")
        e(f"v_lshlrev_b32 v{T(28)}, 4, v{vLANE}")
        hooks[0]()
        e.vmem(f"buffer_load_dwordx4 {v(T(12), 4)}, v{T(28)}, {srd(SRD_X)}, 0 offen offset:{1024 * b}")
        tok = e.vmem(f"buffer_load_dwordx2 {v(T(16), 2)}, v{T(29)}, {srd(SRD_X)}, 0 offen offset:{1024 * b}")
        hooks[1]()
        e.wait_vm(tok)
        for i in range(6):
            e(f"v_lshlrev_b32 v{T(2 * i)}, 16, v{T(12 + i)}")
            e(f"v_and_b32 v{T(2 * i + 1)}, 0xffff0000, v{T(12 + i)}")
        e.wait_vm(self.tok_wq)
        wt = [e.lds(f"ds_read_b128 {v(T(12 + 4 * n), 4)}, v{vL} offset:{self.WQO + 1024 * n}") for n in range(4)]
        s1, s2 = T(28), T(29)
        e(f"v_add_f32 v{s1}, v{T(0)}, v{T(1)}")
        e(f"v_mul_f32 v{s2}, v{T(0)}, v{T(0)}")
        e(f"v_fmac_f32 v{s2}, v{T(1)}, v{T(1)}")
        for i in range(2, 8):
            e(f"v_add_f32 v{s1}, v{s1}, v{T(i)}")
            e(f"v_fmac_f32 v{s2}, v{T(i)}, v{T(i)}")
        self.wave_reduce("v_add_f32", [s1, s2])
        self.mean_var(s1, s2)
        e(f"v_add_f32 v{s2}, {fbits(1e-5)}, v{s2}")
        e(f"v_rsq_f32 v{s2}, v{s2}")
        e(f"v_readlane_b32 s{sT0}, v{s1}, 63")
        e(f"v_readlane_b32 s{sT1}, v{s2}, 63")
        for n in range(4):
            e(f"v_subrev_f32 v{T(8 + n)}, s{sT0}, v{T(8 + n)}")
        for n in range(4):
            e(f"v_mul_f32 v{T(8 + n)}, s{sT1}, v{T(8 + n)}")
        return self.q_slice(b, wt, False)

    def q_slice(self, use, wt, local):
        e = self.e
        T = lambda i: vT + i
        for n in range(4):
            e(f"v_cvt_pk_bf16_f32 v{T(8 + n)}, v{T(8 + n)}, v{T(8 + n)}")
        D = T(0)
        ab = [T(4), T(28)]
        for q in range(4):
            e(f"v_and_b32 v{ab[0] + q}, v{T(8)}, v{vMK + q}")
        for n in range(4):
            if n < 3:
                for q in range(4):
                    e(f"v_and_b32 v{ab[(n + 1) & 1] + q}, v{T(9 + n)}, v{vMK + q}")
            e.wait_lg(wt[n])
            c = "0" if n == 0 else v(D, 4)
            e(f"v_mfma_f32_16x16x32_bf16 {v(D, 4)}, {v(ab[n & 1], 4)}, {v(T(12 + 4 * n), 4)}, {c}")
        e(f"v_and_b32 v{T(8)}, 15, v{vLANE}")
        e(f"v_lshlrev_b32 v{T(8)}, 5, v{T(8)}")
        e(f"v_bfe_u32 v{T(9)}, v{vLANE}, 4, 1")
        e(f"v_lshl_add_u32 v{T(8)}, v{T(9)}, 4, v{T(8)}")
        e(f"s_lshl_b32 s{sT0}, s{sW}, 9")
        e(f"v_add_u32 v{T(8)}, s{sT0}, v{T(8)}")
        e(f"s_lshl_b32 s{sT0}, s{sW}, 7")
        e(f"v_lshl_add_u32 v{T(9)}, v{vLANE}, 2, s{sT0}")
        e(f"s_lshl_b32 s{sT0}, s{sRHO}, 9")
        e(f"s_add_u32 s{sT0}, s{sT0}, {RD + (use == 1) * 256 * 512}")
        e("s_mov_b32 exec_hi, 0")
        e.lds(f"ds_write_b128 v{T(8)}, {v(D, 4)} offset:{QW}")
        self.tag_reg(T(10), use)
        self.barrier()
        for w in range(4):
            e.lds(f"ds_read_b32 v{T(4 + w)}, v{T(9)} offset:{QW + 512 * w}")
        e.wait_lg_all()
        e(f"v_add_f32 v{T(4)}, v{T(4)}, v{T(5)}")
        e(f"v_add_f32 v{T(6)}, v{T(6)}, v{T(7)}")
        e(f"v_add_f32 v{T(4)}, v{T(4)}, v{T(6)}")
        self.tag(T(4), T(10))
        tok = self.publish_local(f"buffer_store_dword v{T(4)}, v{T(9)}, {srd(SRD_WS)}, s{sT0} offen", local=local)
        e("s_mov_b32 exec_hi, -1")
        return tok

    def step_d(self, use, q, hooks):
        self.ctx = f"d{use}."
        e = self.e
        T = lambda i: vT + i
        e(f"v_bfe_u32 v{T(17)}, v{vLANE}, 2, 2")
        e(f"v_lshlrev_b32 v{T(16)}, 10, v{T(17)}")
        e(f"v_lshrrev_b32 v{T(17)}, 4, v{vLANE}")
        e(f"v_lshl_add_u32 v{T(16)}, v{T(17)}, 7, v{T(16)}")
        e(f"v_and_b32 v{T(17)}, 3, v{vLANE}")
        e(f"v_lshl_add_u32 v{T(16)}, v{T(17)}, 5, v{T(16)}")
        e(f"s_lshr_b32 s{sT1}, s{sRHO}, 3")
        e(f"s_lshl_b32 s{sT1}, s{sT1}, 12")
        e(f"s_add_u32 s{sT1}, s{sT1}, {RD + (use == 1) * 256 * 512}")
        loads = [f"buffer_load_dwordx4 {v(T(4 * i), 4)}, v{T(16)}, {srd(SRD_WS)}, s{sT1} offen offset:{o} sc1"
                 for i, o in enumerate((0, 16, 512, 528))]
        self.gather(use, loads, [(T(i), i & 3) for i in range(16)], T(17), hooks)
        for i in range(8):
            e(f"v_add_f32 v{T(i)}, v{T(i)}, v{T(8 + i)}")
        for ror in (4, 8):
            for i in range(8):
                e(f"v_add_f32_dpp v{T(i)}, v{T(i)}, v{T(i)} row_ror:{ror} row_mask:0xf bank_mask:0xf")
        for i in range(4):
            e(f"v_cvt_pk_bf16_f32 v{q + i}, v{T(2 * i)}, v{T(2 * i + 1)}")

    def prologue(self):
        e = self.e
        T = lambda i: vT + i
        e("s_cmp_ge_u32 s2, 256")
        e("s_cbranch_scc1 L_end")
        self.stamp("start")
        if self.calib:
            e("s_memrealtime s[94:95]")
        e(f"s_load_dwordx16 s[{sKA}:{sKA + 15}], s[0:1], 0")
        e(f"s_load_dwordx8 s[{sKA + 16}:{sKA + 23}], s[0:1], 64")
        e(f"s_load_dwordx2 s[{sKA + 24}:{sKA + 25}], s[0:1], 96")
        e(f"v_lshrrev_b32 v{T(0)}, 6, v0")
        e(f"v_and_b32 v{vLANE}, 63, v0")
        e(f"v_readfirstlane_b32 s{sW}, v{T(0)}")
        e(f"s_and_b32 s{sG}, s2, 7")
        e(f"s_lshr_b32 s{sR}, s2, 3")
        e(f"s_lshl_b32 s{sRHO}, s{sG}, 5")
        e(f"s_add_u32 s{sRHO}, s{sRHO}, s{sR}")
        e(f"s_and_b32 s{sSPL}, s{sRHO}, 7")
        e(f"s_lshr_b32 s{sT0}, s{sRHO}, 3")
        e(f"s_lshl_b32 s{sROT}, s{sSPL}, 3")
        e(f"s_add_u32 s{sROT}, s{sROT}, s{sT0}")
        e(f"s_lshl_b32 s{sT0}, s{sRHO}, 18")
        e(f"s_lshl_b32 s{sT1}, s{sW}, 10")
        e(f"s_add_u32 s{sT0}, s{sT0}, s{sT1}")
        e(f"v_and_b32 v{T(0)}, 3, v{vLANE}")
        e(f"v_bfe_u32 v{T(1)}, v{vLANE}, 2, 2")
        e(f"v_lshrrev_b32 v{T(2)}, 4, v{vLANE}")
        e(f"v_lshl_add_u32 v{vK}, v{T(0)}, 4, s{sT0}")
        e(f"v_lshl_add_u32 v{vK}, v{T(1)}, 8, v{vK}")
        e(f"v_lshl_add_u32 v{vK}, v{T(2)}, 6, v{vK}")
        e(f"v_lshl_add_u32 v{vV}, v{vLANE}, 4, s{sT0}")
        e(f"s_mul_i32 s{sLB}, s{sW}, {self.wave_lds}")
        e(f"s_add_u32 s{sLB}, s{sLB}, {SCRATCH}")
        e(f"v_lshl_add_u32 v{vL}, v{vLANE}, 4, s{sLB}")
        ptr = lambda i: sKA + 2 * i

        def mk(base, i, nbytes):
            e(f"s_mov_b32 s{base}, s{ptr(i)}")
            e(f"s_mov_b32 s{base + 1}, s{ptr(i) + 1}")
            e(f"s_mov_b32 s{base + 2}, {nbytes}")
            e(f"s_mov_b32 s{base + 3}, 0x20000")

        e("s_waitcnt lgkmcnt(0)")
        mk(SRD_K, 1, 0x8000000)
        self.burst(self.depth_a)
        e(f"s_load_dword s{sB2}, s[{ptr(9)}:{ptr(9) + 1}], 0")
        e(f"s_add_u32 s{sT0}, s{ptr(12)}, {NONCE}")
        e(f"s_addc_u32 s{sT1}, s{ptr(12) + 1}, 0")
        e(f"s_mov_b32 s{sM}, s{sT0}")
        e(f"s_mov_b32 s{sM + 1}, s{sT1}")
        mk(SRD_WS, 12, 0x20000000)
        mk(SRD_V, 2, 0x8000000)
        mk(SRD_X, 0, 2048)
        mk(SRD_WQ, 3, 0x400000)
        mk(SRD_WO, 4, 0x400000)
        mk(SRD_W1, 6, 2752)
        mk(SRD_B1, 7, 2752)
        mk(SRD_W2, 8, 2752)
        mk(SRD_OUT, 10, 2048)
        e(f"s_mov_b32 s{sTP}, s{sM}")
        e(f"s_mov_b32 s{sTP + 1}, s{sM + 1}")
        e(f"s_load_dword s{sCNT}, {sp(sTP)}, 0")
        e(f"s_lshl_b32 s{sT0}, s{sSPL}, 2")
        e(f"s_add_u32 s{sT0}, s{sT0}, s{sW}")
        e(f"s_lshl_b32 s{sT0}, s{sT0}, 17")
        e(f"s_lshr_b32 s{sT1}, s{sRHO}, 3")
        e(f"s_lshl_b32 s{sT1}, s{sT1}, 8")
        e(f"s_add_u32 s{sT0}, s{sT0}, s{sT1}")
        e(f"v_and_b32 v{T(3)}, 15, v{vLANE}")
        e(f"v_lshlrev_b32 v{T(3)}, 4, v{T(3)}")
        e(f"v_lshl_add_u32 v{T(3)}, v{T(2)}, 15, v{T(3)}")
        for n in range(4):
            e(f"s_add_u32 m0, s{sLB}, {self.WQO + 1024 * n}")
            e(f"s_add_u32 s{sT1}, s{sT0}, {8192 * n}")
            self.tok_wq = e.vmem(f"buffer_load_dwordx4 v{T(3)}, {srd(SRD_WQ)}, s{sT1} offen {self.wq_pol} lds")
        e("s_waitcnt lgkmcnt(0)")
        e(f"s_lshl_b32 s{sB2}, s{sB2}, 16")
        e(f"s_add_u32 s{sN}, s{sCNT}, 1")
        e(f"s_lshl_b32 s{sTB}, s{sN}, 2")
        e(f"s_mov_b32 s{sFF}, 0xff")
        if self.codepf:
            e(f"s_getpc_b64 {sp(sTP)}")
            e("L_pc:")
            e(f"s_lshl_b32 s{sT0}, s{sR}, 2")
            e(f"s_add_u32 s{sT0}, s{sT0}, s{sW}")
            e(f"s_lshl_b32 s{sT0}, s{sT0}, 10")
            e(f"v_lshl_add_u32 v{T(10)}, v{vLANE}, 4, s{sT0}")
            e(f"v_mov_b32 v{T(13)}, s{sTP + 1}")
            e(f"v_add_co_u32 v{T(12)}, vcc, s{sTP}, v{T(10)}")
            e(f"v_addc_co_u32 v{T(13)}, vcc, 0, v{T(13)}, vcc")
            e(f"s_mov_b32 s{sT1}, L_code_end-L_pc-16")
            e(f"v_cmp_gt_u32 vcc, s{sT1}, v{T(10)}")
            e(f"s_and_saveexec_b64 {sp(sTP)}, vcc")
            e("s_cbranch_execz L_pf_done")
            e.begin_cond()
            e.vmem(f"global_load_dwordx4 {v(T(16), 4)}, {v(T(12), 2)}, off", maybe=True)
            e.end_cond()
            e("L_pf_done:")
            e("s_mov_b64 exec, -1")
        e(f"s_mov_b32 s{sHI}, 0")
        e(f"s_mov_b32 s{sHI + 1}, -1")
        e(f"s_mov_b32 s{sODD}, 0xaaaaaaaa")
        e(f"s_mov_b32 s{sODD + 1}, 0xaaaaaaaa")
        for c in range(4):
            for hh in range(2):
                e(f"s_mov_b32 s{sQ4 + 2 * c + hh}, {0x11111111 << c}")
                e(f"s_mov_b32 s{sBK + 2 * c + hh}, {0x000f000f << (4 * c)}")
        e(f"s_cmp_eq_u32 s{sW}, 0")
        e(f"s_cselect_b32 s{sPUBHI}, -1, 0")
        self.lane_masks((0, 1, 2, 3))
        e(f"s_getreg_b32 s{sXCC}, hwreg(HW_REG_XCC_ID, 0, 4)")
        e(f"s_lshl_b32 s{sWOB}, s{sG}, 2")
        e(f"s_add_u32 s{sWOB}, s{sWOB}, s{sW}")
        e(f"s_lshl_b32 s{sWOB}, s{sWOB}, 17")
        e(f"s_lshl_b32 s{sT1}, s{sR}, 5")
        e(f"s_add_u32 s{sWOB}, s{sWOB}, s{sT1}")

        def say_die():
            e(f"s_xor_b32 s{sT0}, s{sN}, 0x9e3779b9")
            e(f"v_mov_b32 v{T(4)}, s{sT0}")
            e(f"v_mov_b32 v{T(5)}, s{sXCC}")
            e(f"s_lshl_b32 s{sT0}, s{sRHO}, 3")
            e(f"s_add_u32 s{sT0}, s{sT0}, {RX}")
            e(f"v_mov_b32 v{T(6)}, s{sT0}")
            e("s_mov_b64 exec, 1")
            e.vmem(f"buffer_store_dwordx2 {v(T(4), 2)}, v{T(6)}, {srd(SRD_WS)}, 0 offen sc1", maybe=True)
            e("s_mov_b64 exec, -1")

        self.wave0(say_die)

    def load_wo(self, n):
        e = self.e
        e(f"s_add_u32 m0, s{sLB}, {self.WOO + 1024 * n}")
        e(f"s_add_u32 s{sOFF}, s{sWOB}, {32768 * n}")
        tmp = vMK
        e(f"v_lshrrev_b32 v{tmp}, 1, v{vLANE}")
        e(f"v_lshlrev_b32 v{tmp}, 10, v{tmp}")
        e(f"v_and_b32 v{tmp + 1}, 1, v{vLANE}")
        e(f"v_lshl_add_u32 v{tmp}, v{tmp + 1}, 4, v{tmp}")
        self.tok_wo = e.vmem(f"buffer_load_dwordx4 v{tmp}, {srd(SRD_WO)}, s{sOFF} offen {self.wo_pol} lds")
        self.lane_masks((0, 1))

    def lane_masks(self, which):
        e = self.e
        for q in which:
            e(f"v_and_b32 v{vMK + q}, 7, v{vLANE}")
            e(f"v_subrev_u32 v{vMK + q}, {2 * q}, v{vMK + q}")
            e(f"v_cmp_gt_u32 {sp(sTP)}, 2, v{vMK + q}")
            e(f"v_lshlrev_b32 v{vMK + q}, 4, v{vMK + q}")
            e(f"s_mov_b32 s{sOFF}, 0xffff")
            e(f"v_lshlrev_b32_e64 v{vMK + q}, v{vMK + q}, s{sOFF}")
            e(f"v_cndmask_b32_e64 v{vMK + q}, 0, v{vMK + q}, {sp(sTP)}")

    def locality(self, hooks):
        self.ctx = "x."
        e = self.e
        T = lambda i: vT + i
        e(f"v_and_b32 v{T(2)}, 31, v{vLANE}")
        e(f"v_lshlrev_b32 v{T(2)}, 3, v{T(2)}")
        e(f"s_lshl_b32 s{sT1}, s{sG}, 8")
        e(f"s_add_u32 s{sT1}, s{sT1}, {RX}")
        e(f"s_xor_b32 s{sT0}, s{sN}, 0x9e3779b9")
        ld = f"buffer_load_dwordx2 {v(T(0), 2)}, v{T(2)}, {srd(SRD_WS)}, s{sT1} offen sc1"
        tok = e.vmem(ld)
        hooks[1]()
        e.wait_vm(tok)
        self.retry([ld], [f"v_cmp_ne_u32 vcc, s{sT0}, v{T(0)}"])
        e(f"v_cmp_ne_u32 vcc, s{sXCC}, v{T(1)}")
        e("s_cmp_eq_u64 vcc, 0")
        e(f"s_cselect_b32 s{sFAST}, {0 if self.force_slow else 1}, 0")

    def warm_slots(self):
        e = self.e
        T = lambda i: vT + i
        self.tag_reg(T(0), 0x80)
        e(f"v_lshlrev_b32 v{T(1)}, 2, v{vLANE}")
        e(f"s_mul_i32 s{sT0}, s{sRHO}, 640")
        e(f"s_lshl_b32 s{sT1}, s{sW}, 7")
        e(f"s_add_u32 s{sT0}, s{sT0}, s{sT1}")
        e(f"s_add_u32 s{sT0}, s{sT0}, {RA}")
        e(f"s_cmp_eq_u32 s{sW}, 3")
        e(f"s_cselect_b32 exec_hi, -1, 0")
        self.publish_local(f"buffer_store_dword v{T(0)}, v{T(1)}, {srd(SRD_WS)}, s{sT0} offen")
        e(f"s_lshl_b32 s{sT0}, s{sG}, 11")
        e(f"s_lshl_b32 s{sT1}, s{sR}, 6")
        e(f"s_add_u32 s{sT0}, s{sT0}, s{sT1}")
        e(f"s_lshl_b32 s{sT1}, s{sW}, 14")
        e(f"s_add_u32 s{sT0}, s{sT0}, s{sT1}")
        e(f"s_add_u32 s{sT0}, s{sT0}, {RB}")
        e("s_mov_b64 exec, 0xffff")
        e.vmem(f"buffer_store_dword v{T(0)}, v{T(1)}, {srd(SRD_WS)}, s{sT0} offen sc1")
        e("s_mov_b64 exec, -1")

    def build(self):
        e = self.e
        T = lambda i: vT + i
        K0 = [("K", 0, t) for t in range(64)]
        V0 = [("V", 0, t) for t in range(64)]
        K1 = [("K", 1, t) for t in range(64)]
        V1 = [("V", 1, t) for t in range(64)]
        self.items = K0 + V0 + K1 + V1
        for t in range(64):
            self.home[K0[t]] = self.reg_home(t)
            if t < self.nhome:
                self.home[V0[t]] = ("l", self.HOME + 1024 * t)
            else:
                self.home[V0[t]] = self.reg_home(64 + t - self.nhome)
        self.next_home = 0
        self.freed = 0
        nop = lambda: None

        def later(k):
            def before():
                self.stream(k)
                self.barrier()

            return (before, lambda: self.stream(self.cur_depth() - 1), nop, nop)

        def hop(cfg, tok):
            def before():
                self.burst(cfg[0])
                e.wait_vm(tok)
                self.barrier()

            return (before, lambda: self.burst(cfg[1]), lambda: self.burst(cfg[2]), lambda: self.burst(cfg[3]))

        self.prologue()
        self.mark("prologue")
        self.stream(self.c_at - self.issued)
        self.step_c(0, later(0))
        self.step_c(1, later(0))
        self.build_table()
        self.mark("table")
        self.stream(self.x_at - self.issued)
        self.locality(later(0))
        if self.prewrite:
            self.warm_slots()
        self.step_d(0, T(28), later(0))
        self.mark("q1")
        QM, ACC, S = T(0), T(16), T(28)
        R, O, AB, STG = T(0), T(16), T(8), [T(24), T(28)]
        self.mask_q(T(28), QM)
        self.qk_fast(K0, QM, S, ACC, [], list(range(16)), arrive=self.arrive)
        self.softmax(S, R, T(8))
        self.mode = "W"
        self.pv(V0, R, O, AB, STG, arrive=self.arrive)
        self.mark("pv0")
        pace, self.pace = self.pace, 1 << 30
        w = self.win
        tok = self.step_p(0, O)
        tok = self.step_a(0, hop(w[0], tok))
        self.mark("a0")
        tok = self.step_b(0, 0, 1, hop(w[1], tok))
        self.mark("b0")
        self.step_d(2, T(28), hop(w[2], tok))
        self.mark("d0")
        self.pace = pace
        self.n_ring = self.issued - 128
        self.mode = "C"
        self.depth_now = self.depth_s
        self.mask_q(T(28), QM)

        def free_k(t):
            self.freed = t + 1
            if t < self.depth_s and self.in_flight() < self.depth_s:
                self.burst(1)

        self.qk_fast(K0, QM, S, ACC, [], list(range(16)), hook=free_k)
        self.softmax(S, R, T(8))
        self.pv(V0, R, O, AB, STG)
        self.freed = 64 + self.nvslot
        self.mark("pass2_0")
        self.step_p(1, O)
        self.step_a(1, later(self.shadow[0]))
        self.mark("a1")
        self.step_d(1, T(28), later(self.shadow[1]))
        spare = [self.nwork + 4 * (k - 64) for k in range(128 - self.n_ring, 64 + self.nvslot)]
        for t in range(len(spare) - 3):
            r = spare.pop()
            e.lds(f"ds_read_b128 {v(r, 4)}, v{vL} offset:{self.home[K1[t]][1]}")
            self.home[K1[t]] = ("r", v(r, 4))
        self.mask_q(T(28), QM)
        e.wait_lg_all()
        self.qk_fast(K1, QM, S, ACC, spare, list(range(16)), arrive=self.arrive)
        self.depth_now = None
        self.softmax(S, R, T(8))
        self.pv(V1, R, O, AB, STG, arrive=self.arrive)
        self.mark("pv1")
        self.pace = 1 << 30
        z = (0, 0, 0, 0)
        tok = self.step_p(2, O)
        tok = self.step_a(2, hop(z, tok))
        tok = self.step_b(2, 1, 1, hop(z, tok))
        self.step_d(3, T(28), hop(z, tok))
        self.mark("d1")
        self.mask_q(T(28), QM)
        self.qk_fast(K1, QM, S, ACC, spare, list(range(16)))
        self.softmax(S, R, T(8))
        self.pv(V1, R, O, AB, STG)
        self.mark("pass2_1")
        tok = self.step_p(3, O)
        tok = self.step_a(3, hop(z, tok))
        self.mark("a3")
        e("s_cmp_gt_u32 s2, 1")
        e("s_cbranch_scc1 L_done")
        self.step_b(3, 1, 2, hop(z, tok))
        self.mark("end")
        l = e.label("nonce")
        e(f"s_or_b32 s{sT0}, s2, s{sW}")
        e(f"s_cmp_lg_u32 s{sT0}, 0")
        e(f"s_cbranch_scc1 {l}")
        e(f"v_mov_b32 v{T(0)}, s{sN}")
        e(f"v_mov_b32 v{T(1)}, {NONCE}")
        e("s_mov_b64 exec, 1")
        e(f"buffer_store_dword v{T(0)}, v{T(1)}, {srd(SRD_WS)}, 0 offen sc1")
        e("s_mov_b64 exec, -1")
        e(f"{l}:")
        e("L_done:")
        self.epilogue()

    def epilogue(self):
        e = self.e
        self.dump_stamps()
        if self.calib:
            e(f"s_add_u32 s94, s94, {self.calib * 100}")
            e("L_cal:")
            e("s_memrealtime s[96:97]")
            e("s_waitcnt lgkmcnt(0)")
            e("s_sub_u32 s96, s96, s94")
            e("s_cmp_lt_i32 s96, 0")
            e("s_cbranch_scc1 L_cal")
        e("L_end:")
        e("s_endpgm")
        for blk in self.ool:
            for l in blk:
                e(l)
        e("L_code_end:")

    def text(self):
        self.build()
        head = [l for l in open(REF).read().split("\n") if l.startswith(";") and "@launch" not in l]
        body = self.e.finish()
        out = "\n".join(head) + "\n"
        out += "; @launch grid=(256,1,1) block=(256,1,1) lds=163840\n"
        out += '.amdgcn_target "amdgcn-amd-amdhsa--gfx950"\n.text\n'
        out += f".globl {KNAME}\n.p2align 8\n.type {KNAME},@function\n{KNAME}:\n"
        out += body
        out += '.section .rodata,"a"\n.p2align 6\n'
        out += f".amdhsa_kernel {KNAME}\n"
        out += "  .amdhsa_next_free_vgpr 512\n  .amdhsa_next_free_sgpr 102\n  .amdhsa_accum_offset 256\n"
        out += "  .amdhsa_group_segment_fixed_size 0\n  .amdhsa_kernarg_size 104\n"
        out += "  .amdhsa_user_sgpr_count 2\n  .amdhsa_user_sgpr_kernarg_segment_ptr 1\n"
        out += "  .amdhsa_system_sgpr_workgroup_id_x 1\n.end_amdhsa_kernel\n"
        return out


if __name__ == "__main__":
    cfg = eval(sys.argv[2]) if len(sys.argv) > 2 else {}
    g = Gen(**cfg)
    open(sys.argv[1], "w").write(g.text())
    print("ring", g.ring, "n_ring", g.n_ring, "items", len(g.items), "instructions", len(g.e.ins))
```

```python
import math
import re
import struct
import sys

from asmlib import Emitter

KNAME = "interleave_layers__gqa_block_cached__mixer_token_mlp__decode_kernel"
REF = "interleave_layers__gqa_block_cached__mixer_token_mlp__decode.s.ref"


def fbits(x):
    return "0x%08x" % struct.unpack("<I", struct.pack("<f", x))[0]


RA = 0
RD = RA + 256 * 640
RB = RD + 2 * 256 * 512
RC = RB + 4 * 8 * 2048
TB = RC + 2 * 2048
RX = TB + 8192 * 4
NONCE = RX + 256 * 8
XCH_END = NONCE + 128
STAMP_OFF = 0x10000000
STAMP_REGS = [94, 95, 96, 97, 98, 99, 100, 101, 92, 93, 0, 1] + list(range(24, 32))
TAGC = (0, 0x35, 0x6a, 0x9f)
TB_EXP = 100
TB_BASE = TB_EXP << 7
GELU_K = 2.0 * math.sqrt(2.0 / math.pi) * math.log2(math.e)

OW = QW = TW = 0
MLW = ST = 2048
ST2, YW, XS, OBF = 2112, 2176, 2432, 2688
SCRATCH = 4096

sW = 3
SRD_K, SRD_V, SRD_WS, SRD_X, SRD_WQ, SRD_WO, SRD_W1, SRD_B1, SRD_W2, SRD_OUT = (
    8, 12, 16, 20, 24, 28, 32, 36, 40, 44)
sTG = 48
sROT, sOFF, sG, sR, sRHO, sFAST, sLB, sB2, sPUBHI, sCNT, sXCC, sT0, sT1, sM, sL, sSPL = (
    4, 5, 6, 7, 52, 53, 54, 55, 56, 57, 58, 59, 60, 61, 62, 63)
sHI = 64
sODD = 66
sQ4 = 68
sBK = 76
sTP = 84
sN = 86
sFF = 87
sSTMP = 88
sTB = 90
sWOB = 91
sKA = 68

vLANE, vK, vV, vL = 0, 1, 2, 3
vMK = 4
vT = 8


def srd(b):
    return f"s[{b}:{b + 3}]"


def v(a, n=1):
    return f"v{a}" if n == 1 else f"v[{a}:{a + n - 1}]"


def sp(a):
    return f"s[{a}:{a + 1}]"


class Gen:
    def __init__(self, depth=6, pace=250, stamps=False, spin=1 << 16,
                 win=((0, 3, 0, 0), (0, 4, 0, 5), (0, 4, 0, 0)),
                 wo_pol="nt", wq_pol="nt", force_slow=False, depth_a=8, depth_a_until=64, depth_s=9,
                 shadow=(10, 0), c_at=14, x_at=40, wo_at=1, calib=0, codepf=True, prewrite=False,
                 tiny=TB_BASE, tb_warm=104, mark_at=(), skip=(), wo_split=16, after_store=0, kv_pol="nt", wo_stag=False):
        self.e = Emitter()
        self.depth = depth
        self.nwork = 40
        self.pace = pace
        self.stamps = stamps
        self.spin = spin
        self.win = win
        self.depth_a = depth_a
        self.depth_a_until = depth_a_until
        self.depth_s = depth_s
        self.depth_now = None
        self.wo_pol = wo_pol
        self.wq_pol = wq_pol
        self.force_slow = force_slow
        self.shadow = shadow
        self.c_at = c_at
        self.x_at = x_at
        self.wo_at = wo_at
        self.calib = calib
        self.codepf = codepf
        self.prewrite = prewrite
        self.tiny = tiny
        self.mark_at = mark_at
        self.wo_split = wo_split
        self.kv_pol = kv_pol
        self.wo_stag = wo_stag
        self.after_store = after_store
        self.wo_reg = None
        self.skip = skip
        self.tb_warm = tb_warm
        self.nvslot = (256 - self.nwork) // 4
        self.nhome = 128 - 64 - self.nvslot
        self.wave_lds = (163840 - SCRATCH) // 4
        self.WQO, self.WOO, self.HOME = 0, 4096, 8192
        self.RING = self.HOME + self.nhome * 1024
        self.ring = (self.wave_lds - self.RING) // 1024
        self.ool = []
        self.nstamp = 0
        self.stamp_names = []
        self.last_issue = 0
        self.items = []
        self.issued = 0
        self.toks = {}
        self.home = {}
        self.mode = "A"
        self.ctx = ""
        self.wo_done = 0
        self.tok_wo = None

    def T(self, i, n=1):
        assert i + n <= 32, (i, n)
        return v(vT + i, n)

    def mark(self, name):
        self.ctx = ""
        self.stamp(name)

    def stamp(self, name):
        if not self.stamps:
            return
        name = self.ctx + name
        if name != "start" and not re.fullmatch(self.stamps, name):
            return
        e = self.e
        e(f"s_memrealtime {sp(sSTMP)}")
        e.wait_lg_all()
        e(f"s_mov_b32 s{STAMP_REGS[self.nstamp]}, s{sSTMP}")
        self.stamp_names.append(name)
        self.nstamp += 1

    def dump_stamps(self):
        if not self.stamps:
            return
        e = self.e
        for k in range(self.nstamp):
            e(f"v_writelane_b32 v{vT}, s{STAMP_REGS[k]}, {k}")
        e(f"s_lshl_b32 s{sT0}, s2, 2")
        e(f"s_add_u32 s{sT0}, s{sT0}, s{sW}")
        e(f"s_lshl_b32 s{sT0}, s{sT0}, 7")
        e(f"s_add_u32 s{sT0}, s{sT0}, {STAMP_OFF}")
        e(f"v_lshlrev_b32 v{vT + 1}, 2, v{vLANE}")
        e("s_mov_b32 exec_hi, 0")
        e(f"buffer_store_dword v{vT}, v{vT + 1}, {srd(SRD_WS)}, s{sT0} offen")

    def cycles(self):
        t = 0
        for i in self.e.ins[self.last_issue:]:
            t += 16 if i.mfma else 8 if (i.trans or i.op.startswith('v_pk_')) else 4 * i.states()
        return t

    def reg_home(self, k):
        if k < 64:
            return ("r", f"a[{4 * k}:{4 * k + 3}]")
        b = self.nwork + 4 * (k - 64)
        assert b + 3 < 256
        return ("r", v(b, 4))

    def cur_depth(self):
        if self.depth_now:
            return self.depth_now
        return self.depth_a if self.issued < self.depth_a_until else self.depth

    def issue(self, paced=True):
        e = self.e
        if self.issued >= len(self.items):
            return False
        key = self.items[self.issued]
        kind, b, t = key
        if key not in self.home:
            if self.mode == "W":
                return False
            self.home[key] = self.reg_home(self.next_home)
            assert self.next_home < self.freed, "home not free yet"
            self.next_home += 1
        if paced:
            self.drain(self.cur_depth() - 1)
        if b == 1 and t == 0:
            r = vK if kind == "K" else vV
            e(f"v_add_u32 v{r}, 0x4000000, v{r}")
        hk, hv = self.home[key]
        e(f"s_add_u32 s{sOFF}, s{sROT}, {t}")
        if hk == "l":
            e(f"s_add_u32 m0, s{sLB}, {hv}")
        e(f"s_and_b32 s{sOFF}, s{sOFF}, 63")
        e(f"s_lshl_b32 s{sOFF}, s{sOFF}, 12")
        va, sr = (vK, SRD_K) if kind == "K" else (vV, SRD_V)
        if hk == "l":
            self.toks[key] = e.vmem(f"buffer_load_dwordx4 v{va}, {srd(sr)}, s{sOFF} offen {self.kv_pol} lds")
        else:
            self.toks[key] = e.vmem(f"buffer_load_dwordx4 {hv}, v{va}, {srd(sr)}, s{sOFF} offen {self.kv_pol}")
        self.issued += 1
        self.last_issue = len(e.ins)
        if self.issued in self.mark_at:
            ctx, self.ctx = self.ctx, ""
            self.stamp(f"n{self.issued}")
            self.ctx = ctx
        if self.issued == self.tb_warm:
            self.warm_table()
        if self.wo_reg is not None and self.wo_done < self.wo_split and self.issued % self.wo_at == 0:
            self.load_wo(self.wo_done)
            self.wo_done += 1
        return True

    def drain(self, k):
        if self.issued > k:
            self.e.wait_vm(self.toks[self.items[self.issued - k - 1]])

    def in_flight(self):
        live = {id(t) for t, _ in self.e.vm}
        return sum(1 for key in self.items[:self.issued] if id(self.toks[key]) in live)

    def stream(self, k):
        for _ in range(k):
            self.issue()

    def burst(self, k):
        for _ in range(k):
            self.issue(paced=False)

    def tick(self):
        if self.cycles() >= self.pace:
            self.stream(1)

    def arrive(self, key):
        n = self.items.index(key)
        while self.issued < min(n + self.cur_depth(), len(self.items)):
            if not self.issue():
                break
        assert self.issued > n
        self.e.wait_vm(self.toks[key])

    def mask_q(self, q, qm):
        for m in range(4):
            for i in range(4):
                self.e(f"v_cndmask_b32_e64 v{qm + 4 * m + i}, 0, v{q + i}, {sp(sBK + 2 * m)}")

    def qk_fast(self, keys, qm, S, acc, stage, groups, hook=None, arrive=None):
        e = self.e
        order = [4 * u + m for u in groups for m in range(4)]
        lds_q = [t for t in order if self.home.get(keys[t], ("r",))[0] == "l"]
        staged = {}
        free = list(stage)

        def prefetch():
            while lds_q and free:
                t = lds_q.pop(0)
                if arrive:
                    arrive(keys[t])
                r = free.pop(0)
                staged[t] = (r, e.lds(f"ds_read_b128 {v(r, 4)}, v{vL} offset:{self.home[keys[t]][1]}"))

        for gi, u in enumerate(groups + [None, None]):
            ops = []
            if gi >= 2:
                pu = groups[gi - 2]
                a = acc + 4 * ((gi - 2) % 3)
                dp = lambda r: f"quad_perm:[{r},{r},{r},{r}] row_mask:0xf bank_mask:0xf"
                ops = [f"v_mov_b32_dpp v{a}, v{a} {dp(0)}",
                       f"v_mov_b32_dpp v{a + 2}, v{a + 2} {dp(2)}",
                       f"v_add_f32_dpp v{a}, v{a + 1}, v{a} {dp(1)}",
                       f"v_add_f32_dpp v{a + 2}, v{a + 3}, v{a + 2} {dp(3)}",
                       f"v_add_f32 v{a}, v{a}, v{a + 2}",
                       f"v_cndmask_b32_e64 v{S + (pu >> 2)}, v{S + (pu >> 2)}, v{a}, {sp(sQ4 + 2 * (pu & 3))}"]
            if u is None:
                for o in ops:
                    e(o)
                continue
            a = acc + 4 * (gi % 3)
            for m in range(4):
                t = 4 * u + m
                prefetch()
                if t in staged:
                    r, tok = staged.pop(t)
                    e.wait_lg(tok)
                    src = v(r, 4)
                else:
                    r = None
                    if arrive:
                        arrive(keys[t])
                    src = self.home[keys[t]][1]
                c = "0" if m == 0 else v(a, 4)
                e(f"v_mfma_f32_16x16x32_bf16 {v(a, 4)}, {src}, {v(qm + 4 * m, 4)}, {c}")
                if r is not None:
                    free.append(r)
                if hook:
                    hook(t)
                if ops:
                    e(ops.pop(0))
                    if m == 3:
                        e(ops.pop(0))
                        e(ops.pop(0))
            self.tick()

    def wave_reduce(self, op, regs):
        e = self.e
        for ctl in ("quad_perm:[1,0,3,2] row_mask:0xf", "quad_perm:[2,3,0,1] row_mask:0xf",
                    "row_half_mirror row_mask:0xf", "row_mirror row_mask:0xf",
                    "row_bcast:15 row_mask:0xa", "row_bcast:31 row_mask:0xc"):
            for r in regs:
                e(f"{op}_dpp v{r}, v{r}, v{r} {ctl} bank_mask:0xf")

    def softmax(self, S, R, tm):
        e = self.e
        c = 128 ** -0.5 * math.log2(math.e)
        e(f"v_max3_f32 v{tm}, v{S}, v{S + 1}, v{S + 2}")
        e(f"v_max_f32 v{tm}, v{tm}, v{S + 3}")
        self.wave_reduce("v_max_f32", [tm])
        e(f"v_mul_f32 v{tm}, {fbits(c)}, v{tm}")
        e(f"v_mov_b32 v{tm + 1}, {fbits(c)}")
        e(f"v_readlane_b32 s{sM}, v{tm}, 63")
        for i in range(4):
            e(f"v_fma_f32 v{S + i}, v{S + i}, v{tm + 1}, -s{sM}")
        for i in range(4):
            e(f"v_exp_f32 v{S + i}, v{S + i}")
        for i in range(4):
            e(f"v_cvt_pk_bf16_f32 v{R + 2 * i}, v{S + i}, v{S + i}")
        for i in range(4):
            e(f"v_mov_b32 v{R + 2 * i + 1}, v{R + 2 * i}")
        e(f"v_add_f32 v{tm}, v{S}, v{S + 1}")
        for i in range(4):
            e(f"v_mov_b32_dpp v{R + 2 * i}, v{R + 2 * i + 1} row_shr:4 row_mask:0xf bank_mask:0xa")
        e(f"v_add_f32 v{tm + 1}, v{S + 2}, v{S + 3}")
        for i in range(4):
            e(f"v_mov_b32_dpp v{R + 2 * i + 1}, v{R + 2 * i + 1} row_shl:4 row_mask:0xf bank_mask:0x5")
        e(f"v_add_f32 v{tm}, v{tm}, v{tm + 1}")
        self.wave_reduce("v_add_f32", [tm])
        e(f"v_readlane_b32 s{sL}, v{tm}, 63")

    def pv(self, keys, R, O, AB, stage, hook=None, arrive=None):
        e = self.e
        steps = [(u, p) for u in range(16) for p in range(2)]
        order = [t for (u, p) in steps for t in (4 * u + p, 4 * u + p + 2)]
        lds_q = [t for t in order if self.home.get(keys[t], ("r",))[0] == "l"]
        staged = {}
        free = list(stage)

        def prefetch():
            while lds_q and free:
                t = lds_q.pop(0)
                if arrive:
                    arrive(keys[t])
                r = free.pop(0)
                staged[t] = (r, e.lds(f"ds_read_b128 {v(r, 4)}, v{vL} offset:{self.home[keys[t]][1]}"))

        def build(k):
            u, p = steps[k]
            c = u & 3
            a = AB + 4 * (k & 1)
            return [f"v_and_b32_dpp v{a + q}, v{R + 2 * (u >> 2) + p}, v{vMK + q} "
                    f"quad_perm:[{c},{c},{c},{c}] row_mask:0xf bank_mask:0xf" for q in range(4)]

        prefetch()
        for o in build(0):
            e(o)
        for k, (u, p) in enumerate(steps):
            nxt = build(k + 1) if k + 1 < len(steps) else []
            a = AB + 4 * (k & 1)
            for half, t in enumerate((4 * u + p, 4 * u + p + 2)):
                for o in nxt[2 * half:2 * half + 2]:
                    e(o)
                prefetch()
                if t in staged:
                    r, tok = staged.pop(t)
                    e.wait_lg(tok)
                    src = v(r, 4)
                else:
                    r = None
                    if arrive:
                        arrive(keys[t])
                    src = self.home[keys[t]][1]
                o_ = O + 4 * half
                c = "0" if k == 0 else v(o_, 4)
                e(f"v_mfma_f32_16x16x32_bf16 {v(o_, 4)}, {v(a, 4)}, {src}, {c}")
                if r is not None:
                    free.append(r)
                if hook:
                    hook(t)
            self.tick()

    def tag_reg(self, dst, use):
        e = self.e
        e(f"s_add_u32 s{sTG}, s{sTB}, {use}")
        e(f"v_and_b32 v{dst}, 3, v{vLANE}")
        e(f"v_mul_u32_u24 v{dst}, {TAGC[1]}, v{dst}")
        e(f"v_add_u32 v{dst}, s{sTG}, v{dst}")

    def tag(self, val, tg):
        self.e(f"v_bfi_b32 v{val}, s{sFF}, v{tg}, v{val}")

    def gather(self, use, loads, regs, tmp, hooks):
        e = self.e
        tok = None
        for k in range(4):
            e(f"s_add_u32 s{sTG + k}, s{sTB}, {use + TAGC[k]}")
            e(f"s_and_b32 s{sTG + k}, s{sTG + k}, 0xff")
        self.stamp("prep")
        hooks[0]()
        for l in loads:
            if l.startswith("buffer_"):
                tok = e.vmem(l)
            else:
                e(l)
        self.stamp("iss")
        hooks[1]()
        e.wait_vm(tok)
        self.stamp("first")
        chk = [f"v_xor_b32 v{r}, s{sTG + k}, v{r}" for r, k in regs]
        rs = [r for r, _ in regs]
        chk.append(f"v_or3_b32 v{tmp}, v{rs[0]}, v{rs[1]}, v{rs[2]}")
        rs = rs[3:]
        while len(rs) >= 2:
            chk.append(f"v_or3_b32 v{tmp}, v{tmp}, v{rs[0]}, v{rs[1]}")
            rs = rs[2:]
        if rs:
            chk.append(f"v_or_b32 v{tmp}, v{tmp}, v{rs[0]}")
        chk.append(f"v_and_b32 v{tmp}, 0xff, v{tmp}")
        chk.append(f"v_cmp_ne_u32 vcc, 0, v{tmp}")
        self.retry(loads, chk)
        hooks[2]()

    def retry(self, loads, chk):
        e = self.e
        lr, ll, ok = e.label("retry"), e.label("rloop"), e.label("ok")
        cnt = []
        name = self.ctx + "#retry"
        if self.stamps and re.fullmatch(self.stamps, name):
            r = STAMP_REGS[self.nstamp]
            e(f"s_mov_b32 s{r}, 0")
            cnt = [f"s_add_u32 s{r}, s{r}, 1"]
            self.stamp_names.append(name)
            self.nstamp += 1
        for c in chk:
            e(c)
        e(f"s_cbranch_vccnz {lr}")
        e(f"{ok}:")
        self.stamp("got")
        lx = e.label("rdone")
        blk = [f"{lr}:", f"s_mov_b32 s{sCNT}, {self.spin}", f"{ll}:", "s_mov_b64 exec, vcc"]
        blk += cnt + list(loads) + ["s_waitcnt vmcnt(0)"] + chk
        blk += [f"s_cbranch_vccz {lx}", f"s_sub_u32 s{sCNT}, s{sCNT}, 1", f"s_cmp_lg_u32 s{sCNT}, 0",
                f"s_cbranch_scc1 {ll}", f"{lx}:", "s_mov_b64 exec, -1", f"s_branch {ok}"]
        self.ool.append(blk)

    def publish_local(self, ins, local=True):
        e = self.e
        if not local:
            return e.vmem(ins + " sc1")
        ls, ld = e.label("slow"), e.label("pub")
        e(f"s_cmp_eq_u32 s{sFAST}, 0")
        e(f"s_cbranch_scc1 {ls}")
        tok = e.vmem(ins)
        e(f"{ld}:")
        self.ool.append([f"{ls}:", ins + " sc1", f"s_branch {ld}"])
        return tok

    def wave0(self, body):
        e = self.e
        l = e.label("w0")
        e(f"s_cmp_lg_u32 s{sW}, 0")
        e(f"s_cbranch_scc1 {l}")
        e.begin_cond()
        r = body()
        e.end_cond()
        e(f"{l}:")
        return r

    def barrier(self):
        self.e.wait_lg_all()
        self.e("s_barrier")
        self.stamp("bar")

    def half_sum(self, a):
        e = self.e
        e(f"v_permlane32_swap_b32 v{a}, v{a + 2}")
        e(f"v_permlane32_swap_b32 v{a + 1}, v{a + 3}")
        e(f"v_add_f32 v{a}, v{a}, v{a + 2}")
        e(f"v_add_f32 v{a + 1}, v{a + 1}, v{a + 3}")

    def step_p(self, use, O):
        self.ctx = f"p{use}."
        e = self.e
        T = lambda i: vT + i
        for r in range(4):
            e(f"v_cndmask_b32_e64 v{O + r}, v{O + r}, v{O + 4 + r}, {sp(sHI)}")
        a0, a1 = O + 4, O + 5
        e(f"v_and_b32 v{a0}, 15, v{vLANE}")
        e(f"v_lshlrev_b32 v{a0}, 5, v{a0}")
        e(f"v_bfe_u32 v{a1}, v{vLANE}, 4, 1")
        e(f"v_lshl_add_u32 v{a0}, v{a1}, 4, v{a0}")
        e(f"v_lshrrev_b32 v{a1}, 5, v{vLANE}")
        e(f"v_lshl_add_u32 v{a0}, v{a1}, 3, v{a0}")
        e(f"s_lshl_b32 s{sT0}, s{sW}, 9")
        e(f"v_add_u32 v{a0}, s{sT0}, v{a0}")
        self.half_sum(O)
        e.lds(f"ds_write_b64 v{a0}, {v(O, 2)} offset:{OW}")
        e(f"s_lshl_b32 s{sT0}, s{sW}, 3")
        e(f"v_mov_b32 v{O + 2}, s{sM}")
        e(f"v_mov_b32 v{O + 3}, s{sL}")
        e(f"v_mov_b32 v{a1}, s{sT0}")
        e("s_mov_b64 exec, 1")
        e.lds(f"ds_write_b64 v{a1}, {v(O + 2, 2)} offset:{MLW}")
        e("s_mov_b64 exec, -1")
        e(f"v_and_b32 v{T(12)}, 31, v{vLANE}")
        e(f"s_lshl_b32 s{sT0}, s{sW}, 7")
        e(f"v_lshl_add_u32 v{T(13)}, v{T(12)}, 2, s{sT0}")
        e(f"v_mov_b32 v{T(14)}, 0")
        e(f"v_lshlrev_b32 v{T(12)}, 2, v{T(12)}")
        e(f"v_add_u32 v{T(12)}, 512, v{T(12)}")
        e(f"v_cndmask_b32_e64 v{T(12)}, v{T(13)}, v{T(12)}, {sp(sHI)}")
        e(f"s_mul_i32 s{sT0}, s{sRHO}, 640")
        e(f"s_add_u32 s{sT0}, s{sT0}, {RA}")
        self.tag_reg(T(24), use)
        self.barrier()
        e.lds(f"ds_read_b128 {v(T(0), 4)}, v{T(14)} offset:{MLW}")
        t1 = e.lds(f"ds_read_b128 {v(T(4), 4)}, v{T(14)} offset:{MLW + 16}")
        for w in range(4):
            t2 = e.lds(f"ds_read_b32 v{T(8 + w)}, v{T(13)} offset:{OW + 512 * w}")
        e.wait_lg(t1)
        e(f"v_max3_f32 v{T(14)}, v{T(0)}, v{T(2)}, v{T(4)}")
        e(f"v_max_f32 v{T(14)}, v{T(14)}, v{T(6)}")
        for w in range(4):
            e(f"v_sub_f32 v{T(2 * w)}, v{T(2 * w)}, v{T(14)}")
        for w in range(4):
            e(f"v_exp_f32 v{T(2 * w)}, v{T(2 * w)}")
        e.wait_lg(t2)
        e(f"v_mul_f32 v{T(15)}, v{T(0)}, v{T(8)}")
        e(f"v_mul_f32 v{T(13)}, v{T(0)}, v{T(1)}")
        for w in range(1, 4):
            e(f"v_fmac_f32 v{T(15)}, v{T(2 * w)}, v{T(8 + w)}")
            e(f"v_fmac_f32 v{T(13)}, v{T(2 * w)}, v{T(2 * w + 1)}")
        e(f"v_cndmask_b32_e64 v{T(14)}, v{T(14)}, v{T(13)}, {sp(sODD)}")
        e(f"v_cndmask_b32_e64 v{T(15)}, v{T(15)}, v{T(14)}, {sp(sHI)}")
        self.tag(T(15), T(24))
        e(f"s_mov_b32 exec_hi, s{sPUBHI}")
        tok = self.publish_local(f"buffer_store_dword v{T(15)}, v{T(12)}, {srd(SRD_WS)}, s{sT0} offen")
        e("s_mov_b32 exec_hi, -1")
        return tok

    def step_a(self, use, hooks):
        self.ctx = f"a{use}."
        e = self.e
        T = lambda i: vT + i
        e(f"v_lshrrev_b32 v{T(20)}, 5, v{vLANE}")
        e(f"v_and_b32 v{T(21)}, 31, v{vLANE}")
        e(f"v_lshlrev_b32 v{T(28)}, 4, v{T(21)}")
        e(f"v_mul_u32_u24 v{T(22)}, 640, v{T(20)}")
        e(f"v_add_u32 v{T(28)}, v{T(28)}, v{T(22)}")
        e(f"v_and_b32 v{T(29)}, 7, v{vLANE}")
        e(f"v_xor_b32 v{T(29)}, v{T(29)}, v{T(20)}")
        e(f"v_mul_u32_u24 v{T(29)}, 640, v{T(29)}")
        e(f"s_lshl_b32 s{sT1}, s{sG}, 2")
        e(f"s_add_u32 s{sT1}, s{sT1}, s{sW}")
        e(f"s_mul_i32 s{sT1}, s{sT1}, {8 * 640}")
        e(f"s_add_u32 s{sT1}, s{sT1}, {RA}")
        loads = [f"buffer_load_dwordx4 {v(T(16), 4)}, v{T(29)}, {srd(SRD_WS)}, s{sT1} offen offset:512 sc1"]
        loads += [f"buffer_load_dwordx4 {v(T(4 * u), 4)}, v{T(28)}, {srd(SRD_WS)}, s{sT1} offen offset:{1280 * u} sc1"
                  for u in range(4)]
        e(f"v_lshlrev_b32 v{T(21)}, 3, v{T(21)}")
        e(f"v_lshl_add_u32 v{T(21)}, v{T(20)}, 2, v{T(21)}")
        e(f"s_lshl_b32 s{sT0}, s{sW}, 8")
        e(f"v_add_u32 v{T(21)}, s{sT0}, v{T(21)}")
        e(f"v_lshrrev_b32 v{T(22)}, 4, v{vLANE}")
        e(f"v_lshl_add_u32 v{T(26)}, v{T(22)}, 4, s{sT0}")
        e(f"v_and_b32 v{T(24)}, 15, v{vLANE}")
        e(f"v_lshlrev_b32 v{T(24)}, 3, v{T(24)}")
        e(f"v_lshl_add_u32 v{T(24)}, v{T(22)}, 8, v{T(24)}")
        e(f"v_add_u32 v{T(24)}, s{sLB}, v{T(24)}")
        e(f"s_lshl_b32 s{sT0}, s{sW}, 6")
        e(f"v_lshl_add_u32 v{T(27)}, v{T(22)}, 4, s{sT0}")
        self.tag_reg(T(25), use)
        self.gather(use, loads, [(T(i), i & 3) for i in range(20)], T(20), hooks)
        m, l, t = T(16), T(17), T(20)
        e(f"v_max_f32_dpp v{t}, v{m}, v{m} quad_perm:[1,0,3,2] row_mask:0xf bank_mask:0xf")
        e(f"v_max_f32_dpp v{t}, v{t}, v{t} quad_perm:[2,3,0,1] row_mask:0xf bank_mask:0xf")
        e(f"v_max_f32_dpp v{t}, v{t}, v{t} row_half_mirror row_mask:0xf bank_mask:0xf")
        e(f"v_sub_f32 v{m}, v{m}, v{t}")
        e(f"v_exp_f32 v{m}, v{m}")
        e(f"v_mul_f32 v{l}, v{m}, v{l}")
        e(f"v_add_f32_dpp v{l}, v{l}, v{l} quad_perm:[1,0,3,2] row_mask:0xf bank_mask:0xf")
        e(f"v_add_f32_dpp v{l}, v{l}, v{l} quad_perm:[2,3,0,1] row_mask:0xf bank_mask:0xf")
        e(f"v_add_f32_dpp v{l}, v{l}, v{l} row_half_mirror row_mask:0xf bank_mask:0xf")
        e(f"v_rcp_f32 v{l}, v{l}")
        e(f"v_mul_f32 v{m}, v{m}, v{l}")
        acc = T(28)
        for k in range(4):
            e(f"v_mul_f32_dpp v{acc + k}, v{m}, v{T(k)} row_newbcast:0 row_mask:0xf bank_mask:0xf")
        for u in range(1, 4):
            for k in range(4):
                e(f"v_fmac_f32_dpp v{acc + k}, v{m}, v{T(4 * u + k)} row_newbcast:{2 * u} row_mask:0xf bank_mask:0xf")
        e.wait_vm(self.tok_wo)
        wt = []
        for n in range(4):
            e.lds(f"ds_read_b64_tr_b16 {v(T(4 * n), 2)}, v{T(24)} offset:{self.WOO + 1024 * n}")
            wt.append(e.lds(f"ds_read_b64_tr_b16 {v(T(4 * n + 2), 2)}, v{T(24)} offset:{self.WOO + 1024 * n + 128}"))
        self.half_sum(acc)
        e(f"v_cvt_pk_bf16_f32 v{acc}, v{acc}, v{acc + 1}")
        e.lds(f"ds_write_b32 v{T(21)}, v{acc} offset:{OBF}")
        bb = [T(16), T(28)]
        D = T(20)
        a_b, a_y = T(26), T(27)
        tb = [e.lds(f"ds_read_b128 {v(bb[0], 4)}, v{a_b} offset:{OBF}")]
        tb.append(e.lds(f"ds_read_b128 {v(bb[1], 4)}, v{a_b} offset:{OBF + 64}"))
        for n in range(4):
            e.wait_lg(tb[n])
            c = "0" if n == 0 else v(D, 4)
            e(f"v_mfma_f32_16x16x32_bf16 {v(D, 4)}, {v(T(4 * n), 4)}, {v(bb[n & 1], 4)}, {c}")
            if n < 2:
                tb.append(e.lds(f"ds_read_b128 {v(bb[n & 1], 4)}, v{a_b} offset:{OBF + 64 * (n + 2)}"))
        e(f"v_lshlrev_b32 v{T(0)}, 2, v{vLANE}")
        e(f"s_lshl_b32 s{sT0}, s{sG}, 11")
        e(f"s_lshl_b32 s{sT1}, s{sR}, 6")
        e(f"s_add_u32 s{sT0}, s{sT0}, s{sT1}")
        e(f"s_add_u32 s{sT0}, s{sT0}, {RB + use * 16384}")
        e("s_mov_b32 exec_lo, 0x00010001")
        e("s_mov_b32 exec_hi, 0x00010001")
        e.lds(f"ds_write_b128 v{a_y}, {v(D, 4)} offset:{YW}")
        e("s_mov_b64 exec, -1")
        self.barrier()

        def pub():
            e("s_mov_b64 exec, 0xffff")
            for w in range(4):
                e(f"ds_read_b32 v{T(2 + w)}, v{T(0)} offset:{YW + 64 * w}")
            e("s_waitcnt lgkmcnt(0)")
            e(f"v_add_f32 v{T(2)}, v{T(2)}, v{T(3)}")
            e(f"v_add_f32 v{T(4)}, v{T(4)}, v{T(5)}")
            e(f"v_add_f32 v{T(2)}, v{T(2)}, v{T(4)}")
            self.tag(T(2), T(25))
            tok = e.vmem(f"buffer_store_dword v{T(2)}, v{T(0)}, {srd(SRD_WS)}, s{sT0} offen sc1", maybe=True)
            e("s_mov_b64 exec, -1")
            return tok

        return self.wave0(pub)

    def build_table(self):
        self.ctx = "t."
        e = self.e
        T = lambda i: vT + i
        LA, LB = self.RING, self.RING + 172 * 16
        e(f"s_mul_i32 s{sT0}, s{sW}, 688")
        e(f"v_lshlrev_b32 v{T(28)}, 4, v{vLANE}")
        e.vmem(f"buffer_load_dwordx4 {v(T(0), 4)}, v{T(28)}, {srd(SRD_W1)}, s{sT0} offen")
        e.vmem(f"buffer_load_dwordx4 {v(T(4), 4)}, v{T(28)}, {srd(SRD_B1)}, s{sT0} offen")
        tok = e.vmem(f"buffer_load_dwordx4 {v(T(8), 4)}, v{T(28)}, {srd(SRD_W2)}, s{sT0} offen")
        self.stream(self.cur_depth() - 1)
        e(f"v_lshl_add_u32 v{T(29)}, v{vLANE}, 6, s{sLB}")
        e(f"v_lshl_add_u32 v{T(30)}, v{vLANE}, 5, s{sLB}")
        e.wait_vm(tok)
        e("s_mov_b32 exec_hi, 0x7ff")
        for p in range(4):
            q = T(12 + 6 * (p & 1))
            e(f"v_lshlrev_b32 v{q}, 16, v{T(p)}")
            e(f"v_and_b32 v{q + 1}, 0xffff0000, v{T(p)}")
            e(f"v_lshlrev_b32 v{q + 2}, 16, v{T(4 + p)}")
            e(f"v_and_b32 v{q + 3}, 0xffff0000, v{T(4 + p)}")
            e(f"v_lshlrev_b32 v{q + 4}, 16, v{T(8 + p)}")
            e(f"v_and_b32 v{q + 5}, 0xffff0000, v{T(8 + p)}")
            e.lds(f"ds_write_b128 v{T(29)}, {v(q, 4)} offset:{LA + 16 * p}")
            e.lds(f"ds_write_b64 v{T(30)}, {v(q + 4, 2)} offset:{LB + 8 * p}")
            if p == 1:
                e.wait_lg_all()
        e("s_mov_b32 exec_hi, -1")
        H, aA, aB, U, E, ACC = T(24), T(26), T(27), T(0), T(2), T(4)
        e(f"s_and_b32 s{sT0}, s2, 127")
        e(f"s_lshl_b32 s{sT0}, s{sT0}, 5")
        e(f"v_and_b32 v{H}, 31, v{vLANE}")
        e(f"v_add_u32 v{H}, s{sT0}, v{H}")
        e(f"v_cmp_ne_u32 vcc, 0, v{H}")
        e(f"s_lshr_b32 s{sT0}, s2, 7")
        e(f"s_lshl_b32 s{sT0}, s{sT0}, 15")
        e(f"s_add_u32 s{sT0}, s{sT0}, {TB_BASE}")
        e(f"v_add_u32 v{H}, s{sT0}, v{H}")
        e(f"v_lshlrev_b32 v{H}, 16, v{H}")
        e(f"v_cndmask_b32 v{H}, 0, v{H}, vcc")
        e(f"v_lshrrev_b32 v{aB}, 5, v{vLANE}")
        e(f"v_mul_u32_u24 v{aA}, {86 * 16}, v{aB}")
        e(f"v_mul_u32_u24 v{aB}, {86 * 8}, v{aB}")
        e(f"v_add_u32 v{aA}, s{sLB}, v{aA}")
        e(f"v_add_u32 v{aB}, s{sLB}, v{aB}")
        e(f"s_mov_b32 s{sTG}, {fbits(-GELU_K * 0.044715)}")
        e(f"s_mov_b32 s{sTG + 1}, {fbits(-GELU_K)}")
        e(f"v_mov_b32 v{ACC}, 0")
        e(f"v_mov_b32 v{ACC + 1}, 0")
        e.wait_lg_all()
        buf = [T(8), T(16)]
        if "wo" not in self.skip:
            e(f"v_lshrrev_b32 v{T(28)}, 1, v{vLANE}")
            e(f"v_lshlrev_b32 v{T(28)}, 10, v{T(28)}")
            e(f"v_and_b32 v{T(29)}, 1, v{vLANE}")
            e(f"v_lshl_add_u32 v{T(28)}, v{T(29)}, 4, v{T(28)}")
            self.wo_reg = T(28)

        def fetch(i):
            q = buf[i & 1]
            e.lds(f"ds_read_b128 {v(q, 4)}, v{aA} offset:{LA + 16 * i}")
            return e.lds(f"ds_read_b64 {v(q + 4, 2)}, v{aB} offset:{LB + 8 * i}")

        tk = fetch(0)
        for i in range(86):
            nx = fetch(i + 1) if i < 85 else None
            q = buf[i & 1]
            e.wait_lg(tk)
            self.gelu_pair(H, q, q + 2, q + 4, U, E, ACC)
            tk = nx
            self.tick()
        while self.wo_reg is not None and self.wo_done < self.wo_split:
            self.stream(1)
        self.wo_reg = None
        e(f"v_add_f32 v{ACC}, v{ACC}, v{ACC + 1}")
        e(f"s_lshl_b32 s{sT0}, s{sW}, 7")
        e(f"v_mov_b32 v{ACC + 1}, v{ACC}")
        e(f"v_lshlrev_b32 v{T(7)}, 2, v{vLANE}")
        e(f"v_add_u32 v{T(6)}, s{sT0}, v{T(7)}")
        e(f"v_permlane32_swap_b32 v{ACC}, v{ACC + 1}")
        e(f"v_add_f32 v{ACC}, v{ACC}, v{ACC + 1}")
        self.barrier()
        e("s_mov_b32 exec_hi, 0")
        e.lds(f"ds_write_b32 v{T(6)}, v{ACC} offset:{TW}")
        e("s_mov_b32 exec_hi, -1")
        self.barrier()

        def pub():
            e("s_mov_b32 exec_hi, 0")
            for w in range(4):
                e(f"ds_read_b32 v{T(w)}, v{T(7)} offset:{TW + 128 * w}")
            e(f"s_lshl_b32 s{sT0}, s2, 7")
            e(f"s_add_u32 s{sT0}, s{sT0}, {TB}")
            e("s_waitcnt lgkmcnt(0)")
            e(f"v_add_f32 v{T(0)}, v{T(0)}, v{T(1)}")
            e(f"v_add_f32 v{T(2)}, v{T(2)}, v{T(3)}")
            e(f"v_add_f32 v{T(0)}, v{T(0)}, v{T(2)}")
            e(f"v_add_f32 v{T(0)}, s{sB2}, v{T(0)}")
            e.vmem(f"buffer_store_dword v{T(0)}, v{T(7)}, {srd(SRD_WS)}, s{sT0} offen sc1", maybe=True)
            e("s_mov_b32 exec_hi, -1")

        self.wave0(pub)

    def gelu_pair(self, H, W1, B1, W2, U, E, ACC):
        e = self.e
        c = sp(sTG)
        e(f"v_pk_fma_f32 {v(U, 2)}, {v(H, 2)}, {v(W1, 2)}, {v(B1, 2)} op_sel_hi:[0,1,1]")
        e(f"v_pk_mul_f32 {v(E, 2)}, {v(U, 2)}, {v(U, 2)}")
        e(f"v_pk_fma_f32 {v(E, 2)}, {v(E, 2)}, {c}, {c} op_sel:[0,0,1] op_sel_hi:[1,0,1]")
        e(f"v_pk_mul_f32 {v(E, 2)}, {v(U, 2)}, {v(E, 2)}")
        e(f"v_exp_f32 v{E}, v{E}")
        e(f"v_exp_f32 v{E + 1}, v{E + 1}")
        e(f"v_pk_mul_f32 {v(U, 2)}, {v(U, 2)}, {v(W2, 2)}")
        e(f"v_pk_add_f32 {v(E, 2)}, {v(E, 2)}, 1.0 op_sel_hi:[1,0]")
        e(f"v_rcp_f32 v{E}, v{E}")
        e(f"v_rcp_f32 v{E + 1}, v{E + 1}")
        e(f"v_pk_fma_f32 {v(ACC, 2)}, {v(U, 2)}, {v(E, 2)}, {v(ACC, 2)}")

    def warm_table(self):
        e = self.e
        e(f"s_lshl_b32 s{sOFF}, s{sR}, 2")
        e(f"s_add_u32 s{sOFF}, s{sOFF}, s{sW}")
        e(f"s_lshl_b32 s{sOFF}, s{sOFF}, 8")
        e(f"s_add_u32 s{sOFF}, s{sOFF}, {TB}")
        e(f"s_add_u32 m0, s{sLB}, {self.RING}")
        e(f"v_lshlrev_b32 v{vMK}, 2, v{vLANE}")
        e.vmem(f"buffer_load_dword v{vMK}, {srd(SRD_WS)}, s{sOFF} offen sc1 lds")
        self.lane_masks((0,))

    def mixer_direct(self, pk, y, flags, back):
        T = lambda i: vT + i
        e = self.e
        lines = []
        A = lines.append
        h, f, U, E, acc, w = T(0), T(1), T(2), T(3), T(4), T(5)
        for c in range(2):
            l0, l1, l2 = e.label("mx"), e.label("mxf"), e.label("mxe")
            A(f"{l0}:")
            A(f"s_cmp_eq_u64 {sp(flags[c])}, 0")
            A(f"s_cbranch_scc1 {l2}")
            A(f"s_ff1_i32_b64 s{sCNT}, {sp(flags[c])}")
            A(f"s_bitset0_b64 {sp(flags[c])}, s{sCNT}")
            A(f"v_readlane_b32 s{sOFF}, v{pk}, s{sCNT}")
            A(f"s_lshl_b32 s{sOFF}, s{sOFF}, 16" if c == 0 else f"s_and_b32 s{sOFF}, s{sOFF}, 0xffff0000")
            A(f"v_mov_b32 v{h}, s{sOFF}")
            A(f"v_lshlrev_b32 v{f}, 1, v{vLANE}")
            A(f"v_mov_b32 v{acc}, 0")
            A(f"s_mov_b32 s{sOFF}, 0")
            A(f"{l1}:")
            A(f"buffer_load_ushort v{w}, v{f}, {srd(SRD_W1)}, s{sOFF} offen")
            A(f"buffer_load_ushort v{w + 1}, v{f}, {srd(SRD_B1)}, s{sOFF} offen")
            A(f"buffer_load_ushort v{w + 2}, v{f}, {srd(SRD_W2)}, s{sOFF} offen")
            A("s_waitcnt vmcnt(0)")
            for i in range(3):
                A(f"v_lshlrev_b32 v{w + i}, 16, v{w + i}")
            A(f"v_fma_f32 v{U}, v{h}, v{w}, v{w + 1}")
            A(f"v_mul_f32 v{E}, v{U}, v{U}")
            A(f"v_mul_f32 v{E}, {fbits(-GELU_K * 0.044715)}, v{E}")
            A(f"v_add_f32 v{E}, {fbits(-GELU_K)}, v{E}")
            A(f"v_mul_f32 v{E}, v{U}, v{E}")
            A(f"v_exp_f32 v{E}, v{E}")
            A(f"v_mul_f32 v{U}, v{U}, v{w + 2}")
            A(f"v_add_f32 v{E}, 1.0, v{E}")
            A(f"v_rcp_f32 v{E}, v{E}")
            A(f"s_add_u32 s{sOFF}, s{sOFF}, 128")
            A(f"s_cmp_lt_u32 s{sOFF}, 2752")
            A(f"v_fmac_f32 v{acc}, v{U}, v{E}")
            A(f"s_cbranch_scc1 {l1}")
            for ctl in ("quad_perm:[1,0,3,2] row_mask:0xf", "quad_perm:[2,3,0,1] row_mask:0xf",
                        "row_half_mirror row_mask:0xf", "row_mirror row_mask:0xf",
                        "row_bcast:15 row_mask:0xa", "row_bcast:31 row_mask:0xc"):
                A(f"v_add_f32_dpp v{acc}, v{acc}, v{acc} {ctl} bank_mask:0xf")
            A(f"v_add_f32 v{acc}, s{sB2}, v{acc}")
            A(f"v_readlane_b32 s{sOFF}, v{acc}, 63")
            A(f"s_mov_b32 m0, s{sCNT}")
            A("s_nop 3")
            A(f"v_writelane_b32 v{y + c}, s{sOFF}, m0")
            A(f"s_branch {l0}")
            A(f"{l2}:")
        A(f"s_branch {back}")
        return lines

    def step_b(self, use, b, layer, hooks):
        self.ctx = f"b{use}."
        e = self.e
        T = lambda i: vT + i
        e(f"v_lshrrev_b32 v{T(28)}, 5, v{vLANE}")
        e(f"v_and_b32 v{T(29)}, 31, v{vLANE}")
        e(f"s_lshl_b32 s{sT0}, s{sW}, 9")
        e(f"v_lshl_add_u32 v{T(30)}, v{T(29)}, 4, s{sT0}")
        e(f"v_lshl_add_u32 v{T(27)}, v{T(28)}, 11, v{T(30)}")
        e(f"v_lshl_add_u32 v{T(30)}, v{T(28)}, 3, v{T(30)}")
        loads = []
        if layer == 1:
            e(f"v_lshrrev_b32 v{T(29)}, 1, v{T(30)}")
            e.vmem(f"buffer_load_dword v{T(16)}, v{T(29)}, {srd(SRD_X)}, 0 offen offset:{1024 * b}")
            e(f"s_mov_b32 s{sM}, {RB + use * 16384}")
        else:
            e(f"s_xor_b32 s{sL}, s2, 1")
            e(f"s_lshl_b32 s{sT0}, s{sL}, 11")
            e(f"s_add_u32 s{sT0}, s{sT0}, {RC}")
            e.vmem(f"buffer_load_dwordx2 {v(T(16), 2)}, v{T(30)}, {srd(SRD_WS)}, s{sT0} offen sc1")
            e(f"s_lshl_b32 s{sM}, s{sL}, 15")
            e(f"s_add_u32 s{sM}, s{sM}, {RB + 16384}")
            e(f"s_lshl_b32 s{sT0}, s2, 1")
            e(f"s_sub_u32 s{sTB}, s{sTB}, s{sT0}")
        for u in range(4):
            loads.append(f"s_add_u32 s{sT1}, s{sM}, {4096 * u}")
            loads.append(f"buffer_load_dwordx4 {v(T(4 * u), 4)}, v{T(27)}, {srd(SRD_WS)}, s{sT1} offen sc1")
        e(f"s_lshl_b32 s{sT0}, s{sW}, 3")
        e(f"v_mov_b32 v{T(26)}, s{sT0}")
        e(f"v_mov_b32 v{T(31)}, 0")
        self.gather(use, loads, [(T(i), i & 3) for i in range(16)], T(25), hooks)
        x = T(16)
        for k in range(4):
            e(f"v_add_f32 v{T(k)}, v{T(k)}, v{T(4 + k)}")
            e(f"v_add_f32 v{T(8 + k)}, v{T(8 + k)}, v{T(12 + k)}")
        for k in range(4):
            e(f"v_add_f32 v{T(k)}, v{T(k)}, v{T(8 + k)}")
        if layer == 1:
            e(f"v_and_b32 v{x + 1}, 0xffff0000, v{x}")
            e(f"v_lshlrev_b32 v{x}, 16, v{x}")
        self.half_sum(T(0))
        e(f"v_add_f32 v{x}, v{x}, v{T(0)}")
        e(f"v_add_f32 v{x + 1}, v{x + 1}, v{T(1)}")
        self.pair_stats(x, T(18), T(26), ST)
        self.barrier()
        mean, var, rs = self.read_stats(T(0), T(31), ST)
        e(f"v_add_f32 v{rs}, {fbits(1e-5)}, v{var}")
        e(f"v_rsq_f32 v{rs}, v{rs}")
        h = T(18)
        e(f"v_sub_f32 v{h}, v{x}, v{mean}")
        e(f"v_mul_f32 v{var}, v{var}, v{rs}")
        e(f"v_fmaak_f32 v{var}, v{var}, v{rs}, {fbits(1e-5)}")
        e(f"v_rsq_f32 v{var}, v{var}")
        e(f"v_sub_f32 v{h + 1}, v{x + 1}, v{mean}")
        e(f"v_mul_f32 v{rs}, v{rs}, v{var}")
        e(f"v_mul_f32 v{h}, v{h}, v{rs}")
        e(f"v_mul_f32 v{h + 1}, v{h + 1}, v{rs}")
        pk, y = T(28), T(20)
        e(f"v_cvt_pk_bf16_f32 v{pk}, v{h}, v{h + 1}")
        e(f"s_movk_i32 s{sT0}, 0xfff")
        e(f"s_mov_b32 s{sT1}, {TB}")
        e(f"v_and_b32 v{T(8)}, 0x7fff, v{pk}")
        e(f"v_bfe_u32 v{T(9)}, v{pk}, 16, 15")
        e(f"v_bfe_u32 v{T(10)}, v{pk}, 15, 1")
        e(f"v_lshrrev_b32 v{T(11)}, 31, v{pk}")
        for c in range(2):
            e(f"v_subrev_u32 v{T(12 + c)}, {TB_BASE}, v{T(8 + c)}")
        for c in range(2):
            e(f"v_med3_i32 v{T(12 + c)}, v{T(12 + c)}, 0, s{sT0}")
        for c in range(2):
            e(f"v_lshl_add_u32 v{T(12 + c)}, v{T(10 + c)}, 12, v{T(12 + c)}")
        for c in range(2):
            e(f"v_lshlrev_b32 v{T(12 + c)}, 2, v{T(12 + c)}")
            tok = e.vmem(f"buffer_load_dword v{y + c}, v{T(12 + c)}, {srd(SRD_WS)}, s{sT1} offen sc1")
        hooks[3]()
        e(f"s_mov_b32 s{sT0}, {self.tiny}")
        for c in range(2):
            e(f"v_add_u32 v{T(8 + c)}, -1, v{T(8 + c)}")
        e(f"v_cmp_gt_u32 {sp(sTG)}, s{sT0}, v{T(8)}")
        e(f"v_cmp_gt_u32 {sp(sTG + 2)}, s{sT0}, v{T(9)}")
        if layer == 1:
            e(f"s_lshl_b32 s{sT0}, s{sSPL}, 8")
            e(f"v_subrev_u32 v{T(24)}, s{sT0}, v{T(30)}")
            e(f"s_movk_i32 s{sT0}, 0x100")
            e(f"v_cmp_gt_u32 {sp(sTP)}, s{sT0}, v{T(24)}")
            e(f"s_lshl_b32 s{sT0}, s{sW}, 6")
            e(f"v_lshrrev_b32 v{T(25)}, 4, v{vLANE}")
            e(f"v_lshl_add_u32 v{T(25)}, v{T(25)}, 4, s{sT0}")
        e(f"s_or_b64 vcc, {sp(sTG)}, {sp(sTG + 2)}")
        e.wait_vm(tok)
        lm, lb = e.label("tiny"), e.label("mixed")
        e(f"s_cbranch_vccnz {lm}")
        e(f"{lb}:")
        self.ool.append([f"{lm}:"] + self.mixer_direct(pk, y, (sTG, sTG + 2), lb))
        self.stamp("mix")
        e(f"v_add_f32 v{x}, v{x}, v{y}")
        e(f"v_add_f32 v{x + 1}, v{x + 1}, v{y + 1}")
        if layer == 2:
            e(f"v_lshrrev_b32 v{T(29)}, 1, v{T(30)}")
            e(f"s_lshl_b32 s{sT0}, s{sL}, 10")
            e(f"v_cvt_pk_bf16_f32 v{x}, v{x}, v{x + 1}")
            e.vmem(f"buffer_store_dword v{x}, v{T(29)}, {srd(SRD_OUT)}, s{sT0} offen")
            return None
        e(f"s_mov_b64 exec, {sp(sTP)}")
        e.lds(f"ds_write_b64 v{T(24)}, {v(x, 2)} offset:{XS}")
        e("s_mov_b64 exec, -1")
        self.pair_stats(x, T(18), T(26), ST2)
        l = e.label("keep")
        e(f"s_cmp_lg_u32 s2, {1 - b}")
        e(f"s_cbranch_scc1 {l}")
        e.begin_cond()
        e(f"s_mov_b32 s{sT0}, {RC + 2048 * b}")
        e.vmem(f"buffer_store_dwordx2 {v(x, 2)}, v{T(30)}, {srd(SRD_WS)}, s{sT0} offen sc1", maybe=True)
        e.end_cond()
        e(f"{l}:")
        self.barrier()
        e.lds(f"ds_read_b128 {v(T(8), 4)}, v{T(25)} offset:{XS}")
        mean, var, rs = self.read_stats(T(0), T(31), ST2)
        wt = [e.lds(f"ds_read_b128 {v(T(12 + 4 * n), 4)}, v{vL} offset:{self.WQO + 1024 * n}") for n in range(4)]
        e(f"v_add_f32 v{rs}, {fbits(1e-5)}, v{var}")
        e(f"v_rsq_f32 v{rs}, v{rs}")
        for n in range(4):
            e(f"v_sub_f32 v{T(8 + n)}, v{T(8 + n)}, v{mean}")
        for n in range(4):
            e(f"v_mul_f32 v{T(8 + n)}, v{rs}, v{T(8 + n)}")
        return self.q_slice(2 + b, wt, True)

    def pair_stats(self, x, s1, addr, where):
        e = self.e
        e(f"v_add_f32 v{s1}, v{x}, v{x + 1}")
        e(f"v_mul_f32 v{s1 + 1}, v{x}, v{x}")
        e(f"v_fmac_f32 v{s1 + 1}, v{x + 1}, v{x + 1}")
        self.wave_reduce("v_add_f32", [s1, s1 + 1])
        e("s_mov_b32 exec_lo, 0")
        e("s_mov_b32 exec_hi, 0x80000000")
        e.lds(f"ds_write_b64 v{addr}, {v(s1, 2)} offset:{where}")
        e("s_mov_b64 exec, -1")

    def read_stats(self, r, zero, where):
        e = self.e
        e.lds(f"ds_read_b128 {v(r, 4)}, v{zero} offset:{where}")
        tok = e.lds(f"ds_read_b128 {v(r + 4, 4)}, v{zero} offset:{where + 16}")
        e.wait_lg(tok)
        e(f"v_pk_add_f32 {v(r, 2)}, {v(r, 2)}, {v(r + 2, 2)}")
        e(f"v_pk_add_f32 {v(r + 4, 2)}, {v(r + 4, 2)}, {v(r + 6, 2)}")
        e(f"v_pk_add_f32 {v(r, 2)}, {v(r, 2)}, {v(r + 4, 2)}")
        self.mean_var(r, r + 1)
        return r, r + 1, r + 2

    def mean_var(self, s1, s2):
        e = self.e
        e(f"v_mul_f32 v{s1}, {fbits(1 / 512)}, v{s1}")
        e(f"v_mul_f32 v{s2}, {fbits(1 / 512)}, v{s2}")
        e(f"v_fma_f32 v{s2}, -v{s1}, v{s1}, v{s2}")
        e(f"v_max_f32 v{s2}, 0, v{s2}")

    def step_c(self, b, hooks):
        self.ctx = f"c{b}."
        e = self.e
        T = lambda i: vT + i
        e(f"s_lshl_b32 s{sT0}, s{sSPL}, 2")
        e(f"s_add_u32 s{sT0}, s{sT0}, s{sW}")
        e(f"s_lshl_b32 s{sT0}, s{sT0}, 5")
        e(f"v_lshrrev_b32 v{T(29)}, 4, v{vLANE}")
        e(f"v_lshl_add_u32 v{T(29)}, v{T(29)}, 3, s{sT0}")
        e(f"v_lshlrev_b32 v{T(28)}, 4, v{vLANE}")
        hooks[0]()
        e.vmem(f"buffer_load_dwordx4 {v(T(12), 4)}, v{T(28)}, {srd(SRD_X)}, 0 offen offset:{1024 * b}")
        tok = e.vmem(f"buffer_load_dwordx2 {v(T(16), 2)}, v{T(29)}, {srd(SRD_X)}, 0 offen offset:{1024 * b}")
        hooks[1]()
        e.wait_vm(tok)
        for i in range(6):
            e(f"v_lshlrev_b32 v{T(2 * i)}, 16, v{T(12 + i)}")
            e(f"v_and_b32 v{T(2 * i + 1)}, 0xffff0000, v{T(12 + i)}")
        e.wait_vm(self.tok_wq)
        wt = [e.lds(f"ds_read_b128 {v(T(12 + 4 * n), 4)}, v{vL} offset:{self.WQO + 1024 * n}") for n in range(4)]
        s1, s2 = T(28), T(29)
        e(f"v_add_f32 v{s1}, v{T(0)}, v{T(1)}")
        e(f"v_mul_f32 v{s2}, v{T(0)}, v{T(0)}")
        e(f"v_fmac_f32 v{s2}, v{T(1)}, v{T(1)}")
        for i in range(2, 8):
            e(f"v_add_f32 v{s1}, v{s1}, v{T(i)}")
            e(f"v_fmac_f32 v{s2}, v{T(i)}, v{T(i)}")
        self.wave_reduce("v_add_f32", [s1, s2])
        self.mean_var(s1, s2)
        e(f"v_add_f32 v{s2}, {fbits(1e-5)}, v{s2}")
        e(f"v_rsq_f32 v{s2}, v{s2}")
        e(f"v_readlane_b32 s{sT0}, v{s1}, 63")
        e(f"v_readlane_b32 s{sT1}, v{s2}, 63")
        for n in range(4):
            e(f"v_subrev_f32 v{T(8 + n)}, s{sT0}, v{T(8 + n)}")
        for n in range(4):
            e(f"v_mul_f32 v{T(8 + n)}, s{sT1}, v{T(8 + n)}")
        return self.q_slice(b, wt, False)

    def q_slice(self, use, wt, local):
        e = self.e
        T = lambda i: vT + i
        for n in range(4):
            e(f"v_cvt_pk_bf16_f32 v{T(8 + n)}, v{T(8 + n)}, v{T(8 + n)}")
        D = T(0)
        ab = [T(4), T(28)]
        for q in range(4):
            e(f"v_and_b32 v{ab[0] + q}, v{T(8)}, v{vMK + q}")
        for n in range(4):
            if n < 3:
                for q in range(4):
                    e(f"v_and_b32 v{ab[(n + 1) & 1] + q}, v{T(9 + n)}, v{vMK + q}")
            e.wait_lg(wt[n])
            c = "0" if n == 0 else v(D, 4)
            e(f"v_mfma_f32_16x16x32_bf16 {v(D, 4)}, {v(ab[n & 1], 4)}, {v(T(12 + 4 * n), 4)}, {c}")
        e(f"v_and_b32 v{T(8)}, 15, v{vLANE}")
        e(f"v_lshlrev_b32 v{T(8)}, 5, v{T(8)}")
        e(f"v_bfe_u32 v{T(9)}, v{vLANE}, 4, 1")
        e(f"v_lshl_add_u32 v{T(8)}, v{T(9)}, 4, v{T(8)}")
        e(f"s_lshl_b32 s{sT0}, s{sW}, 9")
        e(f"v_add_u32 v{T(8)}, s{sT0}, v{T(8)}")
        e(f"s_lshl_b32 s{sT0}, s{sW}, 7")
        e(f"v_lshl_add_u32 v{T(9)}, v{vLANE}, 2, s{sT0}")
        e(f"s_lshl_b32 s{sT0}, s{sRHO}, 9")
        e(f"s_add_u32 s{sT0}, s{sT0}, {RD + (use == 1) * 256 * 512}")
        e("s_mov_b32 exec_hi, 0")
        e.lds(f"ds_write_b128 v{T(8)}, {v(D, 4)} offset:{QW}")
        self.tag_reg(T(10), use)
        self.barrier()
        for w in range(4):
            e.lds(f"ds_read_b32 v{T(4 + w)}, v{T(9)} offset:{QW + 512 * w}")
        e.wait_lg_all()
        e(f"v_add_f32 v{T(4)}, v{T(4)}, v{T(5)}")
        e(f"v_add_f32 v{T(6)}, v{T(6)}, v{T(7)}")
        e(f"v_add_f32 v{T(4)}, v{T(4)}, v{T(6)}")
        self.tag(T(4), T(10))
        tok = self.publish_local(f"buffer_store_dword v{T(4)}, v{T(9)}, {srd(SRD_WS)}, s{sT0} offen", local=local)
        e("s_mov_b32 exec_hi, -1")
        return tok

    def step_d(self, use, q, hooks):
        self.ctx = f"d{use}."
        e = self.e
        T = lambda i: vT + i
        e(f"v_bfe_u32 v{T(17)}, v{vLANE}, 2, 2")
        e(f"v_lshlrev_b32 v{T(16)}, 10, v{T(17)}")
        e(f"v_lshrrev_b32 v{T(17)}, 4, v{vLANE}")
        e(f"v_lshl_add_u32 v{T(16)}, v{T(17)}, 7, v{T(16)}")
        e(f"v_and_b32 v{T(17)}, 3, v{vLANE}")
        e(f"v_lshl_add_u32 v{T(16)}, v{T(17)}, 5, v{T(16)}")
        e(f"s_lshr_b32 s{sT1}, s{sRHO}, 3")
        e(f"s_lshl_b32 s{sT1}, s{sT1}, 12")
        e(f"s_add_u32 s{sT1}, s{sT1}, {RD + (use == 1) * 256 * 512}")
        loads = [f"buffer_load_dwordx4 {v(T(4 * i), 4)}, v{T(16)}, {srd(SRD_WS)}, s{sT1} offen offset:{o} sc1"
                 for i, o in enumerate((0, 16, 512, 528))]
        self.gather(use, loads, [(T(i), i & 3) for i in range(16)], T(17), hooks)
        for i in range(8):
            e(f"v_add_f32 v{T(i)}, v{T(i)}, v{T(8 + i)}")
        for ror in (4, 8):
            for i in range(8):
                e(f"v_add_f32_dpp v{T(i)}, v{T(i)}, v{T(i)} row_ror:{ror} row_mask:0xf bank_mask:0xf")
        for i in range(4):
            e(f"v_cvt_pk_bf16_f32 v{q + i}, v{T(2 * i)}, v{T(2 * i + 1)}")

    def prologue(self):
        e = self.e
        T = lambda i: vT + i
        e("s_cmp_ge_u32 s2, 256")
        e("s_cbranch_scc1 L_end")
        self.stamp("start")
        if self.calib:
            e("s_memrealtime s[94:95]")
        e(f"s_load_dwordx16 s[{sKA}:{sKA + 15}], s[0:1], 0")
        e(f"s_load_dwordx8 s[{sKA + 16}:{sKA + 23}], s[0:1], 64")
        e(f"s_load_dwordx2 s[{sKA + 24}:{sKA + 25}], s[0:1], 96")
        e(f"v_lshrrev_b32 v{T(0)}, 6, v0")
        e(f"v_and_b32 v{vLANE}, 63, v0")
        e(f"v_readfirstlane_b32 s{sW}, v{T(0)}")
        e(f"s_and_b32 s{sG}, s2, 7")
        e(f"s_lshr_b32 s{sR}, s2, 3")
        e(f"s_lshl_b32 s{sRHO}, s{sG}, 5")
        e(f"s_add_u32 s{sRHO}, s{sRHO}, s{sR}")
        e(f"s_and_b32 s{sSPL}, s{sRHO}, 7")
        e(f"s_lshr_b32 s{sT0}, s{sRHO}, 3")
        e(f"s_lshl_b32 s{sROT}, s{sSPL}, 3")
        e(f"s_add_u32 s{sROT}, s{sROT}, s{sT0}")
        e(f"s_lshl_b32 s{sT0}, s{sRHO}, 18")
        e(f"s_lshl_b32 s{sT1}, s{sW}, 10")
        e(f"s_add_u32 s{sT0}, s{sT0}, s{sT1}")
        e(f"v_and_b32 v{T(0)}, 3, v{vLANE}")
        e(f"v_bfe_u32 v{T(1)}, v{vLANE}, 2, 2")
        e(f"v_lshrrev_b32 v{T(2)}, 4, v{vLANE}")
        e(f"v_lshl_add_u32 v{vK}, v{T(0)}, 4, s{sT0}")
        e(f"v_lshl_add_u32 v{vK}, v{T(1)}, 8, v{vK}")
        e(f"v_lshl_add_u32 v{vK}, v{T(2)}, 6, v{vK}")
        e(f"v_lshl_add_u32 v{vV}, v{vLANE}, 4, s{sT0}")
        e(f"s_mul_i32 s{sLB}, s{sW}, {self.wave_lds}")
        e(f"s_add_u32 s{sLB}, s{sLB}, {SCRATCH}")
        e(f"v_lshl_add_u32 v{vL}, v{vLANE}, 4, s{sLB}")
        ptr = lambda i: sKA + 2 * i

        def mk(base, i, nbytes):
            e(f"s_mov_b32 s{base}, s{ptr(i)}")
            e(f"s_mov_b32 s{base + 1}, s{ptr(i) + 1}")
            e(f"s_mov_b32 s{base + 2}, {nbytes}")
            e(f"s_mov_b32 s{base + 3}, 0x20000")

        e("s_waitcnt lgkmcnt(0)")
        mk(SRD_K, 1, 0x8000000)
        self.burst(self.depth_a)
        e(f"s_load_dword s{sB2}, s[{ptr(9)}:{ptr(9) + 1}], 0")
        e(f"s_add_u32 s{sT0}, s{ptr(12)}, {NONCE}")
        e(f"s_addc_u32 s{sT1}, s{ptr(12) + 1}, 0")
        e(f"s_mov_b32 s{sM}, s{sT0}")
        e(f"s_mov_b32 s{sM + 1}, s{sT1}")
        mk(SRD_WS, 12, 0x20000000)
        mk(SRD_V, 2, 0x8000000)
        mk(SRD_X, 0, 2048)
        mk(SRD_WQ, 3, 0x400000)
        mk(SRD_WO, 4, 0x400000)
        mk(SRD_W1, 6, 2752)
        mk(SRD_B1, 7, 2752)
        mk(SRD_W2, 8, 2752)
        mk(SRD_OUT, 10, 2048)
        e(f"s_mov_b32 s{sTP}, s{sM}")
        e(f"s_mov_b32 s{sTP + 1}, s{sM + 1}")
        e(f"s_load_dword s{sCNT}, {sp(sTP)}, 0")
        e(f"s_lshl_b32 s{sT0}, s{sSPL}, 2")
        e(f"s_add_u32 s{sT0}, s{sT0}, s{sW}")
        e(f"s_lshl_b32 s{sT0}, s{sT0}, 17")
        e(f"s_lshr_b32 s{sT1}, s{sRHO}, 3")
        e(f"s_lshl_b32 s{sT1}, s{sT1}, 8")
        e(f"s_add_u32 s{sT0}, s{sT0}, s{sT1}")
        e(f"v_and_b32 v{T(3)}, 15, v{vLANE}")
        e(f"v_lshlrev_b32 v{T(3)}, 4, v{T(3)}")
        e(f"v_lshl_add_u32 v{T(3)}, v{T(2)}, 15, v{T(3)}")
        for n in range(4):
            e(f"s_add_u32 m0, s{sLB}, {self.WQO + 1024 * n}")
            e(f"s_add_u32 s{sT1}, s{sT0}, {8192 * n}")
            self.tok_wq = e.vmem(f"buffer_load_dwordx4 v{T(3)}, {srd(SRD_WQ)}, s{sT1} offen {self.wq_pol} lds")
        e("s_waitcnt lgkmcnt(0)")
        e(f"s_lshl_b32 s{sB2}, s{sB2}, 16")
        e(f"s_add_u32 s{sN}, s{sCNT}, 1")
        e(f"s_lshl_b32 s{sTB}, s{sN}, 2")
        e(f"s_mov_b32 s{sFF}, 0xff")
        if self.codepf:
            e(f"s_getpc_b64 {sp(sTP)}")
            e("L_pc:")
            e(f"s_lshl_b32 s{sT0}, s{sR}, 2")
            e(f"s_add_u32 s{sT0}, s{sT0}, s{sW}")
            e(f"s_lshl_b32 s{sT0}, s{sT0}, 10")
            e(f"v_lshl_add_u32 v{T(10)}, v{vLANE}, 4, s{sT0}")
            e(f"v_mov_b32 v{T(13)}, s{sTP + 1}")
            e(f"v_add_co_u32 v{T(12)}, vcc, s{sTP}, v{T(10)}")
            e(f"v_addc_co_u32 v{T(13)}, vcc, 0, v{T(13)}, vcc")
            e(f"s_mov_b32 s{sT1}, L_code_end-L_pc-16")
            e(f"v_cmp_gt_u32 vcc, s{sT1}, v{T(10)}")
            e(f"s_and_saveexec_b64 {sp(sTP)}, vcc")
            e("s_cbranch_execz L_pf_done")
            e.begin_cond()
            e.vmem(f"global_load_dwordx4 {v(T(16), 4)}, {v(T(12), 2)}, off", maybe=True)
            e.end_cond()
            e("L_pf_done:")
            e("s_mov_b64 exec, -1")
        e(f"s_mov_b32 s{sHI}, 0")
        e(f"s_mov_b32 s{sHI + 1}, -1")
        e(f"s_mov_b32 s{sODD}, 0xaaaaaaaa")
        e(f"s_mov_b32 s{sODD + 1}, 0xaaaaaaaa")
        for c in range(4):
            for hh in range(2):
                e(f"s_mov_b32 s{sQ4 + 2 * c + hh}, {0x11111111 << c}")
                e(f"s_mov_b32 s{sBK + 2 * c + hh}, {0x000f000f << (4 * c)}")
        e(f"s_cmp_eq_u32 s{sW}, 0")
        e(f"s_cselect_b32 s{sPUBHI}, -1, 0")
        self.lane_masks((0, 1, 2, 3))
        e(f"s_getreg_b32 s{sXCC}, hwreg(HW_REG_XCC_ID, 0, 4)")
        e(f"s_lshl_b32 s{sWOB}, s{sG}, 2")
        e(f"s_add_u32 s{sWOB}, s{sWOB}, s{sW}")
        e(f"s_lshl_b32 s{sWOB}, s{sWOB}, 17")
        e(f"s_lshl_b32 s{sT1}, s{sR}, 5")
        e(f"s_add_u32 s{sWOB}, s{sWOB}, s{sT1}")

        def say_die():
            e(f"s_xor_b32 s{sT0}, s{sN}, 0x9e3779b9")
            e(f"v_mov_b32 v{T(4)}, s{sT0}")
            e(f"v_mov_b32 v{T(5)}, s{sXCC}")
            e(f"s_lshl_b32 s{sT0}, s{sRHO}, 3")
            e(f"s_add_u32 s{sT0}, s{sT0}, {RX}")
            e(f"v_mov_b32 v{T(6)}, s{sT0}")
            e("s_mov_b64 exec, 1")
            e.vmem(f"buffer_store_dwordx2 {v(T(4), 2)}, v{T(6)}, {srd(SRD_WS)}, 0 offen sc1", maybe=True)
            e("s_mov_b64 exec, -1")

        if "loc" not in self.skip:
            self.wave0(say_die)

    def load_wo(self, n):
        e = self.e
        rows = 128 // self.wo_split
        if self.wo_stag:
            e(f"s_mul_i32 s{sOFF}, s{sR}, {self.wo_split // 4}")
            e(f"s_add_u32 s{sOFF}, s{sOFF}, {n}")
            e(f"s_and_b32 s{sOFF}, s{sOFF}, {self.wo_split - 1}")
            e(f"s_mul_i32 s{sCNT}, s{sOFF}, {32 * rows}")
            e(f"s_add_u32 s{sCNT}, s{sCNT}, s{sLB}")
            e(f"s_add_u32 m0, s{sCNT}, {self.WOO}")
            e(f"s_mul_i32 s{sOFF}, s{sOFF}, {1024 * rows}")
            e(f"s_add_u32 s{sOFF}, s{sOFF}, s{sWOB}")
        else:
            e(f"s_add_u32 m0, s{sLB}, {self.WOO + 32 * rows * n}")
            e(f"s_add_u32 s{sOFF}, s{sWOB}, {1024 * rows * n}")
        if rows < 32:
            e(f"s_mov_b64 exec, {(1 << (2 * rows)) - 1}" if rows < 16 else "s_mov_b32 exec_hi, 0")
        self.tok_wo = e.vmem(f"buffer_load_dwordx4 v{self.wo_reg}, {srd(SRD_WO)}, s{sOFF} offen {self.wo_pol} lds")
        if rows < 32:
            e("s_mov_b64 exec, -1")

    def lane_masks(self, which):
        e = self.e
        for q in which:
            e(f"v_and_b32 v{vMK + q}, 7, v{vLANE}")
            e(f"v_subrev_u32 v{vMK + q}, {2 * q}, v{vMK + q}")
            e(f"v_cmp_gt_u32 {sp(sTP)}, 2, v{vMK + q}")
            e(f"v_lshlrev_b32 v{vMK + q}, 4, v{vMK + q}")
            e(f"s_mov_b32 s{sOFF}, 0xffff")
            e(f"v_lshlrev_b32_e64 v{vMK + q}, v{vMK + q}, s{sOFF}")
            e(f"v_cndmask_b32_e64 v{vMK + q}, 0, v{vMK + q}, {sp(sTP)}")

    def locality(self, hooks):
        self.ctx = "x."
        e = self.e
        T = lambda i: vT + i
        e(f"v_and_b32 v{T(2)}, 31, v{vLANE}")
        e(f"v_lshlrev_b32 v{T(2)}, 3, v{T(2)}")
        e(f"s_lshl_b32 s{sT1}, s{sG}, 8")
        e(f"s_add_u32 s{sT1}, s{sT1}, {RX}")
        e(f"s_xor_b32 s{sT0}, s{sN}, 0x9e3779b9")
        ld = f"buffer_load_dwordx2 {v(T(0), 2)}, v{T(2)}, {srd(SRD_WS)}, s{sT1} offen sc1"
        tok = e.vmem(ld)
        hooks[1]()
        e.wait_vm(tok)
        self.retry([ld], [f"v_cmp_ne_u32 vcc, s{sT0}, v{T(0)}"])
        e(f"v_cmp_ne_u32 vcc, s{sXCC}, v{T(1)}")
        e("s_cmp_eq_u64 vcc, 0")
        e(f"s_cselect_b32 s{sFAST}, {0 if self.force_slow else 1}, 0")

    def warm_slots(self):
        e = self.e
        T = lambda i: vT + i
        self.tag_reg(T(0), 0x80)
        e(f"v_lshlrev_b32 v{T(1)}, 2, v{vLANE}")
        e(f"s_mul_i32 s{sT0}, s{sRHO}, 640")
        e(f"s_lshl_b32 s{sT1}, s{sW}, 7")
        e(f"s_add_u32 s{sT0}, s{sT0}, s{sT1}")
        e(f"s_add_u32 s{sT0}, s{sT0}, {RA}")
        e(f"s_cmp_eq_u32 s{sW}, 3")
        e(f"s_cselect_b32 exec_hi, -1, 0")
        self.publish_local(f"buffer_store_dword v{T(0)}, v{T(1)}, {srd(SRD_WS)}, s{sT0} offen")
        e(f"s_lshl_b32 s{sT0}, s{sG}, 11")
        e(f"s_lshl_b32 s{sT1}, s{sR}, 6")
        e(f"s_add_u32 s{sT0}, s{sT0}, s{sT1}")
        e(f"s_lshl_b32 s{sT1}, s{sW}, 14")
        e(f"s_add_u32 s{sT0}, s{sT0}, s{sT1}")
        e(f"s_add_u32 s{sT0}, s{sT0}, {RB}")
        e("s_mov_b64 exec, 0xffff")
        e.vmem(f"buffer_store_dword v{T(0)}, v{T(1)}, {srd(SRD_WS)}, s{sT0} offen sc1")
        e("s_mov_b64 exec, -1")

    def build(self):
        e = self.e
        T = lambda i: vT + i
        K0 = [("K", 0, t) for t in range(64)]
        V0 = [("V", 0, t) for t in range(64)]
        K1 = [("K", 1, t) for t in range(64)]
        V1 = [("V", 1, t) for t in range(64)]
        self.items = K0 + V0 + K1 + V1
        for t in range(64):
            self.home[K0[t]] = self.reg_home(t)
            if t < self.nhome:
                self.home[V0[t]] = ("l", self.HOME + 1024 * t)
            else:
                self.home[V0[t]] = self.reg_home(64 + t - self.nhome)
        for t in range(self.ring):
            self.home[K1[t]] = ("l", self.RING + t * 1024)
        self.next_home = 0
        self.freed = 0
        nop = lambda: None

        def later(k):
            def before():
                self.stream(k)
                self.barrier()

            return (before, lambda: self.stream(self.cur_depth() - 1), nop, nop)

        def hop(cfg, tok):
            def before():
                self.burst(cfg[0])
                e.wait_vm(tok)
                self.barrier()

            return (before, lambda: self.burst(cfg[1]), lambda: self.burst(cfg[2]), lambda: self.burst(cfg[3]))

        self.prologue()
        self.mark("prologue")
        self.stream(self.c_at - self.issued)
        if "c" not in self.skip:
            self.step_c(0, later(0))
            self.burst(self.after_store)
            self.step_c(1, later(0))
            self.burst(self.after_store)
        if "table" not in self.skip:
            self.build_table()
        self.mark("table")
        self.stream(self.x_at - self.issued)
        if "loc" not in self.skip:
            self.locality(later(0))
        else:
            e(f"s_mov_b32 s{sFAST}, 1")
        if self.prewrite:
            self.warm_slots()
            self.burst(self.after_store)
        if "d" not in self.skip:
            self.step_d(0, T(28), later(0))
        self.mark("q1")
        QM, ACC, S = T(0), T(16), T(28)
        R, O, AB, STG = T(0), T(16), T(8), [T(24), T(28)]
        self.mask_q(T(28), QM)
        self.qk_fast(K0, QM, S, ACC, [], list(range(16)), arrive=self.arrive)
        self.softmax(S, R, T(8))
        self.mode = "W"
        self.pv(V0, R, O, AB, STG, arrive=self.arrive)
        self.mark("pv0")
        pace, self.pace = self.pace, 1 << 30
        w = self.win
        tok = self.step_p(0, O)
        tok = self.step_a(0, hop(w[0], tok))
        self.mark("a0")
        tok = self.step_b(0, 0, 1, hop(w[1], tok))
        self.mark("b0")
        self.step_d(2, T(28), hop(w[2], tok))
        self.mark("d0")
        self.pace = pace
        self.n_ring = self.issued - 128
        self.mode = "C"
        self.depth_now = self.depth_s
        self.mask_q(T(28), QM)

        def free_k(t):
            self.freed = t + 1
            if t < self.depth_s and self.in_flight() < self.depth_s:
                self.burst(1)

        self.qk_fast(K0, QM, S, ACC, [], list(range(16)), hook=free_k)
        self.softmax(S, R, T(8))
        self.pv(V0, R, O, AB, STG)
        self.freed = 64 + self.nvslot
        self.mark("pass2_0")
        self.step_p(1, O)
        self.step_a(1, later(self.shadow[0]))
        self.mark("a1")
        self.step_d(1, T(28), later(self.shadow[1]))
        spare = [self.nwork + 4 * (k - 64) for k in range(128 - self.ring, 64 + self.nvslot)]
        for t in range(len(spare) - 3):
            r = spare.pop()
            self.arrive(K1[t])
            e.lds(f"ds_read_b128 {v(r, 4)}, v{vL} offset:{self.home[K1[t]][1]}")
            self.home[K1[t]] = ("r", v(r, 4))
        self.mask_q(T(28), QM)
        e.wait_lg_all()
        self.qk_fast(K1, QM, S, ACC, spare, list(range(16)), arrive=self.arrive)
        self.depth_now = None
        self.softmax(S, R, T(8))
        self.pv(V1, R, O, AB, STG, arrive=self.arrive)
        self.mark("pv1")
        self.pace = 1 << 30
        z = (0, 0, 0, 0)
        tok = self.step_p(2, O)
        tok = self.step_a(2, hop(z, tok))
        tok = self.step_b(2, 1, 1, hop(z, tok))
        self.step_d(3, T(28), hop(z, tok))
        self.mark("d1")
        self.mask_q(T(28), QM)
        self.qk_fast(K1, QM, S, ACC, spare, list(range(16)))
        self.softmax(S, R, T(8))
        self.pv(V1, R, O, AB, STG)
        self.mark("pass2_1")
        tok = self.step_p(3, O)
        tok = self.step_a(3, hop(z, tok))
        self.mark("a3")
        e("s_cmp_gt_u32 s2, 1")
        e("s_cbranch_scc1 L_done")
        self.step_b(3, 1, 2, hop(z, tok))
        self.mark("end")
        l = e.label("nonce")
        e(f"s_or_b32 s{sT0}, s2, s{sW}")
        e(f"s_cmp_lg_u32 s{sT0}, 0")
        e(f"s_cbranch_scc1 {l}")
        e(f"v_mov_b32 v{T(0)}, s{sN}")
        e(f"v_mov_b32 v{T(1)}, {NONCE}")
        e("s_mov_b64 exec, 1")
        e(f"buffer_store_dword v{T(0)}, v{T(1)}, {srd(SRD_WS)}, 0 offen sc1")
        e("s_mov_b64 exec, -1")
        e(f"{l}:")
        e("L_done:")
        self.epilogue()

    def epilogue(self):
        e = self.e
        self.dump_stamps()
        if self.calib:
            e(f"s_add_u32 s94, s94, {self.calib * 100}")
            e("L_cal:")
            e("s_memrealtime s[96:97]")
            e("s_waitcnt lgkmcnt(0)")
            e("s_sub_u32 s96, s96, s94")
            e("s_cmp_lt_i32 s96, 0")
            e("s_cbranch_scc1 L_cal")
        e("L_end:")
        e("s_endpgm")
        for blk in self.ool:
            for l in blk:
                e(l)
        e("L_code_end:")

    def text(self):
        self.build()
        head = [l for l in open(REF).read().split("\n") if l.startswith(";") and "@launch" not in l]
        body = self.e.finish()
        out = "\n".join(head) + "\n"
        out += "; @launch grid=(256,1,1) block=(256,1,1) lds=163840\n"
        out += '.amdgcn_target "amdgcn-amd-amdhsa--gfx950"\n.text\n'
        out += f".globl {KNAME}\n.p2align 8\n.type {KNAME},@function\n{KNAME}:\n"
        out += body
        out += '.section .rodata,"a"\n.p2align 6\n'
        out += f".amdhsa_kernel {KNAME}\n"
        out += "  .amdhsa_next_free_vgpr 512\n  .amdhsa_next_free_sgpr 102\n  .amdhsa_accum_offset 256\n"
        out += "  .amdhsa_group_segment_fixed_size 0\n  .amdhsa_kernarg_size 104\n"
        out += "  .amdhsa_user_sgpr_count 2\n  .amdhsa_user_sgpr_kernarg_segment_ptr 1\n"
        out += "  .amdhsa_system_sgpr_workgroup_id_x 1\n.end_amdhsa_kernel\n"
        return out


if __name__ == "__main__":
    cfg = eval(sys.argv[2]) if len(sys.argv) > 2 else {}
    g = Gen(**cfg)
    open(sys.argv[1], "w").write(g.text())
    print("ring", g.ring, "n_ring", g.n_ring, "items", len(g.items), "instructions", len(g.e.ins))
```

```python
import math
import re
import struct
import sys

from asmlib import Emitter

KNAME = "interleave_layers__gqa_block_cached__mixer_token_mlp__decode_kernel"
REF = "interleave_layers__gqa_block_cached__mixer_token_mlp__decode.s.ref"


def fbits(x):
    return "0x%08x" % struct.unpack("<I", struct.pack("<f", x))[0]


RA = 0
RD = RA + 256 * 640
RB = RD + 2 * 256 * 512
RC = RB + 4 * 8 * 2048
TB = RC + 2 * 2048
RX = TB + 8192 * 4
NONCE = RX + 256 * 8
XCH_END = NONCE + 128
STAMP_OFF = 0x10000000
STAMP_REGS = [94, 95, 96, 97, 98, 99, 88, 89, 92, 93]
TAGC = (0, 0x35, 0x6a, 0x9f)
TB_EXP = 100
TB_BASE = TB_EXP << 7
GELU_K = 2.0 * math.sqrt(2.0 / math.pi) * math.log2(math.e)

OW = QW = TW = 0
MLW = ST = 2048
ST2, YW, XS, OBF, SINK = 2112, 2176, 2432, 2688, 3712
SCRATCH = 4096

sW = 3
SRD_K, SRD_V, SRD_WS, SRD_X, SRD_WQ, SRD_WO, SRD_W1, SRD_B1, SRD_W2, SRD_OUT = (
    8, 12, 16, 20, 24, 28, 32, 36, 40, 44)
sTG = 48
sROT, sOFF, sG, sR, sRHO, sFAST, sLB, sB2, sPUBHI, sCNT, sXCC, sT0, sT1, sM, sL, sSPL = (
    4, 5, 6, 7, 52, 53, 54, 55, 56, 57, 58, 59, 60, 61, 62, 63)
sHI = 64
sODD = 66
sQ4 = 68
sBK = 76
sTP = 84
sN = 86
sFF = 87
sSTMP = 100
sTB = 90
sWOB = 91
sPA, sGA, sPB, sPD = 24, 25, 26, 27
sTG2 = 28
sGD = 58
sDY = 0
sBOOST = 1
sKA = 68

vLANE, vK, vV, vL = 0, 1, 2, 3
vMLO, vMHI, vIDX = 4, 5, 6
vTMP = 7
vT = 8


def srd(b):
    return f"s[{b}:{b + 3}]"


def v(a, n=1):
    return f"v{a}" if n == 1 else f"v[{a}:{a + n - 1}]"


def sp(a):
    return f"s[{a}:{a + 1}]"


class Gen:
    def __init__(self, depth=6, pace=250, stamps=False, spin=1 << 16,
                 win=((0, 3, 0, 0), (0, 4, 0, 5), (0, 4, 0, 0)),
                 wo_pol="nt", wq_pol="nt", force_slow=False, depth_a=8, depth_a_until=64, depth_s=9,
                 shadow=(10, 0), x_at=22, c_at=28, wo_at=6, calib=0, codepf=True, prewrite=False,
                 tiny=TB_BASE, tb_warm=104, mark_at=(), skip=(), wo_split=4, after_store=0, kv_pol="nt", wo_stag=False,
                 ack_local=False, depth_r=9, wo_pf=True, clk=False, depth_end=None, end_len=16,
                 cont=None, depth_w=5, max_touch=28, iwarm=False, boost=1, boost_rng=(66, 124), boost_odd=0,
                 dyn=None, near=28, far_per_near=2, out_scale=None):
        self.e = Emitter()
        self.depth = depth
        self.nwork = 40
        self.pace = pace
        self.stamps = stamps
        self.spin = spin
        self.win = win
        self.depth_a = depth_a
        self.depth_a_until = depth_a_until
        self.depth_s = depth_s
        self.depth_now = None
        self.wo_pol = wo_pol
        self.wq_pol = wq_pol
        self.force_slow = force_slow
        self.shadow = shadow
        self.c_at = c_at
        self.x_at = x_at
        self.wo_at = wo_at
        self.calib = calib
        self.codepf = codepf
        self.prewrite = prewrite
        self.tiny = tiny
        self.mark_at = mark_at
        self.wo_split = wo_split
        self.kv_pol = kv_pol
        self.ack_local = ack_local
        self.depth_r = depth_r
        self.wo_pf = wo_pf
        self.clk = clk
        self.depth_end = depth_end
        self.end_len = end_len
        self.cont = cont
        self.depth_w = depth_w
        self.max_touch = max_touch
        self.iwarm = iwarm
        self.boost = boost
        self.boost_rng = boost_rng
        self.boost_odd = boost_odd
        self.dyn = dyn
        self.near = near
        self.out_scale = out_scale
        self.far_per_near = far_per_near
        self.dyn_on = False
        self.dyn_k = 0
        self.chain = None
        self.chain_n = {}
        self.chain_at = 0
        self.chain_ool = {}
        self.ool_mark = 0
        self.seq = []
        self.n_touch = 0
        self.touched = set()
        self.stamp_info = {}
        self.pf_next = 0
        self.K = {}
        self.WT = None
        self.WQ = None
        self.tb_lds = False
        self.hold_tmp = False
        self.tb_pending = False
        self.switched = set()
        self.per_tick = 1
        self.wo_stag = wo_stag
        self.after_store = after_store
        self.wo_reg = None
        self.skip = skip
        self.tb_warm = tb_warm
        self.nvslot = (256 - self.nwork) // 4
        self.nhome = 128 - 64 - self.nvslot
        self.wave_lds = (163840 - SCRATCH) // 4
        self.WQO, self.WOO, self.HOME = 0, 4096, 8192
        self.RING = self.HOME + self.nhome * 1024
        self.ring = (self.wave_lds - self.RING) // 1024 - (1 if cont or dyn else 0)
        self.ool = []
        self.nstamp = 0
        self.stamp_names = []
        self.last_issue = 0
        self.items = []
        self.issued = 0
        self.toks = {}
        self.home = {}
        self.mode = "A"
        self.ctx = ""
        self.wo_done = 0
        self.tok_wo = None

    def T(self, i, n=1):
        assert i + n <= 32, (i, n)
        return v(vT + i, n)

    def mark(self, name):
        self.ctx = ""
        self.stamp(name)

    def stamp(self, name):
        if not self.stamps:
            return
        name = self.ctx + name
        if name != "start" and not re.fullmatch(self.stamps, name):
            return
        e = self.e
        e(f"{'s_memtime' if self.clk else 's_memrealtime'} {sp(sSTMP)}")
        e.wait_lg_all()
        e(f"s_mov_b32 s{STAMP_REGS[self.nstamp]}, s{sSTMP}")
        self.stamp_names.append(name)
        self.stamp_info[name] = len(set(self.items[:self.issued]) | self.touched)
        self.nstamp += 1

    def dump_stamps(self):
        if not self.stamps:
            return
        e = self.e
        for k in range(self.nstamp):
            e(f"v_writelane_b32 v{vT}, s{STAMP_REGS[k]}, {k}")
        e(f"s_lshl_b32 s{sT0}, s2, 2")
        e(f"s_add_u32 s{sT0}, s{sT0}, s{sW}")
        e(f"s_lshl_b32 s{sT0}, s{sT0}, 7")
        e(f"s_add_u32 s{sT0}, s{sT0}, {STAMP_OFF}")
        e(f"v_lshlrev_b32 v{vT + 1}, 2, v{vLANE}")
        e("s_mov_b32 exec_hi, 0")
        e(f"buffer_store_dword v{vT}, v{vT + 1}, {srd(SRD_WS)}, s{sT0} offen")

    def warm_code(self, name):
        if not self.iwarm:
            return
        e = self.e
        e("s_mov_b64 exec, 0")
        e(f"s_branch L_{name}_0")
        e(f"L_{name}_back:")
        e("s_mov_b64 exec, -1")

    def open_chain(self, name):
        self.chain = name
        self.ool_mark = len(self.ool)
        self.chain_n[name] = 0
        self.link(True)

    def link(self, force=False):
        if not self.iwarm or self.chain is None:
            return
        if not force and len(self.e.ins) - self.chain_at < 170:
            return
        k = self.chain_n[self.chain]
        self.e(f"L_{self.chain}_{k}:")
        self.e(f"s_cbranch_execz L_{self.chain}_{k + 1}")
        self.chain_n[self.chain] = k + 1
        self.chain_at = len(self.e.ins)

    def close_chain(self):
        self.chain_ool[self.chain] = (self.ool_mark, len(self.ool))
        self.chain = None

    def cycles(self):
        t = 0
        for i in self.e.ins[self.last_issue:]:
            t += 16 if i.mfma else 8 if (i.trans or i.op.startswith('v_pk_')) else 4 * i.states()
        return t

    def reg_home(self, k):
        if k < 64:
            return ("r", f"a[{4 * k}:{4 * k + 3}]")
        b = self.nwork + 4 * (k - 64)
        assert b + 3 < 256
        return ("r", v(b, 4))

    def cur_depth(self):
        if self.depth_now:
            return self.depth_now
        if self.depth_end and (128 - self.end_len <= self.issued < 128 or self.issued >= 256 - self.end_len):
            return self.depth_end
        return self.depth_a if self.issued < self.depth_a_until else self.depth

    def issue(self, paced=True):
        e = self.e
        if self.dyn_on:
            return self.dyn_issue(paced)
        if self.issued >= len(self.items):
            return False
        key = self.items[self.issued]
        kind, b, t = key
        if key not in self.home:
            if self.mode == "W":
                return self.touch(paced) if self.cont else False
            if kind == "V" and not self.v1_open:
                return False
            k = t - self.ring if kind == "K" else 64 + t - self.v1_lds
            if kind == "K" and k >= self.freed:
                return False
            self.home[key] = ("l", self.RING + 1024 * t) if k < 64 and kind == "V" else self.reg_home(k)
        if paced:
            d = self.cur_depth() - 1
            if self.boost and self.boost_rng[0] <= self.issued < self.boost_rng[1]:
                self.drain(d + self.boost)
                n = sum(1 for _, mb in e.vm if not mb) - self.boost
                if self.in_flight() == d + self.boost and n >= 0:
                    l = e.label("deep")
                    e(f"s_cmp_lg_u32 s{sBOOST}, 0")
                    e(f"s_cbranch_scc1 {l}")
                    e(f"s_waitcnt vmcnt({n})")
                    e(f"{l}:")
            else:
                self.drain(d)
        if b == 1 and kind not in self.switched:
            self.switched.add(kind)
            r = vK if kind == "K" else vV
            e(f"v_add_u32 v{r}, 0x4000000, v{r}")
        hk, hv = self.home[key]
        e(f"s_add_u32 s{sOFF}, s{sROT}, {t}")
        if hk == "l":
            e(f"s_add_u32 m0, s{sLB}, {hv}")
        e(f"s_and_b32 s{sOFF}, s{sOFF}, 63")
        e(f"s_lshl_b32 s{sOFF}, s{sOFF}, 12")
        va, sr = (vK, SRD_K) if kind == "K" else (vV, SRD_V)
        if hk == "l":
            self.toks[key] = e.vmem(f"buffer_load_dwordx4 v{va}, {srd(sr)}, s{sOFF} offen {self.kv_pol} lds")
        else:
            self.toks[key] = e.vmem(f"buffer_load_dwordx4 {hv}, v{va}, {srd(sr)}, s{sOFF} offen {self.kv_pol}")
        self.seq.append(self.toks[key])
        self.issued += 1
        self.last_issue = len(e.ins)
        if self.issued in self.mark_at:
            ctx, self.ctx = self.ctx, ""
            self.stamp(f"n{self.issued}")
            self.ctx = ctx

        if self.wo_reg is not None and self.wo_done < self.wo_split and self.issued % self.wo_at == 0:
            self.load_wo(self.wo_done)
            self.wo_done += 1
        return True

    def drain(self, k):
        if len(self.seq) > k:
            self.e.wait_vm(self.seq[len(self.seq) - k - 1])

    def in_flight(self):
        live = {id(t) for t, _ in self.e.vm}
        return sum(1 for t in self.seq if id(t) in live)

    def dyn_ops(self):
        e = self.e
        lr, ld = e.label("real"), e.label("dyn")
        return [f"s_min_u32 s{sOFF}, s{sDY}, {self.ring}", f"s_lshl_b32 s{sOFF}, s{sOFF}, 10",
                f"s_add_u32 s{sOFF}, s{sOFF}, s{sLB}", f"s_add_u32 m0, s{sOFF}, {self.RING}",
                f"s_min_u32 s{sOFF}, s{sDY}, {self.ring + self.near - 1}", f"s_add_u32 s{sOFF}, s{sOFF}, s{sROT}",
                f"s_and_b32 s{sOFF}, s{sOFF}, 63", f"s_lshl_b32 s{sOFF}, s{sOFF}, 12",
                f"s_cmp_lt_u32 s{sDY}, {self.ring}", f"s_cbranch_scc1 {lr}",
                f"buffer_load_dwordx4 v{vK}, {srd(SRD_K)}, s{sOFF} offen lds", f"s_branch {ld}", f"{lr}:",
                f"buffer_load_dwordx4 v{vK}, {srd(SRD_K)}, s{sOFF} offen nt lds", f"{ld}:",
                f"s_add_u32 s{sDY}, s{sDY}, 1"]

    def dyn_issue(self, paced):
        e = self.e
        if paced:
            self.drain(self.cur_depth() - 1)
        for o in self.dyn_ops():
            e(o)
        tok = e.vm_count()
        self.seq.append(tok)
        if self.issued < 128 + self.ring:
            self.toks[self.items[self.issued]] = tok
            self.issued += 1
        self.last_issue = len(e.ins)
        return True

    def touch(self, paced):
        e = self.e
        n = max(self.pf_next, self.issued)
        kind, b, t = self.items[n]
        if kind != "K" or self.n_touch >= self.max_touch:
            return False
        if paced:
            self.drain(self.cur_depth() - 1)
        e(f"s_add_u32 s{sOFF}, s{sROT}, {t}")
        e(f"s_add_u32 m0, s{sLB}, {self.RING + self.ring * 1024}")
        e(f"s_and_b32 s{sOFF}, s{sOFF}, 63")
        e(f"s_lshl_b32 s{sOFF}, s{sOFF}, 12")
        self.seq.append(e.vmem(f"buffer_load_dwordx4 v{vK}, {srd(SRD_K)}, s{sOFF} offen lds"))
        self.pf_next = n + 1
        self.n_touch += 1
        self.touched.add(self.items[n])
        self.last_issue = len(e.ins)
        return True

    def stream(self, k):
        for _ in range(k):
            self.issue()

    def burst(self, k):
        while k > 0 and self.issue(paced=False):
            k -= 1
        if self.mode == "W" and not (self.cont or self.dyn):
            while k > 0:
                k -= self.prefetch(k)

    def prefetch(self, k):
        e = self.e
        a = vT + 23
        n = max(self.pf_next, self.issued)
        kind, b, t = self.items[n]
        k = min(k, 8, 64 - t)
        e(f"s_add_u32 s{sOFF}, s{sROT}, {t}")
        e(f"v_lshrrev_b32 v{a}, 3, v{vLANE}")
        e(f"v_add_u32 v{a}, s{sOFF}, v{a}")
        e(f"v_and_b32 v{a}, 63, v{a}")
        e(f"v_lshlrev_b32 v{a}, 5, v{a}")
        e(f"v_bfi_b32 v{a}, 7, v{vLANE}, v{a}")
        e(f"v_lshlrev_b32 v{a}, 7, v{a}")
        e(f"s_mov_b32 m0, {SINK}")
        if k < 8:
            m = (1 << (8 * k)) - 1
            e(f"s_mov_b32 exec_lo, {m & 0xffffffff}")
            e(f"s_mov_b32 exec_hi, {m >> 32}")
        e.vmem(f"buffer_load_dword v{a}, {srd(SRD_K if kind == 'K' else SRD_V)}, s{sWOB} offen lds")
        if k < 8:
            e("s_mov_b64 exec, -1")
        self.pf_next = n + k
        return k

    def tick(self):
        if self.cycles() >= self.pace:
            self.stream(self.per_tick)

    def arrive(self, key):
        n = self.items.index(key)
        more = self.boost if self.boost_rng[0] <= self.issued < self.boost_rng[1] else 0
        while self.issued < min(n + self.cur_depth() + more, len(self.items)):
            if not self.issue():
                break
        assert self.issued > n
        self.e.wait_vm(self.toks[key])

    def qk_fast(self, keys, q, qm, S, acc, hook=None, arrive=None, side=None):
        e = self.e
        mask = lambda m: [f"v_cndmask_b32_e64 v{qm + 4 * m + i}, 0, v{q + i}, {sp(sBK + 2 * m)}" for i in range(4)]
        for o in mask(0) + mask(1):
            e(o)
        for u in range(18):
            gaps = [[], [], [], []]
            if u == 0:
                gaps = [mask(2), mask(3), [], []]
            if u >= 2:
                pu = u - 2
                a = acc + 4 * (pu % 3)
                dp = lambda r: f"quad_perm:[{r},{r},{r},{r}] row_mask:0xf bank_mask:0xf"
                gaps = [[f"v_mov_b32_dpp v{a}, v{a} {dp(0)}", f"v_mov_b32_dpp v{a + 2}, v{a + 2} {dp(2)}"],
                        [f"v_add_f32_dpp v{a}, v{a + 1}, v{a} {dp(1)}", f"v_add_f32_dpp v{a + 2}, v{a + 3}, v{a + 2} {dp(3)}"],
                        [f"v_add_f32 v{a}, v{a}, v{a + 2}"],
                        [f"v_cndmask_b32_e64 v{S + (pu >> 2)}, v{S + (pu >> 2)}, v{a}, {sp(sQ4 + 2 * (pu & 3))}"]]
            if u >= 16:
                for g in gaps:
                    for o in g:
                        e(o)
                continue
            more = side(u) if side else []
            a = acc + 4 * (u % 3)
            for m in range(4):
                t = 4 * u + m
                if arrive:
                    arrive(keys[t])
                kind, src = self.home[keys[t]]
                assert kind == "r"
                c = "0" if m == 0 else v(a, 4)
                e(f"v_mfma_f32_16x16x32_bf16 {v(a, 4)}, {src}, {v(qm + 4 * m, 4)}, {c}")
                if hook:
                    hook(t)
                for o in gaps[m]:
                    e(o)
                if m >= 2 and more:
                    o = more.pop(0)
                    e.lds(o) if o.startswith("ds_") else e(o)
            if not side or u < 6:
                self.link()
            self.tick()

    def wave_reduce(self, op, regs, fill=None):
        e = self.e
        for ctl in ("quad_perm:[1,0,3,2] row_mask:0xf", "quad_perm:[2,3,0,1] row_mask:0xf",
                    "row_half_mirror row_mask:0xf", "row_mirror row_mask:0xf",
                    "row_bcast:15 row_mask:0xa", "row_bcast:31 row_mask:0xc"):
            for _ in range(3 - len(regs)):
                if fill:
                    e(fill.pop(0))
            for r in regs:
                e(f"{op}_dpp v{r}, v{r}, v{r} {ctl} bank_mask:0xf")

    def softmax(self, S, R, tm, O):
        e = self.e
        c = 128 ** -0.5 * math.log2(math.e)
        self.link(True)
        fill = [f"v_mov_b32 v{O + i}, 0" for i in range(8)] + [f"v_mov_b32 v{tm + 1}, {fbits(c)}"]
        e(f"v_max3_f32 v{tm}, v{S}, v{S + 1}, v{S + 2}")
        e(f"v_max_f32 v{tm}, v{tm}, v{S + 3}")
        self.wave_reduce("v_max_f32", [tm], fill)
        for o in fill:
            e(o)
        e(f"v_mul_f32 v{tm}, {fbits(c)}, v{tm}")
        e(f"v_readlane_b32 s{sM}, v{tm}, 63")
        for i in range(4):
            e(f"v_fma_f32 v{S + i}, v{S + i}, v{tm + 1}, -s{sM}")
        for i in range(4):
            e(f"v_exp_f32 v{S + i}, v{S + i}")
        for i in range(4):
            e(f"v_cvt_pk_bf16_f32 v{R + 2 * i}, v{S + i}, v{S + i}")
            e(f"v_cvt_pk_bf16_f32 v{R + 2 * i + 1}, v{S + i}, v{S + i}")
        for i in range(4):
            e(f"v_mov_b32_dpp v{R + 2 * i}, v{R + 2 * i} row_shr:4 row_mask:0xf bank_mask:0xa")
            e(f"v_mov_b32_dpp v{R + 2 * i + 1}, v{R + 2 * i + 1} row_shl:4 row_mask:0xf bank_mask:0x5")
        e(f"v_add_f32 v{vTMP}, v{S}, v{S + 1}")
        e(f"v_add_f32 v{S + 2}, v{S + 2}, v{S + 3}")
        for i in range(4):
            e(f"v_permlane32_swap_b32 v{R + 2 * i}, v{R + 2 * i + 1}")
        e(f"v_add_f32 v{vTMP}, v{vTMP}, v{S + 2}")
        r = vTMP
        tail = [f"v_add_f32_dpp v{r}, v{r}, v{r} {ctl} bank_mask:0xf" for ctl in (
            "quad_perm:[1,0,3,2] row_mask:0xf", "quad_perm:[2,3,0,1] row_mask:0xf",
            "row_half_mirror row_mask:0xf", "row_mirror row_mask:0xf",
            "row_bcast:15 row_mask:0xa", "row_bcast:31 row_mask:0xc")]
        return tail + [f"v_readlane_b32 s{sL}, v{r}, 63"]

    def pv(self, keys, R, O, AB, stage, extra, late, arrive=None):
        e = self.e

        def build(u):
            c = u & 3
            a = AB + 4 * (u & 1)
            dp = f"quad_perm:[{c},{c},{c},{c}] row_mask:0xf bank_mask:0xf"
            r = R + 2 * (u >> 2)
            return [f"v_and_b32_dpp v{a}, v{r}, v{vMLO} {dp}", f"v_and_b32_dpp v{a + 1}, v{r}, v{vMHI} {dp}",
                    f"v_and_b32_dpp v{a + 2}, v{r + 1}, v{vMLO} {dp}", f"v_and_b32_dpp v{a + 3}, v{r + 1}, v{vMHI} {dp}"]

        def in_lds(p):
            return p < 32 and self.home.get(keys[2 * p], ("r",))[0] == "l"

        def fetch(p):
            if arrive:
                arrive(keys[2 * p + 1])
            e.lds(f"ds_read_b128 {v(stage, 4)}, v{vL} offset:{self.home[keys[2 * p]][1]}")
            return e.lds(f"ds_read_b128 {v(stage + 4, 4)}, v{vL} offset:{self.home[keys[2 * p + 1]][1]}")

        tok = fetch(0) if in_lds(0) else None
        for o in build(0):
            e(o)
        for u in range(16):
            nxt = build(u + 1) if u < 15 else []
            a = AB + 4 * (u & 1)
            for half in range(2):
                p = 2 * u + half
                for o in nxt[2 * half:2 * half + 2]:
                    e(o)
                if in_lds(p):
                    e.wait_lg(tok)
                    src = v(stage, 8)
                else:
                    if arrive:
                        arrive(keys[2 * p + 1])
                    h0, h1 = self.home[keys[2 * p]][1], self.home[keys[2 * p + 1]][1]
                    lo, hi = re.findall(r"\d+", h0), re.findall(r"\d+", h1)
                    assert h0[0] == h1[0] and int(lo[1]) + 1 == int(hi[0]), (h0, h1)
                    src = f"{h0[0]}[{lo[0]}:{hi[1]}]"
                e(f"v_smfmac_f32_16x16x64_bf16 {v(O + 4 * half, 4)}, {v(a, 4)}, {src}, v{vIDX}")
                if in_lds(p + 1):
                    tok = fetch(p + 1)
            if extra:
                e(extra.pop(0))
            elif not in_lds(2 * u + 2):
                for _ in range(-(-len(late) // (15 - u)) if u < 15 else len(late)):
                    o = late.pop(0)
                    if "ds_" in o:
                        e.lds(o)
                    else:
                        e(o)
            self.tick()
        assert not extra and not late

    def lane_const(self, name, d, t):
        L = vLANE
        if name == "pw":
            return [f"v_and_b32 v{d}, 15, v{L}", f"v_lshlrev_b32 v{d}, 5, v{d}", f"v_bfe_u32 v{t}, v{L}, 4, 1",
                    f"v_lshl_add_u32 v{d}, v{t}, 4, v{d}", f"v_lshrrev_b32 v{t}, 5, v{L}",
                    f"v_lshl_add_u32 v{d}, v{t}, 3, v{d}", f"v_lshl_add_u32 v{d}, s{sW}, 9, v{d}"]
        if name == "pr":
            return [f"v_and_b32 v{d}, 31, v{L}", f"v_lshlrev_b32 v{d}, 2, v{d}", f"v_lshl_add_u32 v{d}, s{sW}, 7, v{d}"]
        if name == "pa":
            return [f"v_lshlrev_b32 v{t}, 2, v{L}", f"v_lshl_add_u32 v{d}, s{sW}, 7, v{t}",
                    f"v_add_u32 v{t}, 384, v{t}", f"v_cndmask_b32_e64 v{d}, v{d}, v{t}, {sp(sHI)}"]
        if name == "tagc":
            return [f"v_and_b32 v{d}, 3, v{L}", f"v_mul_u32_u24 v{d}, {TAGC[1]}, v{d}"]
        if name == "ga":
            return [f"v_lshrrev_b32 v{t}, 5, v{L}", f"v_mul_u32_u24 v{t}, 640, v{t}", f"v_and_b32 v{d}, 31, v{L}",
                    f"v_lshl_add_u32 v{d}, v{d}, 4, v{t}"]
        if name == "gm":
            return [f"v_lshrrev_b32 v{t}, 5, v{L}", f"v_and_b32 v{d}, 7, v{L}", f"v_xor_b32 v{d}, v{d}, v{t}",
                    f"v_mul_u32_u24 v{d}, 640, v{d}"]
        if name == "gd":
            return [f"v_bfe_u32 v{t}, v{L}, 2, 2", f"v_lshlrev_b32 v{d}, 10, v{t}", f"v_lshrrev_b32 v{t}, 4, v{L}",
                    f"v_lshl_add_u32 v{d}, v{t}, 7, v{d}", f"v_and_b32 v{t}, 3, v{L}",
                    f"v_lshl_add_u32 v{d}, v{t}, 5, v{d}"]
        if name == "tr":
            return [f"v_and_b32 v{d}, 15, v{L}", f"v_lshl_add_u32 v{d}, v{d}, 3, s{sLB}", f"v_lshrrev_b32 v{t}, 4, v{L}",
                    f"v_lshl_add_u32 v{d}, v{t}, 8, v{d}"]
        raise KeyError(name)

    def cst(self, name, d, t):
        if name in self.K:
            return self.K[name]
        for o in self.lane_const(name, d, t):
            self.e(o)
        return d

    def tag_ops(self, dst, use, t=None):
        pre = [] if "tagc" in self.K else self.lane_const("tagc", dst, t)
        src = self.K.get("tagc", dst)
        return pre + [f"v_add3_u32 v{dst}, v{src}, s{sTB}, {use}"]

    def tag_reg(self, dst, use):
        for o in self.tag_ops(dst, use):
            self.e(o)

    def gather_tags(self, base, use):
        ops = []
        for k in range(4):
            ops += [f"s_add_u32 s{base + k}, s{sTB}, {use + TAGC[k]}", f"s_and_b32 s{base + k}, s{base + k}, 0xff"]
        return ops

    def tag(self, val, tg):
        self.e(f"v_bfi_b32 v{val}, s{sFF}, v{tg}, v{val}")

    def gather(self, tags, loads, regs, tmp, hooks, shadow=None):
        e = self.e
        tok = None
        self.link()
        self.stamp("prep")
        hooks[0]()
        for l in loads:
            if l.startswith("buffer_"):
                tok = e.vmem(l)
            else:
                e(l)
        self.stamp("iss")
        if shadow:
            shadow()
        hooks[1]()
        e.wait_vm(tok)
        self.stamp("first")
        chk = [f"v_xor_b32 v{r}, s{tags + k}, v{r}" for r, k in regs]
        rs = [r for r, _ in regs]
        chk.append(f"v_or3_b32 v{tmp}, v{rs[0]}, v{rs[1]}, v{rs[2]}")
        rs = rs[3:]
        while len(rs) >= 2:
            chk.append(f"v_or3_b32 v{tmp}, v{tmp}, v{rs[0]}, v{rs[1]}")
            rs = rs[2:]
        if rs:
            chk.append(f"v_or_b32 v{tmp}, v{tmp}, v{rs[0]}")
        chk.append(f"v_and_b32 v{tmp}, 0xff, v{tmp}")
        chk.append(f"v_cmp_ne_u32 vcc, 0, v{tmp}")
        self.retry(loads, chk)
        hooks[2]()
        self.tick()

    def retry(self, loads, chk):
        e = self.e
        lr, ll, ok = e.label("retry"), e.label("rloop"), e.label("ok")
        cnt = []
        name = self.ctx + "#retry"
        if self.stamps and re.fullmatch(self.stamps, name):
            r = STAMP_REGS[self.nstamp]
            e(f"s_mov_b32 s{r}, 0")
            cnt = [f"s_add_u32 s{r}, s{r}, 1"]
            self.stamp_names.append(name)
            self.nstamp += 1
        for c in chk:
            e(c)
        e(f"s_cbranch_vccnz {lr}")
        e(f"{ok}:")
        self.stamp("got")
        lx = e.label("rdone")
        blk = [f"{lr}:", f"s_mov_b32 s{sCNT}, {self.spin}", f"{ll}:", "s_mov_b64 exec, vcc"]
        if self.dyn_on and self.dyn_k:
            blk += cnt + list(loads) + [f"s_mov_b64 {sp(sTP)}, exec", "s_mov_b64 exec, -1"]
            for _ in range(self.dyn_k):
                blk += self.dyn_ops()
            blk += [f"s_mov_b64 exec, {sp(sTP)}", f"s_waitcnt vmcnt({self.dyn_k})"] + chk
        else:
            blk += cnt + list(loads) + ["s_waitcnt vmcnt(0)"] + chk
        blk += [f"s_cbranch_vccz {lx}", f"s_sub_u32 s{sCNT}, s{sCNT}, 1", f"s_cmp_lg_u32 s{sCNT}, 0",
                f"s_cbranch_scc1 {ll}", f"{lx}:", "s_mov_b64 exec, -1", f"s_branch {ok}"]
        self.ool.append(blk)

    def publish_local(self, ins, local=True):
        e = self.e
        if not local:
            return e.vmem(ins + " sc1")
        ls, ld = e.label("slow"), e.label("pub")
        e(f"s_cmp_eq_u32 s{sFAST}, 0")
        e(f"s_cbranch_scc1 {ls}")
        tok = e.vmem(ins)
        e(f"{ld}:")
        self.ool.append([f"{ls}:", ins + " sc1", f"s_branch {ld}"])
        return tok

    def wave0(self, body):
        e = self.e
        l = e.label("w0")
        e(f"s_cmp_lg_u32 s{sW}, 0")
        e(f"s_cbranch_scc1 {l}")
        e.begin_cond()
        r = body()
        e.end_cond()
        e(f"{l}:")
        return r

    def barrier(self, tick=True):
        if tick:
            self.tick()
        self.e.wait_lg_all()
        self.e("s_barrier")
        self.stamp("bar")
        if tick:
            self.link()

    def half_sum(self, a):
        e = self.e
        e(f"v_permlane32_swap_b32 v{a}, v{a + 2}")
        e(f"v_permlane32_swap_b32 v{a + 1}, v{a + 3}")
        e(f"v_add_f32 v{a}, v{a}, v{a + 2}")
        e(f"v_add_f32 v{a + 1}, v{a + 1}, v{a + 3}")

    def prep_p(self, use):
        T = lambda i: vT + i
        ops = []
        self.cp = {}
        for name, d in (("pw", T(24)), ("pr", T(25)), ("pa", T(26)), ("ga", T(28)), ("gm", T(29))):
            if name in self.K:
                self.cp[name] = self.K[name]
            else:
                ops += self.lane_const(name, d, T(30))
                self.cp[name] = d
        ops += self.tag_ops(T(27), use, T(30)) + self.gather_tags(sTG, use)
        ops += [f"v_mov_b32 v{T(30)}, s{sM}", f"v_mov_b32 v{T(31)}, s{sL}", f"v_lshlrev_b32_e64 v{vTMP}, 3, s{sW}",
                "s_mov_b64 exec, 1\n" + f"ds_write_b64 v{vTMP}, {v(T(30), 2)} offset:{MLW}\n" + "s_mov_b64 exec, -1",
                f"v_mov_b32 v{vTMP}, 0"]
        return ops

    def step_p(self, use, O):
        self.ctx = f"p{use}."
        e = self.e
        T = lambda i: vT + i
        c = self.cp
        self.link(True)
        for r in range(4):
            e(f"v_cndmask_b32_e64 v{O + r}, v{O + r}, v{O + 4 + r}, {sp(sHI)}")
        self.half_sum(O)
        e.lds(f"ds_write_b64 v{c['pw']}, {v(O, 2)} offset:{OW}")
        self.barrier()
        e.lds(f"ds_read_b128 {v(T(0), 4)}, v{vTMP} offset:{MLW}")
        t1 = e.lds(f"ds_read_b128 {v(T(4), 4)}, v{vTMP} offset:{MLW + 16}")
        for w in range(4):
            t2 = e.lds(f"ds_read_b32 v{T(8 + w)}, v{c['pr']} offset:{OW + 512 * w}")
        e.wait_lg(t1)
        e(f"v_max3_f32 v{T(14)}, v{T(0)}, v{T(2)}, v{T(4)}")
        e(f"v_max_f32 v{T(14)}, v{T(14)}, v{T(6)}")
        for w in range(4):
            e(f"v_sub_f32 v{T(2 * w)}, v{T(2 * w)}, v{T(14)}")
        for w in range(4):
            e(f"v_exp_f32 v{T(2 * w)}, v{T(2 * w)}")
        e(f"v_lshlrev_b32 v{T(13)}, 8, v{T(14)}")
        e(f"v_cndmask_b32_e64 v{T(14)}, v{T(14)}, v{T(13)}, {sp(sQ4 + 4)}")
        e.wait_lg(t2)
        for w in range(4):
            e(f"v_cndmask_b32_e64 v{T(8 + w)}, v{T(8 + w)}, v{T(2 * w + 1)}, {sp(sHI)}")
        e(f"v_mul_f32 v{T(15)}, v{T(0)}, v{T(8)}")
        for w in range(1, 4):
            e(f"v_fmac_f32 v{T(15)}, v{T(2 * w)}, v{T(8 + w)}")
        e(f"v_cndmask_b32_e64 v{T(15)}, v{T(15)}, v{T(14)}, {sp(sODD)}")
        self.tag(T(15), T(27))
        e(f"s_mov_b32 exec_hi, s{sPUBHI}")
        tok = self.publish_local(f"buffer_store_dword v{T(15)}, v{c['pa']}, {srd(SRD_WS)}, s{sPA} offen")
        e("s_mov_b32 exec_hi, -1")
        return tok

    def read_wt(self, dst, addr):
        e = self.e
        for n in range(4):
            e.lds(f"ds_read_b64_tr_b16 {v(dst + 4 * n, 2)}, v{addr} offset:{self.WOO + 1024 * n}")
            e.lds(f"ds_read_b64_tr_b16 {v(dst + 4 * n + 2, 2)}, v{addr} offset:{self.WOO + 1024 * n + 128}")

    def step_a(self, use, hooks):
        self.ctx = f"a{use}."
        e = self.e
        T = lambda i: vT + i
        c = self.cp
        loads = [f"buffer_load_dwordx4 {v(T(16), 4)}, v{c['gm']}, {srd(SRD_WS)}, s{sGA} offen offset:512 sc1"]
        loads += [f"buffer_load_dwordx4 {v(T(4 * u), 4)}, v{c['ga']}, {srd(SRD_WS)}, s{sGA} offen offset:{1280 * u} sc1"
                  for u in range(4)]
        ow, orr, tr, yw = T(21), T(24), T(25), T(26)

        def shadow():
            e(f"v_and_b32 v{ow}, 31, v{vLANE}")
            e(f"v_lshlrev_b32 v{ow}, 3, v{ow}")
            e(f"v_lshrrev_b32 v{T(22)}, 5, v{vLANE}")
            e(f"v_lshl_add_u32 v{ow}, v{T(22)}, 2, v{ow}")
            e(f"v_lshl_add_u32 v{ow}, s{sW}, 8, v{ow}")
            e(f"v_and_b32 v{T(22)}, 48, v{vLANE}")
            e(f"v_lshl_add_u32 v{orr}, s{sW}, 8, v{T(22)}")
            e(f"v_lshl_add_u32 v{yw}, s{sW}, 6, v{T(22)}")
            if self.WT is None:
                self.cst("tr", tr, T(22))
            e(f"s_add_u32 s{sT0}, s{sPB}, {use * 16384}")

        self.gather(sTG, loads, [(T(i), i & 3) for i in list(range(16, 20)) + list(range(16))], T(20), hooks, shadow)
        m, l, t = T(16), T(17), T(20)
        e(f"v_lshrrev_b32 v{T(18)}, 8, v{T(18)}")
        e(f"v_or_b32 v{m}, v{m}, v{T(18)}")
        e(f"v_max_f32_dpp v{t}, v{m}, v{m} quad_perm:[1,0,3,2] row_mask:0xf bank_mask:0xf")
        e(f"v_max_f32_dpp v{t}, v{t}, v{t} quad_perm:[2,3,0,1] row_mask:0xf bank_mask:0xf")
        e(f"v_max_f32_dpp v{t}, v{t}, v{t} row_half_mirror row_mask:0xf bank_mask:0xf")
        e(f"v_sub_f32 v{m}, v{m}, v{t}")
        e(f"v_exp_f32 v{m}, v{m}")
        e(f"v_mul_f32 v{l}, v{m}, v{l}")
        acc = T(28)
        lch = [f"v_add_f32_dpp v{l}, v{l}, v{l} quad_perm:[1,0,3,2] row_mask:0xf bank_mask:0xf",
               f"v_add_f32_dpp v{l}, v{l}, v{l} quad_perm:[2,3,0,1] row_mask:0xf bank_mask:0xf",
               f"v_add_f32_dpp v{l}, v{l}, v{l} row_half_mirror row_mask:0xf bank_mask:0xf",
               f"v_rcp_f32 v{l}, v{l}"]
        for u in range(4):
            for k in range(4):
                op = "v_mul_f32_dpp" if u == 0 else "v_fmac_f32_dpp"
                e(f"{op} v{acc + k}, v{m}, v{T(4 * u + k)} row_newbcast:{2 * u} row_mask:0xf bank_mask:0xf")
            e(lch[u])
        self.tick()
        wt = self.WT
        if wt is None:
            e.wait_vm(self.tok_wo)
            wt = T(0)
            self.read_wt(wt, tr)
        self.half_sum(acc)
        e(f"v_mul_f32 v{acc}, v{acc}, v{l}")
        e(f"v_mul_f32 v{acc + 1}, v{acc + 1}, v{l}")
        e(f"v_cvt_pk_bf16_f32 v{acc}, v{acc}, v{acc + 1}")
        e.lds(f"ds_write_b32 v{ow}, v{acc} offset:{OBF}")
        D = T(20)
        if self.WT is None:
            bb = [T(16), T(28), T(16), T(28)]
            tb = [e.lds(f"ds_read_b128 {v(bb[n], 4)}, v{orr} offset:{OBF + 64 * n}") for n in range(2)]
        else:
            bb = [T(0), T(4), T(8), T(12)]
            tb = [e.lds(f"ds_read_b128 {v(bb[n], 4)}, v{orr} offset:{OBF + 64 * n}") for n in range(4)]
        for n in range(4):
            e.wait_lg(tb[n])
            cc = "0" if n == 0 else v(D, 4)
            e(f"v_mfma_f32_16x16x32_bf16 {v(D, 4)}, {v(wt + 4 * n, 4)}, {v(bb[n], 4)}, {cc}")
            if len(tb) < 4:
                tb.append(e.lds(f"ds_read_b128 {v(bb[n + 2], 4)}, v{orr} offset:{OBF + 64 * (n + 2)}"))
        e(f"v_lshlrev_b32 v{T(0)}, 2, v{vLANE}")
        e("s_mov_b32 exec_lo, 0x00010001")
        e("s_mov_b32 exec_hi, 0x00010001")
        e.lds(f"ds_write_b128 v{yw}, {v(D, 4)} offset:{YW}")
        e("s_mov_b64 exec, -1")
        self.barrier()

        def pub():
            e("s_mov_b64 exec, 0xffff")
            for w in range(4):
                e(f"ds_read_b32 v{T(2 + w)}, v{T(0)} offset:{YW + 64 * w}")
            e("s_waitcnt lgkmcnt(0)")
            e(f"v_add_f32 v{T(2)}, v{T(2)}, v{T(3)}")
            e(f"v_add_f32 v{T(4)}, v{T(4)}, v{T(5)}")
            e(f"v_add_f32 v{T(2)}, v{T(2)}, v{T(4)}")
            self.tag(T(2), T(27))
            tok = e.vmem(f"buffer_store_dword v{T(2)}, v{T(0)}, {srd(SRD_WS)}, s{sT0} offen sc1", maybe=True)
            e("s_mov_b64 exec, -1")
            return tok

        return self.wave0(pub)

    def build_table(self):
        self.ctx = "t."
        e = self.e
        T = lambda i: vT + i
        LA, LB = self.RING, self.RING + 172 * 16
        e(f"s_mul_i32 s{sT0}, s{sW}, 688")
        e(f"v_lshlrev_b32 v{T(28)}, 4, v{vLANE}")
        e.vmem(f"buffer_load_dwordx4 {v(T(0), 4)}, v{T(28)}, {srd(SRD_W1)}, s{sT0} offen")
        e.vmem(f"buffer_load_dwordx4 {v(T(4), 4)}, v{T(28)}, {srd(SRD_B1)}, s{sT0} offen")
        tok = e.vmem(f"buffer_load_dwordx4 {v(T(8), 4)}, v{T(28)}, {srd(SRD_W2)}, s{sT0} offen")
        self.stream(self.cur_depth() - 1)
        e(f"v_lshl_add_u32 v{T(29)}, v{vLANE}, 6, s{sLB}")
        e(f"v_lshl_add_u32 v{T(30)}, v{vLANE}, 5, s{sLB}")
        e.wait_vm(tok)
        e("s_mov_b32 exec_hi, 0x7ff")
        for p in range(4):
            q = T(12 + 6 * (p & 1))
            e(f"v_lshlrev_b32 v{q}, 16, v{T(p)}")
            e(f"v_and_b32 v{q + 1}, 0xffff0000, v{T(p)}")
            e(f"v_lshlrev_b32 v{q + 2}, 16, v{T(4 + p)}")
            e(f"v_and_b32 v{q + 3}, 0xffff0000, v{T(4 + p)}")
            e(f"v_lshlrev_b32 v{q + 4}, 16, v{T(8 + p)}")
            e(f"v_and_b32 v{q + 5}, 0xffff0000, v{T(8 + p)}")
            e.lds(f"ds_write_b128 v{T(29)}, {v(q, 4)} offset:{LA + 16 * p}")
            e.lds(f"ds_write_b64 v{T(30)}, {v(q + 4, 2)} offset:{LB + 8 * p}")
            if p == 1:
                e.wait_lg_all()
        e("s_mov_b32 exec_hi, -1")
        H, aA, aB, U, E, ACC = T(24), T(26), T(27), T(0), T(2), T(4)
        e(f"s_and_b32 s{sT0}, s2, 127")
        e(f"s_lshl_b32 s{sT0}, s{sT0}, 5")
        e(f"v_and_b32 v{H}, 31, v{vLANE}")
        e(f"v_add_u32 v{H}, s{sT0}, v{H}")
        e(f"v_cmp_ne_u32 vcc, 0, v{H}")
        e(f"s_lshr_b32 s{sT0}, s2, 7")
        e(f"s_lshl_b32 s{sT0}, s{sT0}, 15")
        e(f"s_add_u32 s{sT0}, s{sT0}, {TB_BASE}")
        e(f"v_add_u32 v{H}, s{sT0}, v{H}")
        e(f"v_lshlrev_b32 v{H}, 16, v{H}")
        e(f"v_cndmask_b32 v{H}, 0, v{H}, vcc")
        e(f"v_lshrrev_b32 v{aB}, 5, v{vLANE}")
        e(f"v_mul_u32_u24 v{aA}, {86 * 16}, v{aB}")
        e(f"v_mul_u32_u24 v{aB}, {86 * 8}, v{aB}")
        e(f"v_add_u32 v{aA}, s{sLB}, v{aA}")
        e(f"v_add_u32 v{aB}, s{sLB}, v{aB}")
        e(f"s_mov_b32 s{sTG}, {fbits(-GELU_K * 0.044715)}")
        e(f"s_mov_b32 s{sTG + 1}, {fbits(-GELU_K)}")
        e(f"v_mov_b32 v{ACC}, 0")
        e(f"v_mov_b32 v{ACC + 1}, 0")
        e.wait_lg_all()
        buf = [T(8), T(16)]
        if "wo" not in self.skip:
            e(f"v_lshrrev_b32 v{T(28)}, 1, v{vLANE}")
            e(f"v_lshlrev_b32 v{T(28)}, 10, v{T(28)}")
            e(f"v_and_b32 v{T(29)}, 1, v{vLANE}")
            e(f"v_lshl_add_u32 v{T(28)}, v{T(29)}, 4, v{T(28)}")
            self.wo_reg = T(28)

        def fetch(i):
            q = buf[i & 1]
            e.lds(f"ds_read_b128 {v(q, 4)}, v{aA} offset:{LA + 16 * i}")
            return e.lds(f"ds_read_b64 {v(q + 4, 2)}, v{aB} offset:{LB + 8 * i}")

        tk = fetch(0)
        for i in range(86):
            nx = fetch(i + 1) if i < 85 else None
            q = buf[i & 1]
            e.wait_lg(tk)
            self.gelu_pair(H, q, q + 2, q + 4, U, E, ACC)
            tk = nx
            self.tick()
        while self.wo_reg is not None and self.wo_done < self.wo_split:
            self.stream(1)
        self.wo_reg = None
        e(f"v_add_f32 v{ACC}, v{ACC}, v{ACC + 1}")
        e(f"s_lshl_b32 s{sT0}, s{sW}, 7")
        e(f"v_mov_b32 v{ACC + 1}, v{ACC}")
        e(f"v_lshlrev_b32 v{T(7)}, 2, v{vLANE}")
        e(f"v_add_u32 v{T(6)}, s{sT0}, v{T(7)}")
        e(f"v_permlane32_swap_b32 v{ACC}, v{ACC + 1}")
        e(f"v_add_f32 v{ACC}, v{ACC}, v{ACC + 1}")
        self.barrier()
        e("s_mov_b32 exec_hi, 0")
        e.lds(f"ds_write_b32 v{T(6)}, v{ACC} offset:{TW}")
        e("s_mov_b32 exec_hi, -1")
        self.barrier()

        def pub():
            e("s_mov_b32 exec_hi, 0")
            for w in range(4):
                e(f"ds_read_b32 v{T(w)}, v{T(7)} offset:{TW + 128 * w}")
            e(f"s_lshl_b32 s{sT0}, s2, 7")
            e(f"s_add_u32 s{sT0}, s{sT0}, {TB}")
            e("s_waitcnt lgkmcnt(0)")
            e(f"v_add_f32 v{T(0)}, v{T(0)}, v{T(1)}")
            e(f"v_add_f32 v{T(2)}, v{T(2)}, v{T(3)}")
            e(f"v_add_f32 v{T(0)}, v{T(0)}, v{T(2)}")
            e(f"v_add_f32 v{T(0)}, s{sB2}, v{T(0)}")
            e.vmem(f"buffer_store_dword v{T(0)}, v{T(7)}, {srd(SRD_WS)}, s{sT0} offen sc1", maybe=True)
            e("s_mov_b32 exec_hi, -1")

        self.wave0(pub)

    def gelu_pair(self, H, W1, B1, W2, U, E, ACC):
        e = self.e
        c = sp(sTG)
        e(f"v_pk_fma_f32 {v(U, 2)}, {v(H, 2)}, {v(W1, 2)}, {v(B1, 2)} op_sel_hi:[0,1,1]")
        e(f"v_pk_mul_f32 {v(E, 2)}, {v(U, 2)}, {v(U, 2)}")
        e(f"v_pk_fma_f32 {v(E, 2)}, {v(E, 2)}, {c}, {c} op_sel:[0,0,1] op_sel_hi:[1,0,1]")
        e(f"v_pk_mul_f32 {v(E, 2)}, {v(U, 2)}, {v(E, 2)}")
        e(f"v_exp_f32 v{E}, v{E}")
        e(f"v_exp_f32 v{E + 1}, v{E + 1}")
        e(f"v_pk_mul_f32 {v(U, 2)}, {v(U, 2)}, {v(W2, 2)}")
        e(f"v_pk_add_f32 {v(E, 2)}, {v(E, 2)}, 1.0 op_sel_hi:[1,0]")
        e(f"v_rcp_f32 v{E}, v{E}")
        e(f"v_rcp_f32 v{E + 1}, v{E + 1}")
        e(f"v_pk_fma_f32 {v(ACC, 2)}, {v(U, 2)}, {v(E, 2)}, {v(ACC, 2)}")

    def warm_table(self):
        e = self.e
        e(f"s_lshl_b32 s{sOFF}, s{sR}, 2")
        e(f"s_add_u32 s{sOFF}, s{sOFF}, s{sW}")
        e(f"s_lshl_b32 s{sOFF}, s{sOFF}, 8")
        e(f"s_add_u32 s{sOFF}, s{sOFF}, {TB}")
        e(f"s_mov_b32 m0, {SINK}")
        e(f"v_lshlrev_b32 v{vTMP}, 2, v{vLANE}")
        e.vmem(f"buffer_load_dword v{vTMP}, {srd(SRD_WS)}, s{sOFF} offen sc1 lds")

    def mixer_direct(self, pk, y, flags, back):
        T = lambda i: vT + i
        e = self.e
        lines = []
        A = lines.append
        h, f, U, E, acc, w = T(0), T(1), T(2), T(3), T(4), T(5)
        for c in range(2):
            l0, l1, l2 = e.label("mx"), e.label("mxf"), e.label("mxe")
            A(f"{l0}:")
            A(f"s_cmp_eq_u64 {sp(flags[c])}, 0")
            A(f"s_cbranch_scc1 {l2}")
            A(f"s_ff1_i32_b64 s{sCNT}, {sp(flags[c])}")
            A(f"s_bitset0_b64 {sp(flags[c])}, s{sCNT}")
            A(f"v_readlane_b32 s{sOFF}, v{pk}, s{sCNT}")
            A(f"s_lshl_b32 s{sOFF}, s{sOFF}, 16" if c == 0 else f"s_and_b32 s{sOFF}, s{sOFF}, 0xffff0000")
            A(f"v_mov_b32 v{h}, s{sOFF}")
            A(f"v_lshlrev_b32 v{f}, 1, v{vLANE}")
            A(f"v_mov_b32 v{acc}, 0")
            A(f"s_mov_b32 s{sOFF}, 0")
            A(f"{l1}:")
            A(f"buffer_load_ushort v{w}, v{f}, {srd(SRD_W1)}, s{sOFF} offen")
            A(f"buffer_load_ushort v{w + 1}, v{f}, {srd(SRD_B1)}, s{sOFF} offen")
            A(f"buffer_load_ushort v{w + 2}, v{f}, {srd(SRD_W2)}, s{sOFF} offen")
            A("s_waitcnt vmcnt(0)")
            for i in range(3):
                A(f"v_lshlrev_b32 v{w + i}, 16, v{w + i}")
            A(f"v_fma_f32 v{U}, v{h}, v{w}, v{w + 1}")
            A(f"v_mul_f32 v{E}, v{U}, v{U}")
            A(f"v_mul_f32 v{E}, {fbits(-GELU_K * 0.044715)}, v{E}")
            A(f"v_add_f32 v{E}, {fbits(-GELU_K)}, v{E}")
            A(f"v_mul_f32 v{E}, v{U}, v{E}")
            A(f"v_exp_f32 v{E}, v{E}")
            A(f"v_mul_f32 v{U}, v{U}, v{w + 2}")
            A(f"v_add_f32 v{E}, 1.0, v{E}")
            A(f"v_rcp_f32 v{E}, v{E}")
            A(f"s_add_u32 s{sOFF}, s{sOFF}, 128")
            A(f"s_cmp_lt_u32 s{sOFF}, 2752")
            A(f"v_fmac_f32 v{acc}, v{U}, v{E}")
            A(f"s_cbranch_scc1 {l1}")
            for ctl in ("quad_perm:[1,0,3,2] row_mask:0xf", "quad_perm:[2,3,0,1] row_mask:0xf",
                        "row_half_mirror row_mask:0xf", "row_mirror row_mask:0xf",
                        "row_bcast:15 row_mask:0xa", "row_bcast:31 row_mask:0xc"):
                A(f"v_add_f32_dpp v{acc}, v{acc}, v{acc} {ctl} bank_mask:0xf")
            A(f"v_add_f32 v{acc}, s{sB2}, v{acc}")
            A(f"v_readlane_b32 s{sOFF}, v{acc}, 63")
            A(f"s_mov_b32 m0, s{sCNT}")
            A("s_nop 3")
            A(f"v_writelane_b32 v{y + c}, s{sOFF}, m0")
            A(f"s_branch {l0}")
            A(f"{l2}:")
        A(f"s_branch {back}")
        return lines

    def step_b(self, use, b, layer, hooks):
        self.ctx = f"b{use}."
        e = self.e
        T = lambda i: vT + i
        e(f"v_lshrrev_b32 v{T(28)}, 5, v{vLANE}")
        e(f"v_and_b32 v{T(29)}, 31, v{vLANE}")
        e(f"s_lshl_b32 s{sT0}, s{sW}, 9")
        e(f"v_lshl_add_u32 v{T(30)}, v{T(29)}, 4, s{sT0}")
        e(f"v_lshl_add_u32 v{T(27)}, v{T(28)}, 11, v{T(30)}")
        e(f"v_lshl_add_u32 v{T(30)}, v{T(28)}, 3, v{T(30)}")
        loads = []
        if layer == 1:
            e(f"v_lshrrev_b32 v{T(29)}, 1, v{T(30)}")
            e.vmem(f"buffer_load_dword v{T(16)}, v{T(29)}, {srd(SRD_X)}, 0 offen offset:{1024 * b}")
            e(f"s_mov_b32 s{sM}, {RB + use * 16384}")
        else:
            e(f"s_xor_b32 s{sL}, s2, 1")
            e(f"s_lshl_b32 s{sT0}, s{sL}, 11")
            e(f"s_add_u32 s{sT0}, s{sT0}, {RC}")
            e.vmem(f"buffer_load_dwordx2 {v(T(16), 2)}, v{T(30)}, {srd(SRD_WS)}, s{sT0} offen sc1")
            e(f"s_lshl_b32 s{sM}, s{sL}, 15")
            e(f"s_add_u32 s{sM}, s{sM}, {RB + 16384}")
            e(f"s_lshl_b32 s{sT0}, s2, 1")
            e(f"s_sub_u32 s{sTB}, s{sTB}, s{sT0}")
            for o in self.gather_tags(sTG, use):
                e(o)
        for u in range(4):
            loads.append(f"s_add_u32 s{sT1}, s{sM}, {4096 * u}")
            loads.append(f"buffer_load_dwordx4 {v(T(4 * u), 4)}, v{T(27)}, {srd(SRD_WS)}, s{sT1} offen sc1")
        e(f"s_lshl_b32 s{sT0}, s{sW}, 3")
        e(f"v_mov_b32 v{T(26)}, s{sT0}")
        e(f"v_mov_b32 v{T(31)}, 0")
        self.gather(sTG, loads, [(T(i), i & 3) for i in range(16)], T(25), hooks)
        x = T(16)
        for k in range(4):
            e(f"v_add_f32 v{T(k)}, v{T(k)}, v{T(4 + k)}")
            e(f"v_add_f32 v{T(8 + k)}, v{T(8 + k)}, v{T(12 + k)}")
        for k in range(4):
            e(f"v_add_f32 v{T(k)}, v{T(k)}, v{T(8 + k)}")
        if layer == 1:
            e(f"v_and_b32 v{x + 1}, 0xffff0000, v{x}")
            e(f"v_lshlrev_b32 v{x}, 16, v{x}")
        self.half_sum(T(0))
        e(f"v_add_f32 v{x}, v{x}, v{T(0)}")
        e(f"v_add_f32 v{x + 1}, v{x + 1}, v{T(1)}")
        self.pair_stats(x, T(18), T(26), ST)
        self.barrier()
        mean, var, rs = self.read_stats(T(0), T(31), ST)
        e(f"v_add_f32 v{rs}, {fbits(1e-5)}, v{var}")
        e(f"v_rsq_f32 v{rs}, v{rs}")
        h = T(18)
        e(f"v_sub_f32 v{h}, v{x}, v{mean}")
        e(f"v_mul_f32 v{var}, v{var}, v{rs}")
        e(f"v_fmaak_f32 v{var}, v{var}, v{rs}, {fbits(1e-5)}")
        e(f"v_rsq_f32 v{var}, v{var}")
        e(f"v_sub_f32 v{h + 1}, v{x + 1}, v{mean}")
        e(f"v_mul_f32 v{rs}, v{rs}, v{var}")
        e(f"v_mul_f32 v{h}, v{h}, v{rs}")
        e(f"v_mul_f32 v{h + 1}, v{h + 1}, v{rs}")
        pk, y = T(28), T(20)
        e(f"v_cvt_pk_bf16_f32 v{pk}, v{h}, v{h + 1}")
        e(f"s_movk_i32 s{sT0}, 0xfff")
        e(f"s_mov_b32 s{sT1}, {TB}")
        e(f"v_and_b32 v{T(8)}, 0x7fff, v{pk}")
        e(f"v_bfe_u32 v{T(9)}, v{pk}, 16, 15")
        e(f"v_bfe_u32 v{T(10)}, v{pk}, 15, 1")
        e(f"v_lshrrev_b32 v{T(11)}, 31, v{pk}")
        for c in range(2):
            e(f"v_subrev_u32 v{T(12 + c)}, {TB_BASE}, v{T(8 + c)}")
        for c in range(2):
            e(f"v_med3_i32 v{T(12 + c)}, v{T(12 + c)}, 0, s{sT0}")
        for c in range(2):
            e(f"v_lshl_add_u32 v{T(12 + c)}, v{T(10 + c)}, 12, v{T(12 + c)}")
        if self.tb_lds:
            e(f"s_mov_b32 s{sT1}, {self.wave_lds - 8192}")
            for c in range(2):
                e(f"v_lshrrev_b32 v{T(14 + c)}, 11, v{T(12 + c)}")
                e(f"v_lshlrev_b32 v{T(12 + c)}, 2, v{T(12 + c)}")
            for c in range(2):
                e(f"v_mad_u32_u24 v{T(12 + c)}, v{T(14 + c)}, s{sT1}, v{T(12 + c)}")
                tok = e.lds(f"ds_read_b32 v{y + c}, v{T(12 + c)} offset:{SCRATCH + self.HOME}")
        else:
            for c in range(2):
                e(f"v_lshlrev_b32 v{T(12 + c)}, 2, v{T(12 + c)}")
                tok = e.vmem(f"buffer_load_dword v{y + c}, v{T(12 + c)}, {srd(SRD_WS)}, s{sT1} offen sc1")
        hooks[3]()
        e(f"s_mov_b32 s{sT0}, {self.tiny}")
        for c in range(2):
            e(f"v_add_u32 v{T(8 + c)}, -1, v{T(8 + c)}")
        e(f"v_cmp_gt_u32 {sp(sTG)}, s{sT0}, v{T(8)}")
        e(f"v_cmp_gt_u32 {sp(sTG + 2)}, s{sT0}, v{T(9)}")
        if layer == 1:
            e(f"s_lshl_b32 s{sT0}, s{sSPL}, 8")
            e(f"v_subrev_u32 v{T(24)}, s{sT0}, v{T(30)}")
            e(f"s_movk_i32 s{sT0}, 0x100")
            e(f"v_cmp_gt_u32 {sp(sTP)}, s{sT0}, v{T(24)}")
            e(f"s_lshl_b32 s{sT0}, s{sW}, 6")
            e(f"v_lshrrev_b32 v{T(25)}, 4, v{vLANE}")
            e(f"v_lshl_add_u32 v{T(25)}, v{T(25)}, 4, s{sT0}")
            self.gd = self.cst("gd", vTMP, T(22))
            for o in self.gather_tags(sTG2, 2 + b):
                e(o)
        e(f"s_or_b64 vcc, {sp(sTG)}, {sp(sTG + 2)}")
        if self.tb_lds:
            e.wait_lg(tok)
        else:
            e.wait_vm(tok)
        lm, lb = e.label("tiny"), e.label("mixed")
        e(f"s_cbranch_vccnz {lm}")
        e(f"{lb}:")
        self.ool.append([f"{lm}:"] + self.mixer_direct(pk, y, (sTG, sTG + 2), lb))
        self.stamp("mix")
        e(f"v_add_f32 v{x}, v{x}, v{y}")
        e(f"v_add_f32 v{x + 1}, v{x + 1}, v{y + 1}")
        if layer == 2:
            e(f"v_lshrrev_b32 v{T(29)}, 1, v{T(30)}")
            e(f"s_lshl_b32 s{sT0}, s{sL}, 10")
            if self.out_scale:
                e(f"v_mul_f32 v{x}, {fbits(self.out_scale)}, v{x}")
                e(f"v_mul_f32 v{x + 1}, {fbits(self.out_scale)}, v{x + 1}")
            e(f"v_cvt_pk_bf16_f32 v{x}, v{x}, v{x + 1}")
            e.vmem(f"buffer_store_dword v{x}, v{T(29)}, {srd(SRD_OUT)}, s{sT0} offen")
            return None
        e(f"s_mov_b64 exec, {sp(sTP)}")
        e.lds(f"ds_write_b64 v{T(24)}, {v(x, 2)} offset:{XS}")
        e("s_mov_b64 exec, -1")
        self.pair_stats(x, T(18), T(26), ST2)
        l = e.label("keep")
        e(f"s_cmp_lg_u32 s2, {1 - b}")
        e(f"s_cbranch_scc1 {l}")
        e.begin_cond()
        e(f"s_mov_b32 s{sT0}, {RC + 2048 * b}")
        e.vmem(f"buffer_store_dwordx2 {v(x, 2)}, v{T(30)}, {srd(SRD_WS)}, s{sT0} offen sc1", maybe=True)
        e.end_cond()
        e(f"{l}:")
        self.barrier()
        e.lds(f"ds_read_b128 {v(T(8), 4)}, v{T(25)} offset:{XS}")
        mean, var, rs = self.read_stats(T(0), T(31), ST2)
        wt = None
        if self.WQ is None:
            wt = [e.lds(f"ds_read_b128 {v(T(12 + 4 * n), 4)}, v{vL} offset:{self.WQO + 1024 * n}") for n in range(4)]
        e(f"v_add_f32 v{rs}, {fbits(1e-5)}, v{var}")
        e(f"v_rsq_f32 v{rs}, v{rs}")
        for n in range(4):
            e(f"v_sub_f32 v{T(8 + n)}, v{T(8 + n)}, v{mean}")
        for n in range(4):
            e(f"v_mul_f32 v{T(8 + n)}, v{rs}, v{T(8 + n)}")
        return self.q_slice(2 + b, wt)

    def pair_stats(self, x, s1, addr, where):
        e = self.e
        e(f"v_add_f32 v{s1}, v{x}, v{x + 1}")
        e(f"v_mul_f32 v{s1 + 1}, v{x}, v{x}")
        e(f"v_fmac_f32 v{s1 + 1}, v{x + 1}, v{x + 1}")
        self.wave_reduce("v_add_f32", [s1, s1 + 1])
        e("s_mov_b32 exec_lo, 0")
        e("s_mov_b32 exec_hi, 0x80000000")
        e.lds(f"ds_write_b64 v{addr}, {v(s1, 2)} offset:{where}")
        e("s_mov_b64 exec, -1")

    def read_stats(self, r, zero, where):
        e = self.e
        e.lds(f"ds_read_b128 {v(r, 4)}, v{zero} offset:{where}")
        tok = e.lds(f"ds_read_b128 {v(r + 4, 4)}, v{zero} offset:{where + 16}")
        e.wait_lg(tok)
        e(f"v_pk_add_f32 {v(r, 2)}, {v(r, 2)}, {v(r + 2, 2)}")
        e(f"v_pk_add_f32 {v(r + 4, 2)}, {v(r + 4, 2)}, {v(r + 6, 2)}")
        e(f"v_pk_add_f32 {v(r, 2)}, {v(r, 2)}, {v(r + 4, 2)}")
        self.mean_var(r, r + 1)
        return r, r + 1, r + 2

    def mean_var(self, s1, s2):
        e = self.e
        e(f"v_mul_f32 v{s1}, {fbits(1 / 512)}, v{s1}")
        e(f"v_mul_f32 v{s2}, {fbits(1 / 512)}, v{s2}")
        e(f"v_fma_f32 v{s2}, -v{s1}, v{s1}, v{s2}")
        e(f"v_max_f32 v{s2}, 0, v{s2}")

    def step_c(self, hooks):
        self.ctx = "c."
        e = self.e
        T = lambda i: vT + i
        e(f"s_lshl_b32 s{sT0}, s{sSPL}, 2")
        e(f"s_add_u32 s{sT0}, s{sT0}, s{sW}")
        e(f"s_lshl_b32 s{sT0}, s{sT0}, 5")
        e(f"v_lshrrev_b32 v{T(29)}, 4, v{vLANE}")
        e(f"v_lshl_add_u32 v{T(29)}, v{T(29)}, 3, s{sT0}")
        e(f"v_bfe_u32 v{T(30)}, v{vLANE}, 3, 1")
        e(f"v_lshl_add_u32 v{T(29)}, v{T(30)}, 10, v{T(29)}")
        e(f"v_lshlrev_b32 v{T(28)}, 4, v{vLANE}")
        hooks[0]()
        e.vmem(f"buffer_load_dwordx4 {v(T(0), 4)}, v{T(28)}, {srd(SRD_X)}, 0 offen")
        e.vmem(f"buffer_load_dwordx4 {v(T(4), 4)}, v{T(28)}, {srd(SRD_X)}, 0 offen offset:1024")
        tok = e.vmem(f"buffer_load_dwordx2 {v(T(12), 2)}, v{T(29)}, {srd(SRD_X)}, 0 offen")
        hooks[1]()
        e.wait_vm(tok)
        for i in range(2):
            e(f"v_lshlrev_b32 v{T(8 + 2 * i)}, 16, v{T(12 + i)}")
            e(f"v_and_b32 v{T(9 + 2 * i)}, 0xffff0000, v{T(12 + i)}")
        st = [T(28), T(29), T(30), T(31)]
        for b in range(2):
            s1, s2 = st[2 * b], st[2 * b + 1]
            for i in range(4):
                e(f"v_lshlrev_b32 v{T(12)}, 16, v{T(4 * b + i)}")
                e(f"v_and_b32 v{T(13)}, 0xffff0000, v{T(4 * b + i)}")
                if i == 0:
                    e(f"v_add_f32 v{s1}, v{T(12)}, v{T(13)}")
                    e(f"v_mul_f32 v{s2}, v{T(12)}, v{T(12)}")
                else:
                    e(f"v_add_f32 v{s1}, v{s1}, v{T(12)}")
                    e(f"v_add_f32 v{s1}, v{s1}, v{T(13)}")
                    e(f"v_fmac_f32 v{s2}, v{T(12)}, v{T(12)}")
                e(f"v_fmac_f32 v{s2}, v{T(13)}, v{T(13)}")
        e.wait_vm(self.tok_wq)
        wt = [e.lds(f"ds_read_b128 {v(T(12 + 4 * n), 4)}, v{vL} offset:{self.WQO + 1024 * n}") for n in range(4)]
        self.wave_reduce("v_add_f32", st)
        for b in range(2):
            self.mean_var(st[2 * b], st[2 * b + 1])
            e(f"v_add_f32 v{st[2 * b + 1]}, {fbits(1e-5)}, v{st[2 * b + 1]}")
            e(f"v_rsq_f32 v{st[2 * b + 1]}, v{st[2 * b + 1]}")
        for i in range(4):
            e(f"v_readlane_b32 s{sTG + i}, v{st[i]}, 63")
        e(f"s_mov_b32 s{sTP}, 0xff00ff00")
        e(f"s_mov_b32 s{sTP + 1}, 0xff00ff00")
        for i in range(4):
            e(f"v_mov_b32 v{st[i]}, s{sTG + i}")
        e(f"v_cndmask_b32_e64 v{st[0]}, v{st[0]}, v{st[2]}, {sp(sTP)}")
        e(f"v_cndmask_b32_e64 v{st[1]}, v{st[1]}, v{st[3]}, {sp(sTP)}")
        for n in range(4):
            e(f"v_sub_f32 v{T(8 + n)}, v{T(8 + n)}, v{st[0]}")
        for n in range(4):
            e(f"v_mul_f32 v{T(8 + n)}, v{st[1]}, v{T(8 + n)}")
        return self.q_slice(0, wt, both=True)

    def q_slice(self, use, wt, both=False):
        e = self.e
        T = lambda i: vT + i
        D = T(0)
        self.tick()
        for n in range(4):
            e(f"v_cvt_pk_bf16_f32 v{T(8 + n)}, v{T(8 + n)}, v{T(8 + n)}")
            e(f"v_mov_b32 v{D + n}, 0")
        ab = [T(4), T(28)]
        for p in range(2):
            for k in range(2):
                e(f"v_and_b32 v{ab[p] + 2 * k}, v{T(8 + 2 * p + k)}, v{vMLO}")
                e(f"v_and_b32 v{ab[p] + 2 * k + 1}, v{T(8 + 2 * p + k)}, v{vMHI}")
        for p in range(2):
            if wt:
                e.wait_lg(wt[2 * p + 1])
            wq = T(12) if wt else self.WQ
            e(f"v_smfmac_f32_16x16x64_bf16 {v(D, 4)}, {v(ab[p], 4)}, {v(wq + 8 * p, 8)}, v{vIDX}")
        base = SCRATCH + self.RING if both else QW
        wsh = 10 if both else 9
        if both:
            e(f"v_and_b32 v{T(8)}, 15, v{vLANE}")
            e(f"v_lshlrev_b32 v{T(8)}, 5, v{T(8)}")
            e(f"v_bfe_u32 v{T(9)}, v{vLANE}, 4, 1")
            e(f"v_lshl_add_u32 v{T(8)}, v{T(9)}, 4, v{T(8)}")
            e(f"v_lshl_add_u32 v{T(8)}, s{sW}, 10, v{T(8)}")
            e(f"v_lshrrev_b32 v{T(11)}, 5, v{vLANE}")
            e(f"v_lshl_add_u32 v{T(8)}, v{T(11)}, 9, v{T(8)}")
            self.cst("pr", T(9), None)
            e(f"v_lshl_add_u32 v{T(12)}, v{T(11)}, 17, v{T(9)}")
            e(f"v_lshl_add_u32 v{T(9)}, v{T(11)}, 9, v{T(9)}")
            qw, qr, qp = T(8), T(9), T(12)
        else:
            qw = self.cst("pw", T(8), T(11))
            qr = qp = self.cst("pr", T(9), None)
            e("s_mov_b32 exec_hi, 0")
        e.lds(f"ds_write_b128 v{qw}, {v(D, 4)} offset:{base}")
        self.tag_reg(T(10), use)
        if both:
            e(f"v_add_u32 v{T(10)}, v{T(10)}, v{T(11)}")
        self.barrier(tick=False)
        for w in range(4):
            e.lds(f"ds_read_b32 v{T(4 + w)}, v{qr} offset:{base + (w << wsh)}")
        e.wait_lg_all()
        e(f"v_add_f32 v{T(4)}, v{T(4)}, v{T(5)}")
        e(f"v_add_f32 v{T(6)}, v{T(6)}, v{T(7)}")
        e(f"v_add_f32 v{T(4)}, v{T(4)}, v{T(6)}")
        self.tag(T(4), T(10))
        tok = self.publish_local(f"buffer_store_dword v{T(4)}, v{qp}, {srd(SRD_WS)}, s{sPD} offen")
        e("s_mov_b32 exec_hi, -1")
        if both:
            self.barrier()
        return tok

    def step_d(self, use, q, hooks):
        self.ctx = f"d{use}."
        e = self.e
        T = lambda i: vT + i
        so = sGD
        if use < 2:
            self.gd = self.cst("gd", T(16), T(17))
            for o in self.gather_tags(sTG2, use):
                e(o)
            so = sT1
            e(f"s_add_u32 s{so}, s{sGD}, {use * 256 * 512}")
        loads = [f"buffer_load_dwordx4 {v(T(4 * i), 4)}, v{self.gd}, {srd(SRD_WS)}, s{so} offen offset:{o} sc1"
                 for i, o in enumerate((0, 16, 512, 528))]
        self.gather(sTG2, loads, [(T(i), i & 3) for i in range(16)], T(17), hooks)
        for i in range(8):
            e(f"v_add_f32 v{T(i)}, v{T(i)}, v{T(8 + i)}")
        for ror in (4, 8):
            for i in range(8):
                e(f"v_add_f32_dpp v{T(i)}, v{T(i)}, v{T(i)} row_ror:{ror} row_mask:0xf bank_mask:0xf")
        for i in range(4):
            e(f"v_cvt_pk_bf16_f32 v{q + i}, v{T(2 * i)}, v{T(2 * i + 1)}")

    def prologue(self):
        e = self.e
        T = lambda i: vT + i
        self.stamp("start")
        if self.calib:
            e("s_memrealtime s[94:95]")
        e(f"s_getpc_b64 {sp(sHI)}")
        e("L_pc:")
        e(f"v_lshlrev_b32 v{T(10)}, 7, v0")
        e(f"v_mov_b32 v{T(13)}, s{sHI + 1}")
        e(f"v_add_co_u32 v{T(12)}, vcc, s{sHI}, v{T(10)}")
        e(f"s_load_dwordx16 s[{sKA}:{sKA + 15}], s[0:1], 0")
        e(f"s_load_dwordx8 s[{sKA + 16}:{sKA + 23}], s[0:1], 64")
        e(f"v_addc_co_u32 v{T(13)}, vcc, 0, v{T(13)}, vcc")
        if self.codepf:
            e.vmem(f"global_load_dword v{T(16)}, {v(T(12), 2)}, off")
        e(f"s_load_dwordx2 s[{sKA + 24}:{sKA + 25}], s[0:1], 96")
        e("s_cmp_ge_u32 s2, 256")
        e("s_cbranch_scc1 L_end")
        e(f"v_lshrrev_b32 v{T(0)}, 6, v0")
        e(f"v_and_b32 v{vLANE}, 63, v0")
        e(f"v_readfirstlane_b32 s{sW}, v{T(0)}")
        e(f"s_and_b32 s{sG}, s2, 7")
        e(f"s_lshr_b32 s{sR}, s2, 3")
        e(f"s_lshl_b32 s{sRHO}, s{sG}, 5")
        e(f"s_add_u32 s{sRHO}, s{sRHO}, s{sR}")
        e(f"s_and_b32 s{sSPL}, s{sRHO}, 7")
        e(f"s_lshr_b32 s{sT0}, s{sRHO}, 3")
        e(f"s_lshl_b32 s{sROT}, s{sSPL}, 3")
        e(f"s_add_u32 s{sROT}, s{sROT}, s{sT0}")
        e(f"s_lshl_b32 s{sT0}, s{sRHO}, 18")
        e(f"s_lshl_b32 s{sT1}, s{sW}, 10")
        e(f"s_add_u32 s{sT0}, s{sT0}, s{sT1}")
        e(f"v_and_b32 v{T(0)}, 3, v{vLANE}")
        e(f"v_bfe_u32 v{T(1)}, v{vLANE}, 2, 1")
        e(f"v_bfe_u32 v{T(4)}, v{vLANE}, 3, 1")
        e(f"v_lshrrev_b32 v{T(2)}, 4, v{vLANE}")
        e(f"v_lshl_add_u32 v{vK}, v{T(0)}, 4, s{sT0}")
        e(f"v_lshl_add_u32 v{vK}, v{T(1)}, 9, v{vK}")
        e(f"v_lshl_add_u32 v{vK}, v{T(4)}, 8, v{vK}")
        e(f"v_lshl_add_u32 v{vK}, v{T(2)}, 6, v{vK}")
        e(f"v_lshl_add_u32 v{vV}, v{vLANE}, 4, s{sT0}")
        e(f"s_mul_i32 s{sLB}, s{sW}, {self.wave_lds}")
        e(f"s_add_u32 s{sLB}, s{sLB}, {SCRATCH}")
        e(f"v_lshl_add_u32 v{vL}, v{vLANE}, 4, s{sLB}")
        ptr = lambda i: sKA + 2 * i

        def mk(base, i, nbytes):
            e(f"s_mov_b32 s{base}, s{ptr(i)}")
            e(f"s_mov_b32 s{base + 1}, s{ptr(i) + 1}")
            e(f"s_mov_b32 s{base + 2}, {nbytes}")
            e(f"s_mov_b32 s{base + 3}, 0x20000")

        e("s_waitcnt lgkmcnt(0)")
        self.stamp("ka")
        mk(SRD_K, 1, 0x8000000)
        self.burst(self.depth_a)
        self.stamp("burst")
        if self.stamps and re.fullmatch(self.stamps, "first"):
            e.wait_vm(self.toks[self.items[0]])
            self.stamp("first")
        e(f"s_load_dword s{sB2}, s[{ptr(9)}:{ptr(9) + 1}], 0")
        e(f"s_add_u32 s{sT0}, s{ptr(12)}, {NONCE}")
        e(f"s_addc_u32 s{sT1}, s{ptr(12) + 1}, 0")
        e(f"s_mov_b32 s{sM}, s{sT0}")
        e(f"s_mov_b32 s{sM + 1}, s{sT1}")
        mk(SRD_WS, 12, 0x20000000)
        mk(SRD_V, 2, 0x8000000)
        mk(SRD_X, 0, 2048)
        mk(SRD_WQ, 3, 0x400000)
        mk(SRD_WO, 4, 0x400000)
        mk(SRD_W1, 6, 2752)
        mk(SRD_B1, 7, 2752)
        mk(SRD_W2, 8, 2752)
        mk(SRD_OUT, 10, 2048)
        e(f"s_mov_b32 s{sTP}, s{sM}")
        e(f"s_mov_b32 s{sTP + 1}, s{sM + 1}")
        e(f"s_load_dword s{sCNT}, {sp(sTP)}, 0")
        e(f"s_lshl_b32 s{sT0}, s{sSPL}, 2")
        e(f"s_add_u32 s{sT0}, s{sT0}, s{sW}")
        e(f"s_lshl_b32 s{sT0}, s{sT0}, 17")
        e(f"s_lshr_b32 s{sT1}, s{sRHO}, 3")
        e(f"s_lshl_b32 s{sT1}, s{sT1}, 8")
        e(f"s_add_u32 s{sT0}, s{sT0}, s{sT1}")
        e(f"v_and_b32 v{T(3)}, 15, v{vLANE}")
        e(f"v_lshlrev_b32 v{T(3)}, 4, v{T(3)}")
        e(f"v_bfe_u32 v{T(5)}, v{vLANE}, 4, 1")
        e(f"v_lshl_add_u32 v{T(3)}, v{T(5)}, 13, v{T(3)}")
        e(f"v_lshrrev_b32 v{T(5)}, 5, v{vLANE}")
        e(f"v_lshl_add_u32 v{T(3)}, v{T(5)}, 15, v{T(3)}")
        for n in range(4):
            e(f"s_add_u32 m0, s{sLB}, {self.WQO + 1024 * n}")
            e(f"s_add_u32 s{sT1}, s{sT0}, {8192 * (8 * (n & 1) + 2 * (n >> 1))}")
            self.tok_wq = e.vmem(f"buffer_load_dwordx4 v{T(3)}, {srd(SRD_WQ)}, s{sT1} offen {self.wq_pol} lds")
        e("s_waitcnt lgkmcnt(0)")
        e(f"s_lshl_b32 s{sB2}, s{sB2}, 16")
        e(f"s_add_u32 s{sN}, s{sCNT}, 1")
        e(f"s_lshl_b32 s{sTB}, s{sN}, 2")
        e(f"s_mov_b32 s{sFF}, 0xff")
        if self.codepf:
            e(f"v_add_u32 v{T(10)}, 0x8000, v{T(10)}")
            e(f"v_min_u32 v{T(10)}, L_code_end-L_pc-4, v{T(10)}")
            e(f"v_mov_b32 v{T(13)}, s{sHI + 1}")
            e(f"v_add_co_u32 v{T(12)}, vcc, s{sHI}, v{T(10)}")
            e(f"v_addc_co_u32 v{T(13)}, vcc, 0, v{T(13)}, vcc")
            e.vmem(f"global_load_dword v{T(16)}, {v(T(12), 2)}, off")
        e(f"s_mul_i32 s{sPA}, s{sRHO}, 640")
        e(f"s_add_u32 s{sPA}, s{sPA}, {RA}")
        e(f"s_lshl_b32 s{sGA}, s{sG}, 2")
        e(f"s_add_u32 s{sGA}, s{sGA}, s{sW}")
        e(f"s_mul_i32 s{sGA}, s{sGA}, {8 * 640}")
        e(f"s_add_u32 s{sGA}, s{sGA}, {RA}")
        e(f"s_lshl_b32 s{sPB}, s{sG}, 11")
        e(f"s_lshl_b32 s{sT1}, s{sR}, 6")
        e(f"s_add_u32 s{sPB}, s{sPB}, s{sT1}")
        e(f"s_add_u32 s{sPB}, s{sPB}, {RB}")
        e(f"s_lshl_b32 s{sPD}, s{sRHO}, 9")
        e(f"s_add_u32 s{sPD}, s{sPD}, {RD}")
        e(f"s_lshr_b32 s{sBOOST}, s{sR}, 2")
        e(f"s_cmp_eq_u32 s{sBOOST}, 3")
        e(f"s_cselect_b32 s{sBOOST}, 1, 0")
        if self.boost_odd:
            e(f"s_and_b32 s{sT1}, s{sG}, 1")
            e(f"s_or_b32 s{sBOOST}, s{sBOOST}, s{sT1}")
        e(f"s_mov_b32 s{sHI}, 0")
        e(f"s_mov_b32 s{sHI + 1}, -1")
        e(f"s_mov_b32 s{sODD}, 0")
        e(f"s_mov_b32 s{sODD + 1}, 0x55555555")
        for c in range(4):
            for hh in range(2):
                e(f"s_mov_b32 s{sQ4 + 2 * c + hh}, {0x11111111 << c}")
                e(f"s_mov_b32 s{sBK + 2 * c + hh}, {0x000f000f << (4 * c)}")
        e(f"s_cmp_eq_u32 s{sW}, 0")
        e(f"s_cselect_b32 s{sPUBHI}, -1, 0")
        self.lane_masks()
        e(f"s_getreg_b32 s{sXCC}, hwreg(HW_REG_XCC_ID, 0, 4)")
        e(f"s_lshl_b32 s{sWOB}, s{sG}, 2")
        e(f"s_add_u32 s{sWOB}, s{sWOB}, s{sW}")
        e(f"s_lshl_b32 s{sWOB}, s{sWOB}, 17")
        e(f"s_lshl_b32 s{sT1}, s{sR}, 5")
        e(f"s_add_u32 s{sWOB}, s{sWOB}, s{sT1}")

        if self.wo_pf:
            e(f"s_lshl_b32 s{sT0}, s{sRHO}, 2")
            e(f"s_add_u32 s{sT0}, s{sT0}, s{sW}")
            e(f"s_lshl_b32 s{sT0}, s{sT0}, 12")
            e(f"v_lshlrev_b32 v{vTMP}, 7, v{vLANE}")
            e(f"s_mov_b32 m0, {SINK}")
            e("s_mov_b32 exec_hi, 0")
            e.vmem(f"buffer_load_dword v{vTMP}, {srd(SRD_WO)}, s{sT0} offen lds")
            e("s_mov_b32 exec_hi, -1")

        def say_die():
            e(f"s_xor_b32 s{sT0}, s{sN}, 0x9e3779b9")
            e(f"v_mov_b32 v{T(4)}, s{sT0}")
            e(f"v_mov_b32 v{T(5)}, s{sXCC}")
            e(f"s_lshl_b32 s{sT0}, s{sRHO}, 3")
            e(f"s_add_u32 s{sT0}, s{sT0}, {RX}")
            e(f"v_mov_b32 v{T(6)}, s{sT0}")
            e("s_mov_b64 exec, 1")
            e.vmem(f"buffer_store_dwordx2 {v(T(4), 2)}, v{T(6)}, {srd(SRD_WS)}, 0 offen sc1", maybe=True)
            e("s_mov_b64 exec, -1")

        if "loc" not in self.skip:
            self.wave0(say_die)

    def load_wo(self, n):
        e = self.e
        rows = 128 // self.wo_split
        if self.wo_stag:
            e(f"s_mul_i32 s{sOFF}, s{sR}, {self.wo_split // 4}")
            e(f"s_add_u32 s{sOFF}, s{sOFF}, {n}")
            e(f"s_and_b32 s{sOFF}, s{sOFF}, {self.wo_split - 1}")
            e(f"s_mul_i32 s{sCNT}, s{sOFF}, {32 * rows}")
            e(f"s_add_u32 s{sCNT}, s{sCNT}, s{sLB}")
            e(f"s_add_u32 m0, s{sCNT}, {self.WOO}")
            e(f"s_mul_i32 s{sOFF}, s{sOFF}, {1024 * rows}")
            e(f"s_add_u32 s{sOFF}, s{sOFF}, s{sWOB}")
        else:
            e(f"s_add_u32 m0, s{sLB}, {self.WOO + 32 * rows * n}")
            e(f"s_add_u32 s{sOFF}, s{sWOB}, {1024 * rows * n}")
        if rows < 32:
            e(f"s_mov_b64 exec, {(1 << (2 * rows)) - 1}" if rows < 16 else "s_mov_b32 exec_hi, 0")
        self.tok_wo = e.vmem(f"buffer_load_dwordx4 v{self.wo_reg}, {srd(SRD_WO)}, s{sOFF} offen {self.wo_pol} lds")
        if rows < 32:
            e("s_mov_b64 exec, -1")

    def lane_masks(self):
        e = self.e
        e(f"v_bfe_u32 v{vTMP}, v{vLANE}, 2, 1")
        e(f"v_mul_u32_u24 v{vMHI}, 0xffff, v{vTMP}")
        e(f"v_xor_b32 v{vMLO}, 0xffff, v{vMHI}")
        e(f"v_and_b32 v{vTMP}, 3, v{vLANE}")
        e(f"v_mul_u32_u24 v{vIDX}, 0x1111, v{vTMP}")

    def locality(self, hooks):
        self.ctx = "x."
        e = self.e
        T = lambda i: vT + i
        e(f"v_and_b32 v{T(2)}, 31, v{vLANE}")
        e(f"v_lshlrev_b32 v{T(2)}, 3, v{T(2)}")
        e(f"s_lshl_b32 s{sT1}, s{sG}, 8")
        e(f"s_add_u32 s{sT1}, s{sT1}, {RX}")
        e(f"s_xor_b32 s{sT0}, s{sN}, 0x9e3779b9")
        ld = f"buffer_load_dwordx2 {v(T(0), 2)}, v{T(2)}, {srd(SRD_WS)}, s{sT1} offen sc1"
        tok = e.vmem(ld)
        hooks[1]()
        e.wait_vm(tok)
        self.retry([ld], [f"v_cmp_ne_u32 vcc, s{sT0}, v{T(0)}"])
        e(f"v_cmp_ne_u32 vcc, s{sXCC}, v{T(1)}")
        e("s_cmp_eq_u64 vcc, 0")
        e(f"s_cselect_b32 s{sFAST}, {0 if self.force_slow else 1}, 0")
        e(f"s_lshr_b32 s{sGD}, s{sRHO}, 3")
        e(f"s_lshl_b32 s{sGD}, s{sGD}, 12")
        e(f"s_add_u32 s{sGD}, s{sGD}, {RD}")

    def warm_slots(self):
        e = self.e
        T = lambda i: vT + i
        self.tag_reg(T(0), 64)
        e(f"v_lshlrev_b32 v{T(1)}, 2, v{vLANE}")
        e(f"s_mul_i32 s{sT0}, s{sRHO}, 640")
        e(f"s_lshl_b32 s{sT1}, s{sW}, 7")
        e(f"s_add_u32 s{sT0}, s{sT0}, s{sT1}")
        e(f"s_add_u32 s{sT0}, s{sT0}, {RA}")
        e(f"s_cmp_eq_u32 s{sW}, 3")
        e(f"s_cselect_b32 exec_hi, -1, 0")
        self.publish_local(f"buffer_store_dword v{T(0)}, v{T(1)}, {srd(SRD_WS)}, s{sT0} offen")
        e(f"s_lshl_b32 s{sT0}, s{sG}, 11")
        e(f"s_lshl_b32 s{sT1}, s{sR}, 6")
        e(f"s_add_u32 s{sT0}, s{sT0}, s{sT1}")
        e(f"s_lshl_b32 s{sT1}, s{sW}, 14")
        e(f"s_add_u32 s{sT0}, s{sT0}, s{sT1}")
        e(f"s_add_u32 s{sT0}, s{sT0}, {RB}")
        e("s_mov_b64 exec, 0xffff")
        e.vmem(f"buffer_store_dword v{T(0)}, v{T(1)}, {srd(SRD_WS)}, s{sT0} offen sc1")
        e("s_mov_b64 exec, -1")

    def build(self):
        e = self.e
        T = lambda i: vT + i
        K0 = [("K", 0, t) for t in range(64)]
        V0 = [("V", 0, t) for t in range(64)]
        K1 = [("K", 1, t) for t in range(64)]
        V1 = [("V", 1, t) for t in range(64)]
        self.items = K0 + V0 + K1 + V1
        for t in range(64):
            self.home[K0[t]] = self.reg_home(t)
            if t < self.nhome:
                self.home[V0[t]] = ("l", self.HOME + 1024 * t)
            else:
                self.home[V0[t]] = self.reg_home(64 + t - self.nhome)
        for t in range(self.ring):
            self.home[K1[t]] = ("l", self.RING + t * 1024)
        self.v1_lds = 20
        self.v1_open = False
        assert self.v1_lds <= self.ring
        self.freed = 0
        nop = lambda: None

        def later(k):
            def before():
                self.stream(k)
                self.barrier()

            return (before, lambda: self.stream(self.cur_depth() - 1), nop, nop)

        def hop(cfg, tok, local=False):
            def before():
                self.burst(cfg[0])
                if not local:
                    e.wait_vm(tok)
                    self.barrier()

            return (before, lambda: self.burst(cfg[1]), lambda: self.burst(cfg[2]), lambda: self.burst(cfg[3]))

        def flow(cfg, local):
            def before():
                self.stream(cfg[0])
                if not local:
                    self.barrier()

            return (before, lambda: self.stream(cfg[1]), nop, lambda: self.stream(cfg[2]))

        self.prologue()
        self.mark("prologue")
        self.stream(self.x_at - self.issued)
        self.locality(later(0))
        if self.prewrite:
            self.warm_slots()
        self.stream(self.c_at - self.issued)
        self.step_c(later(0))
        self.build_table()
        self.mark("table")
        if "d" not in self.skip:
            self.step_d(0, T(28), later(0))
        self.mark("q1")
        QM, ACC, S = T(0), T(16), T(28)
        R, O, AB, STG = T(0), T(16), T(8), T(24)
        self.qk_fast(K0, T(28), QM, S, ACC, arrive=self.arrive)
        self.warm_table()
        self.burst(3)
        self.warm_code("cw")
        lsum = self.softmax(S, R, T(8), O)
        self.mode = "W"
        e(f"s_lshl_b32 s{sWOB}, s{sRHO}, 18")
        e(f"s_lshl_b32 s{sOFF}, s{sW}, 10")
        e(f"s_add_u32 s{sWOB}, s{sWOB}, s{sOFF}")
        e(f"s_add_u32 s{sWOB}, s{sWOB}, 0x4000000")
        self.pv(V0, R, O, AB, STG, lsum, self.prep_p(0), arrive=self.arrive)
        self.mark("pv0")
        self.open_chain("cw")
        pace = self.pace
        if self.dyn:
            w = self.dyn

            def live(cfg, local):
                def before():
                    self.stream(cfg[0])
                    if not local:
                        self.barrier()

                def behind():
                    self.dyn_k = cfg[1]
                    self.burst(cfg[1])

                return (before, behind, nop, lambda: self.burst(cfg[2]))

            self.depth_now = self.depth_w
            e(f"s_mov_b32 s{sDY}, {self.issued - 128}")
            self.dyn_on = True
            self.step_p(0, O)
            self.step_a(0, live(w[0], True))
            self.mark("a0")
            self.step_b(0, 0, 1, live(w[1], False))
            self.mark("b0")
            self.step_d(2, T(28), live(w[2], True))
            self.dyn_on = False
            assert self.issued == 128 + self.ring
            self.pf_next = self.issued + self.near
        elif self.cont:
            w = self.cont
            self.depth_now = self.depth_w
            self.step_p(0, O)
            self.step_a(0, flow(w[0], True))
            self.mark("a0")
            self.step_b(0, 0, 1, flow(w[1], False))
            self.mark("b0")
            self.step_d(2, T(28), flow(w[2], True))
        else:
            self.pace = 1 << 30
            w = self.win
            tok = self.step_p(0, O)
            tok = self.step_a(0, hop(w[0], tok, True))
            self.mark("a0")
            tok = self.step_b(0, 0, 1, hop(w[1], tok))
            self.mark("b0")
            self.step_d(2, T(28), hop(w[2], tok, True))
        self.mark("d0")
        self.pace = pace
        self.n_ring = self.issued - 128
        self.mode = "C"
        self.depth_now = self.depth_s
        n_pf = max(self.pf_next - self.issued, 0)
        self.n_pf = n_pf
        if n_pf:
            near = self.items[self.issued:self.issued + n_pf]
            far = self.items[self.issued + n_pf:]
            mix = []
            fp = self.far_per_near
            for i in range(n_pf):
                mix += far[fp * i:fp * (i + 1)] + [near[i]]
            self.items[self.issued:] = mix + far[fp * n_pf:]
            self.depth_now = self.depth_r
            self.per_tick = 2
        mixed_until = self.issued + (1 + self.far_per_near) * n_pf

        def free_k(t):
            self.freed = t + 1
            if t < 28 and self.in_flight() < self.depth_now:
                self.burst(1)

        self.qk_fast(K0, T(28), QM, S, ACC, hook=free_k)
        self.pv(V0, R, O, AB, STG, self.softmax(S, R, T(8), O), self.prep_p(1))
        self.mark("pass2_0")
        self.close_chain()
        self.step_p(1, O)
        for t in range(self.ring):
            self.arrive(K1[t])
            h = self.reg_home(64 - self.ring + t)
            e.lds(f"ds_read_b128 {h[1]}, v{vL} offset:{self.home[K1[t]][1]}")
            self.home[K1[t]] = h
            self.tick()
        e.wait_lg_all()
        self.v1_open = True
        if not self.dyn:
            self.stream(mixed_until - self.issued)
            self.depth_now = self.depth_s
        self.per_tick = 1
        self.step_a(1, later(self.shadow[0]))
        self.mark("a1")
        sp0 = self.nwork + 4 * (64 - self.v1_lds)
        for i, name in enumerate(("pw", "pr", "pa", "tagc", "ga", "gm", "gd")):
            self.K[name] = self.cst(name, sp0 + i, vTMP)
        self.read_wt(sp0 + 8, self.cst("tr", T(0), vTMP))
        for n in range(4):
            e.lds(f"ds_read_b128 {v(sp0 + 24 + 4 * n, 4)}, v{vL} offset:{self.WQO + 1024 * n}")
        self.WT, self.WQ = sp0 + 8, sp0 + 24
        assert sp0 + 40 == 256
        e(f"v_lshlrev_b32 v{vTMP}, 4, v{vLANE}")
        e(f"s_lshl_b32 s{sT0}, s{sW}, 13")
        e(f"s_add_u32 s{sT0}, s{sT0}, {TB}")
        for n in range(8):
            self.stream(1)
            e(f"s_add_u32 m0, s{sLB}, {self.HOME + 1024 * n}")
            e(f"s_add_u32 s{sT1}, s{sT0}, {1024 * n}")
            e.vmem(f"buffer_load_dwordx4 v{vTMP}, {srd(SRD_WS)}, s{sT1} offen sc1 lds")
        self.tb_lds = True
        self.step_d(1, T(28), later(self.shadow[1]))
        self.qk_fast(K1, T(28), QM, S, ACC, arrive=self.arrive)
        self.burst(3)
        self.warm_code("ct")
        self.depth_now = None
        self.pv(V1, R, O, AB, STG, self.softmax(S, R, T(8), O), self.prep_p(2), arrive=self.arrive)
        self.mark("pv1")
        self.open_chain("ct")
        self.pace = 1 << 30
        z = (0, 0, 0, 0)
        tok = self.step_p(2, O)
        tok = self.step_a(2, hop(z, tok, True))
        tok = self.step_b(2, 1, 1, hop(z, tok))
        self.step_d(3, T(28), hop(z, tok, True))
        self.mark("d1")
        first = 64 - self.v1_lds
        assert first - (64 - self.ring) + self.v1_lds <= 24

        late = self.prep_p(3)
        early = [o for o in late if o.startswith("s_a")]
        late = [o for o in late if not o.startswith("s_a")]

        def lift(u):
            ops = []
            if 2 <= u < 6:
                return early[2 * (u - 2):2 * (u - 1)]
            for t in range(2 * (u - 6), 2 * (u - 5)):
                if 0 <= t < self.v1_lds:
                    h = self.reg_home(first + t)
                    ops.append(f"ds_read_b128 {h[1]}, v{vL} offset:{self.home[V1[t]][1]}")
                    self.home[V1[t]] = h
            return ops

        self.qk_fast(K1, T(28), QM, S, ACC, side=lift)
        self.mark("qk")
        lsum = self.softmax(S, R, T(8), O)
        e.wait_lg_all()
        self.mark("sm")
        self.pv(V1, R, O, AB, STG, lsum, late)
        self.mark("pass2_1")
        tok = self.step_p(3, O)
        tok = self.step_a(3, hop(z, tok, True))
        self.mark("a3")
        e("s_cmp_gt_u32 s2, 1")
        e("s_cbranch_scc1 L_done")
        self.step_b(3, 1, 2, hop(z, tok))
        self.mark("end")
        self.close_chain()
        l = e.label("nonce")
        e(f"s_or_b32 s{sT0}, s2, s{sW}")
        e(f"s_cmp_lg_u32 s{sT0}, 0")
        e(f"s_cbranch_scc1 {l}")
        e(f"v_mov_b32 v{T(0)}, s{sN}")
        e(f"v_mov_b32 v{T(1)}, {NONCE}")
        e("s_mov_b64 exec, 1")
        e(f"buffer_store_dword v{T(0)}, v{T(1)}, {srd(SRD_WS)}, 0 offen sc1")
        e("s_mov_b64 exec, -1")
        e(f"{l}:")
        e("L_done:")
        self.epilogue()

    def epilogue(self):
        e = self.e
        self.dump_stamps()
        if self.calib:
            e(f"s_add_u32 s94, s94, {self.calib * 100}")
            e("L_cal:")
            e("s_memrealtime s[96:97]")
            e("s_waitcnt lgkmcnt(0)")
            e("s_sub_u32 s96, s96, s94")
            e("s_cmp_lt_i32 s96, 0")
            e("s_cbranch_scc1 L_cal")
        e("L_end:")
        e("s_endpgm")
        for i in range(len(self.ool) + 1):
            for name, (lo, hi) in self.chain_ool.items():
                if self.iwarm and lo <= i <= hi and (i == hi or len(self.ool[i]) > 12):
                    k = self.chain_n[name]
                    e(f"L_{name}_{k}:")
                    e(f"s_branch L_{name}_{k + 1}" if i < hi else f"s_branch L_{name}_back")
                    self.chain_n[name] = k + 1
            if i < len(self.ool):
                for l in self.ool[i]:
                    e(l)
        e("L_code_end:")
        e(".if L_code_end-L_pc < 0x8000")
        e(".fill 0x2000, 4, 0xbf810000")
        e(".endif")

    def text(self):
        self.build()
        head = [l for l in open(REF).read().split("\n") if l.startswith(";") and "@launch" not in l]
        body = self.e.finish()
        out = "\n".join(head) + "\n"
        out += "; @launch grid=(256,1,1) block=(256,1,1) lds=163840\n"
        out += '.amdgcn_target "amdgcn-amd-amdhsa--gfx950"\n.text\n'
        out += f".globl {KNAME}\n.p2align 8\n.type {KNAME},@function\n{KNAME}:\n"
        out += body
        out += '.section .rodata,"a"\n.p2align 6\n'
        out += f".amdhsa_kernel {KNAME}\n"
        out += "  .amdhsa_next_free_vgpr 512\n  .amdhsa_next_free_sgpr 102\n  .amdhsa_accum_offset 256\n"
        out += "  .amdhsa_group_segment_fixed_size 0\n  .amdhsa_kernarg_size 104\n"
        out += "  .amdhsa_user_sgpr_count 2\n  .amdhsa_user_sgpr_kernarg_segment_ptr 1\n"
        out += "  .amdhsa_system_sgpr_workgroup_id_x 1\n.end_amdhsa_kernel\n"
        return out


if __name__ == "__main__":
    cfg = eval(sys.argv[2]) if len(sys.argv) > 2 else {}
    g = Gen(**cfg)
    open(sys.argv[1], "w").write(g.text())
    print("ring", g.ring, "n_ring", g.n_ring, "items", len(g.items), "instructions", len(g.e.ins))
```

```python
import re

TRANS = ("v_exp_f32", "v_log_f32", "v_rcp_f32", "v_rsq_f32", "v_sqrt_f32", "v_sin_f32", "v_cos_f32")
REG_RE = re.compile(r"^-?\|?(?:abs\()?([vas])(\d+)\)?\|?$")
RANGE_RE = re.compile(r"^([vas])\[(\d+):(\d+)\]$")


def regs_of(tok):
    tok = tok.strip()
    m = REG_RE.match(tok)
    if m:
        return [(m.group(1), int(m.group(2)))]
    m = RANGE_RE.match(tok)
    if m:
        return [(m.group(1), i) for i in range(int(m.group(2)), int(m.group(3)) + 1)]
    if tok == "vcc":
        return [("s", "vcc_lo"), ("s", "vcc_hi")]
    if tok in ("vcc_lo", "vcc_hi", "m0", "exec_lo", "exec_hi"):
        return [("s", tok)]
    if tok == "exec":
        return [("s", "exec_lo"), ("s", "exec_hi")]
    return []


class Ins:
    def __init__(self, text, cond):
        self.text = text
        self.cond = cond
        self.label = text.endswith(":")
        self.directive = text.startswith(".") and not self.label
        self.op = text.split()[0] if not self.label else ""
        rest = text[len(self.op):].strip() if not self.label else ""
        toks = [t.strip() for t in re.split(r",(?![^\[]*\])", rest)] if rest else []
        if toks:
            parts = toks[-1].split()
            toks[-1] = parts[0] if parts else ""
            self.mods = parts[1:]
        else:
            self.mods = []
        self.toks = toks
        op = self.op
        self.mfma = op.startswith("v_mfma") or op.startswith("v_smfmac")
        self.valu = op.startswith("v_") and not self.mfma
        self.trans = any(op.startswith(t) for t in TRANS)
        self.dpp = "_dpp" in op
        self.permlane = op.startswith("v_permlane")
        self.readlane = op.startswith("v_readlane") or op.startswith("v_readfirstlane")
        self.vmem = op.startswith("buffer_") or op.startswith("global_")
        self.ds = op.startswith("ds_")
        self.salu = op.startswith("s_") and not op.startswith("s_load") and not op.startswith("s_mem")
        self.ldsdma = self.vmem and "lds" in self.mods
        self.w, self.r, self.rc = [], [], []
        self.store_data = []
        R = [regs_of(t) for t in toks]
        if self.label or self.directive:
            return
        if self.mfma:
            self.w = R[0]
            self.r = R[1] + R[2]
            if op.startswith("v_smfmac"):
                self.r += R[3]
                self.rc = R[0]
            else:
                self.rc = R[3]
        elif self.valu:
            if op == "v_nop":
                return
            self.w = list(R[0])
            srcs = R[1:]
            if self.permlane:
                self.w += R[1]
                self.r = R[0] + R[1]
                return
            if re.match(r"v_(add|sub|subrev|addc|subb)_co_u32", op):
                self.w += R[1]
                srcs = R[2:]
            for s in srcs:
                self.r += s
            if op.startswith("v_fmac") or op.startswith("v_pk_fmac") or op.startswith("v_dot2c") or self.dpp:
                self.r += R[0]
            if op.startswith("v_cndmask_b32") and len(toks) == 3:
                self.r += regs_of("vcc")
        elif self.vmem:
            if "store" in op or "atomic" in op:
                for s in R:
                    self.r += s
                data = R[0] if op.startswith("buffer_") else R[1]
                if len(data) >= 3:
                    self.store_data = data
                if "atomic" in op and "sc0" in self.mods and op.startswith("buffer_"):
                    self.w = R[0]
            elif self.ldsdma:
                for s in R:
                    self.r += s
                self.r += regs_of("m0")
            else:
                self.w = R[0]
                for s in R[1:]:
                    self.r += s
        elif self.ds:
            if op.startswith("ds_read") or op.startswith("ds_bpermute") or op.startswith("ds_swizzle"):
                self.w = R[0]
                for s in R[1:]:
                    self.r += s
            else:
                for s in R:
                    self.r += s
        elif op.startswith("s_"):
            if op.startswith("s_cmp") or op.startswith("s_cbranch") or op in (
                    "s_branch", "s_waitcnt", "s_nop", "s_barrier", "s_endpgm", "s_sleep", "s_setprio"):
                for s in R:
                    self.r += s
            else:
                self.w = R[0] if R else []
                for s in R[1:]:
                    self.r += s
                if "saveexec" in op:
                    self.w = self.w + regs_of("exec")

    def states(self):
        if self.label or self.directive:
            return 0
        if self.op == "s_nop":
            return int(self.toks[0]) + 1
        return 1


def need(p, c):
    n = 0
    pw, cr, cw, crc = set(p.w), set(c.r), set(c.w), set(c.rc)
    vec = lambda s: {x for x in s if x[0] in "va"}
    sca = lambda s: {x for x in s if x[0] == "s"}
    if p.valu:
        hit = vec(pw) & (cr | crc)
        if hit:
            if c.mfma:
                n = max(n, 2)
            if c.dpp:
                n = max(n, 2)
            if c.permlane:
                n = max(n, 2)
            if c.readlane:
                n = max(n, 1)
            if p.trans and (c.valu or c.mfma):
                n = max(n, 1)
        shit = sca(pw) & cr
        if shit:
            if c.readlane and len(c.toks) > 2 and set(regs_of(c.toks[2])) & shit:
                n = max(n, 4)
            if c.valu:
                n = max(n, 2)
            if c.vmem:
                n = max(n, 5)
            if c.salu:
                n = max(n, 1)
    if p.mfma:
        if c.mfma:
            if pw & cr:
                n = max(n, 8)
            if pw & crc and set(c.rc) != pw:
                n = max(n, 6)
            if pw & cw and not (pw & crc):
                n = max(n, 6)
        elif (c.valu or c.vmem or c.ds) and pw & (cr | cw):
            n = max(n, 8)
        if c.valu and set(p.rc) & cw:
            n = max(n, 3)
    if p.salu and ("s", "m0") in pw and c.ldsdma:
        n = max(n, 1)
    if p.store_data and set(p.store_data) & cw:
        n = max(n, 2)
    return n


class Emitter:
    def __init__(self):
        self.ins = []
        self.cond = ()
        self.ncond = 0
        self.vm = []
        self.lg = []
        self.nlabel = 0
        self.exclusive = set()

    def __call__(self, text):
        for line in text.split("\n"):
            line = line.split(";")[0].strip()
            if line:
                self.ins.append(Ins(line, self.cond))

    def label(self, base):
        self.nlabel += 1
        return f"L_{base}_{self.nlabel}"

    def begin_cond(self):
        self.ncond += 1
        self.cond = self.cond + (self.ncond,)

    def end_cond(self):
        self.cond = self.cond[:-1]

    def vmem(self, text, maybe=False):
        self(text)
        tok = object()
        self.vm.append((tok, maybe))
        return tok

    def vm_count(self, maybe=False):
        tok = object()
        self.vm.append((tok, maybe))
        return tok

    def wait_vm(self, tok):
        idx = [i for i, (t, _) in enumerate(self.vm) if t is tok]
        if not idx:
            return
        i = idx[0]
        n = sum(1 for (_, mb) in self.vm[i + 1:] if not mb)
        assert n <= 63
        self(f"s_waitcnt vmcnt({n})")
        self.vm = self.vm[i + 1:]

    def wait_vm_depth(self, depth):
        if len(self.vm) > depth:
            self.wait_vm(self.vm[len(self.vm) - depth - 1][0])

    def wait_vm_all(self):
        self("s_waitcnt vmcnt(0)")
        self.vm = []

    def lds(self, text):
        self(text)
        tok = object()
        self.lg.append(tok)
        return tok

    def wait_lg(self, tok):
        if tok not in self.lg:
            return
        i = self.lg.index(tok)
        n = len(self.lg) - i - 1
        if n > 15:
            n = 15
            i = len(self.lg) - 16
        self(f"s_waitcnt lgkmcnt({n})")
        self.lg = self.lg[i + 1:]

    def wait_lg_all(self):
        self("s_waitcnt lgkmcnt(0)")
        self.lg = []

    def finish(self):
        out = []
        prefix = lambda a, b: a == b[:len(a)]
        for c in self.ins:
            if c.label or c.directive:
                out.append(c)
                continue
            pad = 0
            dist = 0
            skipped = {}
            for p in reversed(out):
                if dist >= 9:
                    break
                if p.label or p.directive:
                    continue
                if any((x, y) in self.exclusive for x in p.cond for y in c.cond):
                    continue
                k = need(p, c)
                if k:
                    d = dist + sum(n for cond, n in skipped.items() if prefix(cond, p.cond))
                    pad = max(pad, k - d)
                if prefix(p.cond, c.cond):
                    dist += p.states()
                else:
                    skipped[p.cond] = skipped.get(p.cond, 0) + p.states()
            if pad > 0:
                out.append(Ins(f"s_nop {pad - 1}", c.cond))
            out.append(c)
        return "\n".join(("" if (i.label or i.directive) else "    ") + i.text for i in out) + "\n"
```

```python
import copy
import math
import re
import struct
import sys

from asmlib import Emitter

KNAME = "interleave_layers__gqa_block_cached__mixer_token_mlp__decode_kernel"
REF = "interleave_layers__gqa_block_cached__mixer_token_mlp__decode.s.ref"


def fbits(x):
    return "0x%08x" % struct.unpack("<I", struct.pack("<f", x))[0]


RA = 0
RA_HALF = 256 * 640
RD = RA + 2 * RA_HALF
RD_HALF = 128 * 512
RB = RD + 2 * RD_HALF
RC = RB + 4 * 8 * 2048
TB = RC + 2 * 2048
RF = TB + 8192 * 4
RX = RF + 128 * 128
NONCE = RX + 256 * 8
XCH_END = NONCE + 128
STAMP_OFF = 0x10000000
STAMP_REGS = [94, 95, 96, 97, 98, 99, 88, 89, 92, 93, 91]
TAGC = (0, 0x35, 0x6a, 0x9f)
TB_EXP = 100
TB_BASE = TB_EXP << 7
GELU_K = 2.0 * math.sqrt(2.0 / math.pi) * math.log2(math.e)
FIN = 8

OW = QW = TW = 0
MLW = ST = 2048
ST2 = 2080
YW = XS = 2112
OBF = 2624
SINK = 3648
SCRATCH = 4096

sROLE, sW = 1, 3
SRD_K, SRD_V, SRD_WS, SRD_X, SRD_WW, SRD_W1, SRD_B1, SRD_W2, SRD_OUT = 8, 12, 16, 20, 24, 32, 36, 40, 44
sTG2 = 28
sTG = 48
sROT, sOFF, sG, sR, sRHO, sFAST, sLB, sB2, sPUBHI, sCNT, sXCC, sT0, sT1, sM, sL, sWB = (
    4, 5, 6, 7, 52, 53, 54, 55, 56, 57, 58, 59, 60, 61, 62, 63)
sHI = 64
sEVH = 66
sQ4 = 68
sBK = 76
sTP = 84
sN = 86
sFF = 87
sTB = 90
sSTMP = 100
sPA, sGA, sPX, sGD = 24, 25, 26, 27
sRF = 63
sBOOST = 0
sKA = 68

vLANE, vK, vV, vL = 0, 1, 2, 3
vMLO, vMHI, vIDX = 4, 5, 6
vTMP = 7
vT = 8
cPW, cPR, cPA, cTAG, cGD, cX1, cX2, cX3 = range(40, 48)
vWW = 48
NWORK = 80


def srd(b):
    return f"s[{b}:{b + 3}]"


def v(a, n=1):
    return f"v{a}" if n == 1 else f"v[{a}:{a + n - 1}]"


def sp(a):
    return f"s[{a}:{a + 1}]"


def T(i):
    assert 0 <= i < 32
    return vT + i


REDUCE = ("quad_perm:[1,0,3,2] row_mask:0xf", "quad_perm:[2,3,0,1] row_mask:0xf",
          "row_half_mirror row_mask:0xf", "row_mirror row_mask:0xf",
          "row_bcast:15 row_mask:0xa", "row_bcast:31 row_mask:0xc")


class Gen:
    def __init__(self, depth=6, pace=180, pace_tb=170, stamps=False, clk=False, spin=1 << 16,
                 depth_a=8, depth_a_until=64, depth_s=9, depth_r=9, depth_end=None, end_len=16,
                 win_e=(0, 29), win_o=(26, 0, 3), win_d=0, touch=16, far_per_near=3,
                 x_at=26, c_at=32, w_gap=2, shadow=10, tb_gap=2,
                 force_slow=False, tiny=TB_BASE, mark_at=(), out_scale=None, ww_pol="nt",
                 flag=True, boost=2, boost_rng=(66, 124), prewrite=False, w_at=8):
        self.__dict__.update(locals())
        del self.__dict__["self"]
        self.e = Emitter()
        self.nvslot = (256 - NWORK) // 4
        self.nhome = 64 - self.nvslot
        self.wave_lds = (163840 - SCRATCH) // 4
        self.HOME = 0
        self.RING = self.nhome * 1024
        self.ring = (self.wave_lds - self.RING) // 1024 - (1 if touch else 0)
        self.ool = []
        self.nstamp = 0
        self.stamp_names = []
        self.stamp_info = {}
        self.ctx = ""
        self.items = []
        self.home = {}
        self.toks = {}
        self.seq = []
        self.issued = 0
        self.touched = 0
        self.last_issue = 0
        self.switched = set()
        self.mode = "A"
        self.depth_now = None
        self.per_tick = 1
        self.freed = 0
        self.tb_lds = False

    def mark(self, name):
        self.ctx = ""
        self.stamp(name)

    def stamp(self, name):
        if not self.stamps:
            return
        name = self.ctx + name
        if name != "start" and not re.fullmatch(self.stamps, name):
            return
        e = self.e
        e(f"{'s_memtime' if self.clk else 's_memrealtime'} {sp(sSTMP)}")
        e.wait_lg_all()
        e(f"s_mov_b32 s{STAMP_REGS[self.nstamp]}, s{sSTMP}")
        self.stamp_names.append(name)
        self.stamp_info[name] = self.issued + self.touched
        self.nstamp += 1

    def dump_stamps(self):
        if not self.stamps:
            return
        e = self.e
        for k in range(self.nstamp):
            e(f"v_writelane_b32 v{vT}, s{STAMP_REGS[k]}, {k}")
        e(f"s_lshl_b32 s{sT0}, s2, 2")
        e(f"s_add_u32 s{sT0}, s{sT0}, s{sW}")
        e(f"s_lshl_b32 s{sT0}, s{sT0}, 7")
        e(f"s_add_u32 s{sT0}, s{sT0}, {STAMP_OFF}")
        e(f"v_lshlrev_b32 v{vT + 1}, 2, v{vLANE}")
        e("s_mov_b32 exec_hi, 0")
        e(f"buffer_store_dword v{vT}, v{vT + 1}, {srd(SRD_WS)}, s{sT0} offen")

    def cycles(self):
        t = 0
        for i in self.e.ins[self.last_issue:]:
            t += 16 if i.mfma else 8 if (i.trans or i.op.startswith("v_pk_")) else 4 * i.states()
        return t

    def reg_home(self, k):
        if k < 64:
            return ("r", f"a[{4 * k}:{4 * k + 3}]")
        b = NWORK + 4 * (k - 64)
        assert b + 3 < 256
        return ("r", v(b, 4))

    def v_home(self, t):
        return ("l", self.HOME + 1024 * t) if t < self.nhome else self.reg_home(64 + t - self.nhome)

    def cur_depth(self):
        if self.depth_now:
            return self.depth_now
        if self.depth_end and (128 - self.end_len <= self.issued < 128 or self.issued >= 256 - self.end_len):
            return self.depth_end
        return self.depth_a if self.issued < self.depth_a_until else self.depth

    def boosted(self):
        return self.boost and self.boost_rng[0] <= self.issued < self.boost_rng[1]

    def slot_offset(self, t):
        e = self.e
        e(f"s_add_u32 s{sOFF}, s{sROT}, {t}")
        e(f"s_and_b32 s{sOFF}, s{sOFF}, 63")
        e(f"s_lshl_b32 s{sOFF}, s{sOFF}, 12")

    def issue(self, paced=True):
        e = self.e
        if self.issued >= len(self.items):
            return False
        key = self.items[self.issued]
        kind, b, t = key
        if key not in self.home:
            if self.mode == "W":
                return self.pull(paced)
            if kind == "V" or t - self.ring >= self.freed:
                return False
            self.home[key] = self.reg_home(t - self.ring)
        if paced:
            d = self.cur_depth() - 1
            if self.boosted():
                self.drain(d + self.boost)
                n = sum(1 for _, mb in e.vm if not mb) - self.boost
                if self.in_flight() == d + self.boost and n >= 0:
                    l = e.label("deep")
                    e(f"s_cmp_lg_u32 s{sBOOST}, 0")
                    e(f"s_cbranch_scc1 {l}")
                    e(f"s_waitcnt vmcnt({n})")
                    e(f"{l}:")
            else:
                self.drain(d)
        if b == 1 and kind not in self.switched:
            self.switched.add(kind)
            r = vK if kind == "K" else vV
            e(f"v_add_u32 v{r}, 0x4000000, v{r}")
        hk, hv = self.home[key]
        if hk == "l":
            e(f"s_add_u32 m0, s{sLB}, {hv}")
        self.slot_offset(t)
        va, sr = (vK, SRD_K) if kind == "K" else (vV, SRD_V)
        if hk == "l":
            self.toks[key] = e.vmem(f"buffer_load_dwordx4 v{va}, {srd(sr)}, s{sOFF} offen nt lds")
        else:
            self.toks[key] = e.vmem(f"buffer_load_dwordx4 {hv}, v{va}, {srd(sr)}, s{sOFF} offen nt")
        self.seq.append(self.toks[key])
        self.issued += 1
        self.last_issue = len(e.ins)
        if self.issued in self.mark_at:
            ctx, self.ctx = self.ctx, ""
            self.stamp(f"n{self.issued}")
            self.ctx = ctx
        return True

    def pull(self, paced):
        e = self.e
        if self.touched >= self.touch:
            return False
        if paced:
            self.drain(self.cur_depth() - 1)
        e(f"s_add_u32 m0, s{sLB}, {self.RING + self.ring * 1024}")
        self.slot_offset(self.ring + self.touched)
        self.seq.append(e.vmem(f"buffer_load_dwordx4 v{vK}, {srd(SRD_K)}, s{sOFF} offen lds"))
        self.touched += 1
        self.last_issue = len(e.ins)
        return True

    def drain(self, k):
        if len(self.seq) > k:
            self.e.wait_vm(self.seq[len(self.seq) - k - 1])

    def in_flight(self):
        live = {id(t) for t, _ in self.e.vm}
        return sum(1 for t in self.seq if id(t) in live)

    def stream(self, k):
        for _ in range(k):
            self.issue()

    def burst(self, k):
        for _ in range(k):
            self.issue(paced=False)

    def tick(self):
        if self.cycles() >= self.pace:
            self.stream(self.per_tick)

    def arrive(self, key):
        n = self.items.index(key)
        more = self.boost if self.boosted() else 0
        while self.issued < min(n + self.cur_depth() + more, len(self.items)):
            if not self.issue():
                break
        assert self.issued > n
        self.e.wait_vm(self.toks[key])

    def by_role(self, even, odd, more=0):
        e = self.e
        names = ("issued", "touched", "seq", "toks", "home", "switched", "last_issue")
        start = {n: copy.copy(getattr(self, n)) for n in names}
        vm0, lg0, main = list(e.vm), list(e.lg), e.ins
        runs = []
        for f in (even, odd):
            for n in names:
                setattr(self, n, copy.copy(start[n]))
            e.vm, e.lg, e.ins = list(vm0), list(lg0), []
            self.last_issue = 0
            e.begin_cond()
            f()
            e.wait_lg_all() if e.lg else None
            cond = e.cond
            e.end_cond()
            runs.append([{n: getattr(self, n) for n in names}, e.vm, e.ins, cond])
        if True:
            goal = max(r[0]["issued"] for r in runs) + more
            for r in runs:
                if r[0]["issued"] < goal:
                    for n in names:
                        setattr(self, n, r[0][n])
                    e.vm, e.lg, e.ins, keep = r[1], [], r[2], e.cond
                    e.cond = r[3]
                    self.stream(goal - self.issued)
                    e.cond = keep
                    r[0], r[1] = {n: getattr(self, n) for n in names}, e.vm
            assert runs[0][0]["issued"] == runs[1][0]["issued"]
            assert runs[0][0]["home"] == runs[1][0]["home"] and runs[0][0]["switched"] == runs[1][0]["switched"]
        lo, lj = e.label("odd"), e.label("join")
        e.exclusive.add((runs[0][3][-1], runs[1][3][-1]))
        e.ins = main
        e(f"s_cmp_lg_u32 s{sROLE}, 0")
        e(f"s_cbranch_scc1 {lo}")
        e.ins.extend(runs[0][2])
        keep, e.cond = e.cond, runs[0][3]
        e(f"s_branch {lj}")
        e.cond = keep
        e(f"{lo}:")
        e.ins.extend(runs[1][2])
        e(f"{lj}:")
        st = runs[0][0]
        for n in names:
            setattr(self, n, st[n])
        self.touched = max(r[0]["touched"] for r in runs)
        ident = [{id(t): key for key, t in r[0]["toks"].items()} for r in runs]
        name = lambda i, t: ident[i].get(id(t), id(t))
        va, vb = runs[0][1], runs[1][1]
        n = 0
        while (n < min(len(va), len(vb)) and name(0, va[-1 - n][0]) == name(1, vb[-1 - n][0])
               and va[-1 - n][1] == vb[-1 - n][1]):
            n += 1
        common = va[len(va) - n:]
        rest, seen = [], {name(0, t) for t, _ in common}
        for i, lst in enumerate((va, vb)):
            for t, _ in lst:
                k = name(i, t)
                if k not in seen:
                    seen.add(k)
                    rest.append((st["toks"].get(k, t), True))
        e.vm, e.lg = rest + common, []
        live = {id(t) for t, _ in va}
        known = {id(t) for t, _ in e.vm}
        self.seq = [t for t in st["seq"] if id(t) in known or id(t) not in live]
        self.last_issue = len(e.ins)

    def wave0(self, body):
        e = self.e
        l = e.label("w0")
        e(f"s_cmp_lg_u32 s{sW}, 0")
        e(f"s_cbranch_scc1 {l}")
        e.begin_cond()
        r = body()
        e.end_cond()
        e(f"{l}:")
        return r

    def barrier(self, tick=True):
        if tick:
            self.tick()
        self.e.wait_lg_all()
        self.e("s_barrier")
        self.stamp("bar")

    def qk(self, keys, q, qm, S, acc, hook=None, arrive=None, side=None):
        e = self.e
        mask = lambda m: [f"v_cndmask_b32_e64 v{qm + 4 * m + i}, 0, v{q + i}, {sp(sBK + 2 * m)}" for i in range(4)]
        dp = lambda r: f"quad_perm:[{r},{r},{r},{r}] row_mask:0xf bank_mask:0xf"
        for o in mask(0) + mask(1):
            e(o)
        for u in range(18):
            gaps = [[], [], [], []]
            if u == 0:
                gaps = [mask(2), mask(3), [], []]
            if u >= 2:
                pu = u - 2
                a = acc + 4 * (pu % 3)
                gaps = [[f"v_mov_b32_dpp v{a}, v{a} {dp(0)}", f"v_mov_b32_dpp v{a + 2}, v{a + 2} {dp(2)}"],
                        [f"v_add_f32_dpp v{a}, v{a + 1}, v{a} {dp(1)}", f"v_add_f32_dpp v{a + 2}, v{a + 3}, v{a + 2} {dp(3)}"],
                        [f"v_add_f32 v{a}, v{a}, v{a + 2}"],
                        [f"v_cndmask_b32_e64 v{S + (pu >> 2)}, v{S + (pu >> 2)}, v{a}, {sp(sQ4 + 2 * (pu & 3))}"]]
            if u >= 16:
                for g in gaps:
                    for o in g:
                        e(o)
                continue
            more = side(u) if side else []
            a = acc + 4 * (u % 3)
            for m in range(4):
                t = 4 * u + m
                if arrive:
                    arrive(keys[t])
                kind, src = self.home[keys[t]]
                assert kind == "r"
                c = "0" if m == 0 else v(a, 4)
                e(f"v_mfma_f32_16x16x32_bf16 {v(a, 4)}, {src}, {v(qm + 4 * m, 4)}, {c}")
                if hook:
                    hook(t)
                for o in gaps[m]:
                    e(o)
                if m >= 2 and more:
                    o = more.pop(0)
                    e.lds(o) if o.startswith("ds_") else e(o)
            self.tick()

    def wave_reduce(self, op, regs, fill=None):
        e = self.e
        for ctl in REDUCE:
            for _ in range(3 - len(regs)):
                if fill:
                    e(fill.pop(0))
            for r in regs:
                e(f"{op}_dpp v{r}, v{r}, v{r} {ctl} bank_mask:0xf")

    def softmax(self, S, R, tm, O):
        e = self.e
        c = 128 ** -0.5 * math.log2(math.e)
        fill = [f"v_mov_b32 v{O + i}, 0" for i in range(8)] + [f"v_mov_b32 v{tm + 1}, {fbits(c)}"]
        e(f"v_max3_f32 v{tm}, v{S}, v{S + 1}, v{S + 2}")
        e(f"v_max_f32 v{tm}, v{tm}, v{S + 3}")
        self.wave_reduce("v_max_f32", [tm], fill)
        for o in fill:
            e(o)
        e(f"v_mul_f32 v{tm}, {fbits(c)}, v{tm}")
        e(f"v_readlane_b32 s{sM}, v{tm}, 63")
        for i in range(4):
            e(f"v_fma_f32 v{S + i}, v{S + i}, v{tm + 1}, -s{sM}")
        for i in range(4):
            e(f"v_exp_f32 v{S + i}, v{S + i}")
        for i in range(4):
            e(f"v_cvt_pk_bf16_f32 v{R + 2 * i}, v{S + i}, v{S + i}")
            e(f"v_cvt_pk_bf16_f32 v{R + 2 * i + 1}, v{S + i}, v{S + i}")
        for i in range(4):
            e(f"v_mov_b32_dpp v{R + 2 * i}, v{R + 2 * i} row_shr:4 row_mask:0xf bank_mask:0xa")
            e(f"v_mov_b32_dpp v{R + 2 * i + 1}, v{R + 2 * i + 1} row_shl:4 row_mask:0xf bank_mask:0x5")
        e(f"v_add_f32 v{vTMP}, v{S}, v{S + 1}")
        e(f"v_add_f32 v{S + 2}, v{S + 2}, v{S + 3}")
        for i in range(4):
            e(f"v_permlane32_swap_b32 v{R + 2 * i}, v{R + 2 * i + 1}")
        e(f"v_add_f32 v{vTMP}, v{vTMP}, v{S + 2}")
        r = vTMP
        return [f"v_add_f32_dpp v{r}, v{r}, v{r} {ctl} bank_mask:0xf" for ctl in REDUCE] + [f"v_readlane_b32 s{sL}, v{r}, 63"]

    def pv(self, keys, R, O, AB, stage, extra, late, arrive=None):
        e = self.e

        def build(u):
            c = u & 3
            a = AB + 4 * (u & 1)
            dp = f"quad_perm:[{c},{c},{c},{c}] row_mask:0xf bank_mask:0xf"
            r = R + 2 * (u >> 2)
            return [f"v_and_b32_dpp v{a}, v{r}, v{vMLO} {dp}", f"v_and_b32_dpp v{a + 1}, v{r}, v{vMHI} {dp}",
                    f"v_and_b32_dpp v{a + 2}, v{r + 1}, v{vMLO} {dp}", f"v_and_b32_dpp v{a + 3}, v{r + 1}, v{vMHI} {dp}"]

        def in_lds(p):
            return p < 32 and self.home.get(keys[2 * p], ("r",))[0] == "l"

        def fetch(p):
            if arrive:
                arrive(keys[2 * p + 1])
            e.lds(f"ds_read_b128 {v(stage, 4)}, v{vL} offset:{self.home[keys[2 * p]][1]}")
            return e.lds(f"ds_read_b128 {v(stage + 4, 4)}, v{vL} offset:{self.home[keys[2 * p + 1]][1]}")

        tok = fetch(0) if in_lds(0) else None
        for o in build(0):
            e(o)
        for u in range(16):
            nxt = build(u + 1) if u < 15 else []
            a = AB + 4 * (u & 1)
            for half in range(2):
                p = 2 * u + half
                for o in nxt[2 * half:2 * half + 2]:
                    e(o)
                if in_lds(p):
                    e.wait_lg(tok)
                    src = v(stage, 8)
                else:
                    if arrive:
                        arrive(keys[2 * p + 1])
                    h0, h1 = self.home[keys[2 * p]][1], self.home[keys[2 * p + 1]][1]
                    lo, hi = re.findall(r"\d+", h0), re.findall(r"\d+", h1)
                    assert h0[0] == h1[0] and int(lo[1]) + 1 == int(hi[0]), (h0, h1)
                    src = f"{h0[0]}[{lo[0]}:{hi[1]}]"
                e(f"v_smfmac_f32_16x16x64_bf16 {v(O + 4 * half, 4)}, {v(a, 4)}, {src}, v{vIDX}")
                if in_lds(p + 1):
                    tok = fetch(p + 1)
            if extra:
                e(extra.pop(0))
            elif not in_lds(2 * u + 2):
                for _ in range(-(-len(late) // (15 - u)) if u < 15 else len(late)):
                    o = late.pop(0)
                    e.lds(o) if "ds_" in o else e(o)
            self.tick()
        assert not extra and not late

    def tag_op(self, dst, use):
        return f"v_add3_u32 v{dst}, v{cTAG}, s{sTB}, {use}"

    def gather_tags(self, base, use):
        ops = []
        for k in range(4):
            ops += [f"s_add_u32 s{base + k}, s{sTB}, {use + TAGC[k]}", f"s_and_b32 s{base + k}, s{base + k}, 0xff"]
        return ops

    def tag(self, val, tg):
        self.e(f"v_bfi_b32 v{val}, s{sFF}, v{tg}, v{val}")

    def gather(self, tags, loads, regs, tmp, hooks, shadow=None):
        e = self.e
        tok = None
        self.stamp("prep")
        hooks[0]()
        for l in loads:
            if l.startswith("buffer_"):
                tok = e.vmem(l)
            else:
                e(l)
        self.stamp("iss")
        if shadow:
            shadow()
        hooks[1]()
        e.wait_vm(tok)
        self.stamp("first")
        chk = [f"v_xor_b32 v{r}, s{tags + k}, v{r}" for r, k in regs]
        rs = [r for r, _ in regs]
        chk.append(f"v_or3_b32 v{tmp}, v{rs[0]}, v{rs[1]}, v{rs[2]}")
        rs = rs[3:]
        while len(rs) >= 2:
            chk.append(f"v_or3_b32 v{tmp}, v{tmp}, v{rs[0]}, v{rs[1]}")
            rs = rs[2:]
        if rs:
            chk.append(f"v_or_b32 v{tmp}, v{tmp}, v{rs[0]}")
        chk.append(f"v_and_b32 v{tmp}, 0xff, v{tmp}")
        chk.append(f"v_cmp_ne_u32 vcc, 0, v{tmp}")
        self.retry(loads, chk)
        self.tick()

    def retry(self, loads, chk):
        e = self.e
        lr, ll, lx, ok = e.label("retry"), e.label("rloop"), e.label("rdone"), e.label("ok")
        cnt = []
        name = self.ctx + "#retry"
        if self.stamps and re.fullmatch(self.stamps, name):
            r = STAMP_REGS[self.nstamp]
            e(f"s_mov_b32 s{r}, 0")
            cnt = [f"s_add_u32 s{r}, s{r}, 1"]
            self.stamp_names.append(name)
            self.nstamp += 1
        for c in chk:
            e(c)
        e(f"s_cbranch_vccnz {lr}")
        e(f"{ok}:")
        self.stamp("got")
        blk = [f"{lr}:", f"s_mov_b32 s{sCNT}, {self.spin}", f"{ll}:", "s_mov_b64 exec, vcc"]
        blk += cnt + list(loads) + ["s_waitcnt vmcnt(0)"] + chk
        blk += [f"s_cbranch_vccz {lx}", f"s_sub_u32 s{sCNT}, s{sCNT}, 1", f"s_cmp_lg_u32 s{sCNT}, 0",
                f"s_cbranch_scc1 {ll}", f"{lx}:", "s_mov_b64 exec, -1", f"s_branch {ok}"]
        self.ool.append(blk)

    def publish_local(self, ins, maybe=False):
        e = self.e
        ls, ld = e.label("slow"), e.label("pub")
        e(f"s_cmp_eq_u32 s{sFAST}, 0")
        e(f"s_cbranch_scc1 {ls}")
        tok = e.vmem(ins, maybe=maybe)
        e(f"{ld}:")
        self.ool.append([f"{ls}:", ins + " sc1", f"s_branch {ld}"])
        return tok

    def await_flag(self, use):
        if not self.flag:
            return
        e = self.e
        ctx, self.ctx = self.ctx, f"f{use}."
        ld = f"buffer_load_dword v{T(25)}, off, {srd(SRD_WS)}, s{sRF} sc1"
        e(f"s_xor_b32 s{sT0}, s{sN}, {0x6b43a9b0 + use}")
        e.wait_vm(e.vmem(ld))
        self.retry([ld], [f"v_cmp_ne_u32 vcc, s{sT0}, v{T(25)}"])
        self.ctx = ctx

    def half_sum(self, a):
        e = self.e
        e(f"v_permlane32_swap_b32 v{a}, v{a + 2}")
        e(f"v_permlane32_swap_b32 v{a + 1}, v{a + 3}")
        e(f"v_add_f32 v{a}, v{a}, v{a + 2}")
        e(f"v_add_f32 v{a + 1}, v{a + 1}, v{a + 3}")

    def prep_p(self, use):
        ops = self.gather_tags(sTG, use) + [f"s_add_u32 s{sT0}, s{sPA}, {(use & 1) * RA_HALF}",
                                            f"s_add_u32 s{sT1}, s{sGA}, {(use & 1) * RA_HALF}"]
        ops += [self.tag_op(T(27), use), f"v_mov_b32 v{T(30)}, s{sM}", f"v_mov_b32 v{T(31)}, s{sL}",
                f"v_lshlrev_b32_e64 v{vTMP}, 3, s{sW}",
                "s_mov_b64 exec, 1\n" + f"ds_write_b64 v{vTMP}, {v(T(30), 2)} offset:{MLW}\n" + "s_mov_b64 exec, -1",
                f"v_mov_b32 v{vTMP}, 0"]
        return ops

    def step_p(self, use, O):
        self.ctx = f"p{use}."
        e = self.e
        for r in range(4):
            e(f"v_cndmask_b32_e64 v{O + r}, v{O + r}, v{O + 4 + r}, {sp(sHI)}")
        self.half_sum(O)
        e.lds(f"ds_write_b64 v{cPW}, {v(O, 2)} offset:{OW}")
        self.barrier()
        e.lds(f"ds_read_b128 {v(T(0), 4)}, v{vTMP} offset:{MLW}")
        t1 = e.lds(f"ds_read_b128 {v(T(4), 4)}, v{vTMP} offset:{MLW + 16}")
        for w in range(4):
            t2 = e.lds(f"ds_read_b32 v{T(8 + w)}, v{cPR} offset:{OW + 512 * w}")
        e.wait_lg(t1)
        e(f"v_max3_f32 v{T(14)}, v{T(0)}, v{T(2)}, v{T(4)}")
        e(f"v_max_f32 v{T(14)}, v{T(14)}, v{T(6)}")
        for w in range(4):
            e(f"v_sub_f32 v{T(2 * w)}, v{T(2 * w)}, v{T(14)}")
        for w in range(4):
            e(f"v_exp_f32 v{T(2 * w)}, v{T(2 * w)}")
        e(f"v_lshlrev_b32 v{T(13)}, 8, v{T(14)}")
        e(f"v_cndmask_b32_e64 v{T(14)}, v{T(14)}, v{T(13)}, {sp(sQ4 + 4)}")
        e.wait_lg(t2)
        for w in range(4):
            e(f"v_cndmask_b32_e64 v{T(8 + w)}, v{T(8 + w)}, v{T(2 * w + 1)}, {sp(sHI)}")
        e(f"v_mul_f32 v{T(15)}, v{T(0)}, v{T(8)}")
        for w in range(1, 4):
            e(f"v_fmac_f32 v{T(15)}, v{T(2 * w)}, v{T(8 + w)}")
        e(f"v_cndmask_b32_e64 v{T(15)}, v{T(15)}, v{T(14)}, {sp(sEVH)}")
        self.tag(T(15), T(27))
        e(f"s_mov_b32 exec_hi, s{sPUBHI}")
        self.publish_local(f"buffer_store_dword v{T(15)}, v{cPA}, {srd(SRD_WS)}, s{sT0} offen")
        e("s_mov_b32 exec_hi, -1")

    def step_a(self, use, hooks):
        self.ctx = f"a{use}."
        e = self.e
        loads = [f"buffer_load_dwordx4 {v(T(16), 4)}, v{cX2}, {srd(SRD_WS)}, s{sT1} offen offset:512 sc1"]
        loads += [f"buffer_load_dwordx4 {v(T(4 * u), 4)}, v{cX1}, {srd(SRD_WS)}, s{sT1} offen offset:{1280 * u} sc1"
                  for u in range(4)]
        orr, yw, l4 = T(24), T(25), T(26)

        def shadow():
            e(f"v_and_b32 v{T(22)}, 48, v{vLANE}")
            e(f"v_lshl_add_u32 v{orr}, s{sW}, 8, v{T(22)}")
            e(f"v_lshl_add_u32 v{yw}, s{sW}, 7, v{T(22)}")
            e(f"v_lshlrev_b32 v{l4}, 2, v{vLANE}")
            e(f"s_add_u32 s{sT0}, s{sPX}, {use * 16384}")

        self.gather(sTG, loads, [(T(i), i & 3) for i in list(range(16, 20)) + list(range(16))], T(20), hooks, shadow)
        m, l, t = T(16), T(17), T(20)
        e(f"v_lshrrev_b32 v{T(18)}, 8, v{T(18)}")
        e(f"v_or_b32 v{m}, v{m}, v{T(18)}")
        e(f"v_max_f32_dpp v{t}, v{m}, v{m} quad_perm:[1,0,3,2] row_mask:0xf bank_mask:0xf")
        e(f"v_max_f32_dpp v{t}, v{t}, v{t} quad_perm:[2,3,0,1] row_mask:0xf bank_mask:0xf")
        e(f"v_max_f32_dpp v{t}, v{t}, v{t} row_half_mirror row_mask:0xf bank_mask:0xf")
        e(f"v_sub_f32 v{m}, v{m}, v{t}")
        e(f"v_exp_f32 v{m}, v{m}")
        e(f"v_mul_f32 v{l}, v{m}, v{l}")
        acc = T(28)
        lch = [f"v_add_f32_dpp v{l}, v{l}, v{l} quad_perm:[1,0,3,2] row_mask:0xf bank_mask:0xf",
               f"v_add_f32_dpp v{l}, v{l}, v{l} quad_perm:[2,3,0,1] row_mask:0xf bank_mask:0xf",
               f"v_add_f32_dpp v{l}, v{l}, v{l} row_half_mirror row_mask:0xf bank_mask:0xf",
               f"v_rcp_f32 v{l}, v{l}"]
        for u in range(4):
            for k in range(4):
                op = "v_mul_f32_dpp" if u == 0 else "v_fmac_f32_dpp"
                e(f"{op} v{acc + k}, v{m}, v{T(4 * u + k)} row_newbcast:{2 * u} row_mask:0xf bank_mask:0xf")
            e(lch[u])
        self.tick()
        self.half_sum(acc)
        e(f"v_mul_f32 v{acc}, v{acc}, v{l}")
        e(f"v_mul_f32 v{acc + 1}, v{acc + 1}, v{l}")
        e(f"v_cvt_pk_bf16_f32 v{acc}, v{acc}, v{acc + 1}")
        e.lds(f"ds_write_b32 v{cX3}, v{acc} offset:{OBF}")
        tb = [e.lds(f"ds_read_b128 {v(T(4 * n), 4)}, v{orr} offset:{OBF + 64 * n}") for n in range(4)]
        D = [T(16), T(20)]
        for n in range(4):
            e.wait_lg(tb[n])
            for ct in range(2):
                cc = "0" if n == 0 else v(D[ct], 4)
                e(f"v_mfma_f32_16x16x32_bf16 {v(D[ct], 4)}, {v(vWW + 16 * ct + 4 * n, 4)}, {v(T(4 * n), 4)}, {cc}")
        e("s_mov_b32 exec_lo, 0x00010001")
        e("s_mov_b32 exec_hi, 0x00010001")
        for ct in range(2):
            e.lds(f"ds_write_b128 v{yw}, {v(D[ct], 4)} offset:{YW + 64 * ct}")
        e("s_mov_b64 exec, -1")
        e(f"s_xor_b32 s{sCNT}, s{sN}, {0x6b43a9b0 + use}")
        self.barrier()
        e(f"v_mov_b32 v{T(23)}, s{sCNT}")

        def pub():
            e("s_mov_b32 exec_hi, 0")
            for w in range(4):
                e(f"ds_read_b32 v{T(2 + w)}, v{l4} offset:{YW + 128 * w}")
            e("s_waitcnt lgkmcnt(0)")
            e(f"v_add_f32 v{T(2)}, v{T(2)}, v{T(3)}")
            e(f"v_add_f32 v{T(4)}, v{T(4)}, v{T(5)}")
            e(f"v_add_f32 v{T(2)}, v{T(2)}, v{T(4)}")
            self.tag(T(2), T(27))
            e.vmem(f"buffer_store_dword v{T(2)}, v{l4}, {srd(SRD_WS)}, s{sT0} offen sc1", maybe=True)
            if self.flag and use != 1:
                self.publish_local(f"buffer_store_dword v{T(23)}, v{l4}, {srd(SRD_WS)}, s{sRF} offen", maybe=True)
            e("s_mov_b32 exec_hi, -1")

        self.wave0(pub)
        self.stamp("pub")

    def build_table(self):
        self.ctx = "t."
        e = self.e
        LA, LB = self.RING, self.RING + 172 * 16
        e(f"s_mul_i32 s{sT0}, s{sW}, 688")
        e(f"v_lshlrev_b32 v{T(28)}, 4, v{vLANE}")
        e.vmem(f"buffer_load_dwordx4 {v(T(0), 4)}, v{T(28)}, {srd(SRD_W1)}, s{sT0} offen")
        e.vmem(f"buffer_load_dwordx4 {v(T(4), 4)}, v{T(28)}, {srd(SRD_B1)}, s{sT0} offen")
        tok = e.vmem(f"buffer_load_dwordx4 {v(T(8), 4)}, v{T(28)}, {srd(SRD_W2)}, s{sT0} offen")
        self.stream(self.cur_depth() - 1)
        e(f"v_lshl_add_u32 v{T(29)}, v{vLANE}, 6, s{sLB}")
        e(f"v_lshl_add_u32 v{T(30)}, v{vLANE}, 5, s{sLB}")
        e.wait_vm(tok)
        e("s_mov_b32 exec_hi, 0x7ff")
        for p in range(4):
            q = T(12 + 6 * (p & 1))
            e(f"v_lshlrev_b32 v{q}, 16, v{T(p)}")
            e(f"v_and_b32 v{q + 1}, 0xffff0000, v{T(p)}")
            e(f"v_lshlrev_b32 v{q + 2}, 16, v{T(4 + p)}")
            e(f"v_and_b32 v{q + 3}, 0xffff0000, v{T(4 + p)}")
            e(f"v_lshlrev_b32 v{q + 4}, 16, v{T(8 + p)}")
            e(f"v_and_b32 v{q + 5}, 0xffff0000, v{T(8 + p)}")
            e.lds(f"ds_write_b128 v{T(29)}, {v(q, 4)} offset:{LA + 16 * p}")
            e.lds(f"ds_write_b64 v{T(30)}, {v(q + 4, 2)} offset:{LB + 8 * p}")
            if p == 1:
                e.wait_lg_all()
        e("s_mov_b32 exec_hi, -1")
        H, aA, aB, U, E, ACC = T(24), T(26), T(27), T(0), T(2), T(4)
        e(f"s_and_b32 s{sT0}, s2, 127")
        e(f"s_lshl_b32 s{sT0}, s{sT0}, 5")
        e(f"v_and_b32 v{H}, 31, v{vLANE}")
        e(f"v_add_u32 v{H}, s{sT0}, v{H}")
        e(f"v_cmp_ne_u32 vcc, 0, v{H}")
        e(f"s_lshr_b32 s{sT0}, s2, 7")
        e(f"s_lshl_b32 s{sT0}, s{sT0}, 15")
        e(f"s_add_u32 s{sT0}, s{sT0}, {TB_BASE}")
        e(f"v_add_u32 v{H}, s{sT0}, v{H}")
        e(f"v_lshlrev_b32 v{H}, 16, v{H}")
        e(f"v_cndmask_b32 v{H}, 0, v{H}, vcc")
        e(f"v_lshrrev_b32 v{aB}, 5, v{vLANE}")
        e(f"v_mul_u32_u24 v{aA}, {86 * 16}, v{aB}")
        e(f"v_mul_u32_u24 v{aB}, {86 * 8}, v{aB}")
        e(f"v_add_u32 v{aA}, s{sLB}, v{aA}")
        e(f"v_add_u32 v{aB}, s{sLB}, v{aB}")
        e(f"s_mov_b32 s{sTG}, {fbits(-GELU_K * 0.044715)}")
        e(f"s_mov_b32 s{sTG + 1}, {fbits(-GELU_K)}")
        e(f"v_mov_b32 v{ACC}, 0")
        e(f"v_mov_b32 v{ACC + 1}, 0")
        e.wait_lg_all()
        buf = [T(8), T(16)]

        def fetch(i):
            q = buf[i & 1]
            e.lds(f"ds_read_b128 {v(q, 4)}, v{aA} offset:{LA + 16 * i}")
            return e.lds(f"ds_read_b64 {v(q + 4, 2)}, v{aB} offset:{LB + 8 * i}")

        tk = fetch(0)
        pace, self.pace = self.pace, self.pace_tb
        for i in range(86):
            nx = fetch(i + 1) if i < 85 else None
            q = buf[i & 1]
            e.wait_lg(tk)
            self.gelu_pair(H, q, q + 2, q + 4, U, E, ACC)
            tk = nx
            self.tick()
        self.pace = pace
        e(f"v_add_f32 v{ACC}, v{ACC}, v{ACC + 1}")
        e(f"v_mov_b32 v{ACC + 1}, v{ACC}")
        e(f"v_lshlrev_b32 v{T(7)}, 2, v{vLANE}")
        e(f"v_permlane32_swap_b32 v{ACC}, v{ACC + 1}")
        e(f"v_add_f32 v{ACC}, v{ACC}, v{ACC + 1}")
        e("s_mov_b32 exec_hi, 0")
        e.lds(f"ds_write_b32 v{cPR}, v{ACC} offset:{TW}")
        e("s_mov_b32 exec_hi, -1")
        self.barrier()

        def pub():
            e("s_mov_b32 exec_hi, 0")
            for w in range(4):
                e(f"ds_read_b32 v{T(w)}, v{T(7)} offset:{TW + 128 * w}")
            e(f"s_lshl_b32 s{sT0}, s2, 7")
            e(f"s_add_u32 s{sT0}, s{sT0}, {TB}")
            e("s_waitcnt lgkmcnt(0)")
            e(f"v_add_f32 v{T(0)}, v{T(0)}, v{T(1)}")
            e(f"v_add_f32 v{T(2)}, v{T(2)}, v{T(3)}")
            e(f"v_add_f32 v{T(0)}, v{T(0)}, v{T(2)}")
            e(f"v_add_f32 v{T(0)}, s{sB2}, v{T(0)}")
            e.vmem(f"buffer_store_dword v{T(0)}, v{T(7)}, {srd(SRD_WS)}, s{sT0} offen sc1", maybe=True)
            e("s_mov_b32 exec_hi, -1")

        self.wave0(pub)

    def gelu_pair(self, H, W1, B1, W2, U, E, ACC):
        e = self.e
        c = sp(sTG)
        e(f"v_pk_fma_f32 {v(U, 2)}, {v(H, 2)}, {v(W1, 2)}, {v(B1, 2)} op_sel_hi:[0,1,1]")
        e(f"v_pk_mul_f32 {v(E, 2)}, {v(U, 2)}, {v(U, 2)}")
        e(f"v_pk_fma_f32 {v(E, 2)}, {v(E, 2)}, {c}, {c} op_sel:[0,0,1] op_sel_hi:[1,0,1]")
        e(f"v_pk_mul_f32 {v(E, 2)}, {v(U, 2)}, {v(E, 2)}")
        e(f"v_exp_f32 v{E}, v{E}")
        e(f"v_exp_f32 v{E + 1}, v{E + 1}")
        e(f"v_pk_mul_f32 {v(U, 2)}, {v(U, 2)}, {v(W2, 2)}")
        e(f"v_pk_add_f32 {v(E, 2)}, {v(E, 2)}, 1.0 op_sel_hi:[1,0]")
        e(f"v_rcp_f32 v{E}, v{E}")
        e(f"v_rcp_f32 v{E + 1}, v{E + 1}")
        e(f"v_pk_fma_f32 {v(ACC, 2)}, {v(U, 2)}, {v(E, 2)}, {v(ACC, 2)}")

    def warm_table(self):
        e = self.e
        e(f"s_lshl_b32 s{sOFF}, s{sR}, 2")
        e(f"s_add_u32 s{sOFF}, s{sOFF}, s{sW}")
        e(f"s_lshl_b32 s{sOFF}, s{sOFF}, 8")
        e(f"s_add_u32 s{sOFF}, s{sOFF}, {TB}")
        e(f"s_mov_b32 m0, {SINK}")
        e(f"v_lshlrev_b32 v{vTMP}, 2, v{vLANE}")
        e.vmem(f"buffer_load_dword v{vTMP}, {srd(SRD_WS)}, s{sOFF} offen sc1 lds")

    def mixer_direct(self, pk, y, flags, back):
        e = self.e
        lines = []
        A = lines.append
        h, f, U, E, acc, w = T(0), T(1), T(2), T(3), T(4), T(5)
        for c in range(2):
            l0, l1, l2 = e.label("mx"), e.label("mxf"), e.label("mxe")
            A(f"{l0}:")
            A(f"s_cmp_eq_u64 {sp(flags[c])}, 0")
            A(f"s_cbranch_scc1 {l2}")
            A(f"s_ff1_i32_b64 s{sCNT}, {sp(flags[c])}")
            A(f"s_bitset0_b64 {sp(flags[c])}, s{sCNT}")
            A(f"v_readlane_b32 s{sOFF}, v{pk}, s{sCNT}")
            A(f"s_lshl_b32 s{sOFF}, s{sOFF}, 16" if c == 0 else f"s_and_b32 s{sOFF}, s{sOFF}, 0xffff0000")
            A(f"v_mov_b32 v{h}, s{sOFF}")
            A(f"v_lshlrev_b32 v{f}, 1, v{vLANE}")
            A(f"v_mov_b32 v{acc}, 0")
            A(f"s_mov_b32 s{sOFF}, 0")
            A(f"{l1}:")
            A(f"buffer_load_ushort v{w}, v{f}, {srd(SRD_W1)}, s{sOFF} offen")
            A(f"buffer_load_ushort v{w + 1}, v{f}, {srd(SRD_B1)}, s{sOFF} offen")
            A(f"buffer_load_ushort v{w + 2}, v{f}, {srd(SRD_W2)}, s{sOFF} offen")
            A("s_waitcnt vmcnt(0)")
            for i in range(3):
                A(f"v_lshlrev_b32 v{w + i}, 16, v{w + i}")
            A(f"v_fma_f32 v{U}, v{h}, v{w}, v{w + 1}")
            A(f"v_mul_f32 v{E}, v{U}, v{U}")
            A(f"v_mul_f32 v{E}, {fbits(-GELU_K * 0.044715)}, v{E}")
            A(f"v_add_f32 v{E}, {fbits(-GELU_K)}, v{E}")
            A(f"v_mul_f32 v{E}, v{U}, v{E}")
            A(f"v_exp_f32 v{E}, v{E}")
            A(f"v_mul_f32 v{U}, v{U}, v{w + 2}")
            A(f"v_add_f32 v{E}, 1.0, v{E}")
            A(f"v_rcp_f32 v{E}, v{E}")
            A(f"s_add_u32 s{sOFF}, s{sOFF}, 128")
            A(f"s_cmp_lt_u32 s{sOFF}, 2752")
            A(f"v_fmac_f32 v{acc}, v{U}, v{E}")
            A(f"s_cbranch_scc1 {l1}")
            for ctl in REDUCE:
                A(f"v_add_f32_dpp v{acc}, v{acc}, v{acc} {ctl} bank_mask:0xf")
            A(f"v_add_f32 v{acc}, s{sB2}, v{acc}")
            A(f"v_readlane_b32 s{sOFF}, v{acc}, 63")
            A(f"s_mov_b32 m0, s{sCNT}")
            A("s_nop 3")
            A(f"v_writelane_b32 v{y + c}, s{sOFF}, m0")
            A(f"s_branch {l0}")
            A(f"{l2}:")
        A(f"s_branch {back}")
        return lines

    def step_b(self, use, b, layer, hooks):
        self.ctx = f"b{use}."
        e = self.e
        x = T(16)
        if layer == 1:
            e(f"v_lshrrev_b32 v{T(29)}, 1, v{cX2}")
            e.vmem(f"buffer_load_dword v{x}, v{T(29)}, {srd(SRD_X)}, 0 offen offset:{1024 * b}")
            e(f"s_mov_b32 s{sM}, {RB + use * 16384}")
        else:
            e(f"s_sub_u32 s{sL}, {FIN + 1}, s2")
            e(f"s_lshl_b32 s{sT0}, s{sL}, 11")
            e(f"s_add_u32 s{sT0}, s{sT0}, {RC}")
            e.vmem(f"buffer_load_dwordx2 {v(x, 2)}, v{cX2}, {srd(SRD_WS)}, s{sT0} offen sc1")
            e(f"s_lshl_b32 s{sM}, s{sL}, 15")
            e(f"s_add_u32 s{sM}, s{sM}, {RB + 16384}")
            e(f"s_lshl_b32 s{sT0}, s{sL}, 1")
            e(f"s_add_u32 s{sTB}, s{sTB}, s{sT0}")
            for o in self.gather_tags(sTG, 1):
                e(o)
        loads = []
        for u in range(4):
            loads.append(f"s_add_u32 s{sT1}, s{sM}, {4096 * u}")
            loads.append(f"buffer_load_dwordx4 {v(T(4 * u), 4)}, v{cX1}, {srd(SRD_WS)}, s{sT1} offen sc1")

        def shadow():
            e(f"v_lshlrev_b32_e64 v{T(26)}, 3, s{sW}")
            e(f"v_mov_b32 v{T(31)}, 0")
            if layer == 1:
                e(f"v_and_b32 v{T(24)}, 511, v{cX2}")
                e(self.tag_op(T(27), 2 + b))
                e(f"s_bfe_u32 s{sT0}, s{sR}, 0x20001")
                e(f"s_cmp_eq_u32 s{sT0}, s{sW}")
                e(f"s_cselect_b64 {sp(sTP)}, -1, 0")

        self.gather(sTG, loads, [(T(i), i & 3) for i in range(16)], T(25), hooks, shadow)
        for k in range(0, 4, 2):
            e(f"v_pk_add_f32 {v(T(k), 2)}, {v(T(k), 2)}, {v(T(4 + k), 2)}")
            e(f"v_pk_add_f32 {v(T(8 + k), 2)}, {v(T(8 + k), 2)}, {v(T(12 + k), 2)}")
        for k in range(4):
            e(f"v_add_f32 v{T(k)}, v{T(k)}, v{T(8 + k)}")
        if layer == 1:
            e(f"v_and_b32 v{x + 1}, 0xffff0000, v{x}")
            e(f"v_lshlrev_b32 v{x}, 16, v{x}")
        self.half_sum(T(0))
        e(f"v_add_f32 v{x}, v{x}, v{T(0)}")
        e(f"v_add_f32 v{x + 1}, v{x + 1}, v{T(1)}")
        self.pair_stats(x, T(18), T(26), ST)
        self.barrier()
        mean, var, rs = self.read_stats(T(0), T(31), ST)
        e(f"v_add_f32 v{rs}, {fbits(1e-5)}, v{var}")
        e(f"v_rsq_f32 v{rs}, v{rs}")
        h = T(18)
        e(f"v_sub_f32 v{h}, v{x}, v{mean}")
        e(f"v_mul_f32 v{var}, v{var}, v{rs}")
        e(f"v_fmaak_f32 v{var}, v{var}, v{rs}, {fbits(1e-5)}")
        e(f"v_rsq_f32 v{var}, v{var}")
        e(f"v_sub_f32 v{h + 1}, v{x + 1}, v{mean}")
        e(f"v_mul_f32 v{rs}, v{rs}, v{var}")
        e(f"v_mul_f32 v{h}, v{h}, v{rs}")
        e(f"v_mul_f32 v{h + 1}, v{h + 1}, v{rs}")
        pk, y = T(28), T(20)
        e(f"v_cvt_pk_bf16_f32 v{pk}, v{h}, v{h + 1}")
        e(f"s_movk_i32 s{sT0}, 0xfff")
        e(f"s_mov_b32 s{sT1}, {self.wave_lds - 8192 if self.tb_lds else TB}")
        e(f"v_and_b32 v{T(8)}, 0x7fff, v{pk}")
        e(f"v_bfe_u32 v{T(9)}, v{pk}, 16, 15")
        e(f"v_bfe_u32 v{T(10)}, v{pk}, 15, 1")
        e(f"v_lshrrev_b32 v{T(11)}, 31, v{pk}")
        for c in range(2):
            e(f"v_subrev_u32 v{T(12 + c)}, {TB_BASE}, v{T(8 + c)}")
        for c in range(2):
            e(f"v_med3_i32 v{T(12 + c)}, v{T(12 + c)}, 0, s{sT0}")
        for c in range(2):
            e(f"v_lshl_add_u32 v{T(12 + c)}, v{T(10 + c)}, 12, v{T(12 + c)}")
        if self.tb_lds:
            for c in range(2):
                e(f"v_lshrrev_b32 v{T(14 + c)}, 11, v{T(12 + c)}")
                e(f"v_lshlrev_b32 v{T(12 + c)}, 2, v{T(12 + c)}")
            for c in range(2):
                e(f"v_mad_u32_u24 v{T(12 + c)}, v{T(14 + c)}, s{sT1}, v{T(12 + c)}")
                tok = e.lds(f"ds_read_b32 v{y + c}, v{T(12 + c)} offset:{SCRATCH + self.RING}")
        else:
            for c in range(2):
                e(f"v_lshlrev_b32 v{T(12 + c)}, 2, v{T(12 + c)}")
                tok = e.vmem(f"buffer_load_dword v{y + c}, v{T(12 + c)}, {srd(SRD_WS)}, s{sT1} offen sc1")
        hooks[2]()
        e(f"s_mov_b32 s{sT0}, {self.tiny}")
        for c in range(2):
            e(f"v_add_u32 v{T(8 + c)}, -1, v{T(8 + c)}")
        e(f"v_cmp_gt_u32 {sp(sTG)}, s{sT0}, v{T(8)}")
        e(f"v_cmp_gt_u32 {sp(sTG + 2)}, s{sT0}, v{T(9)}")
        e(f"s_or_b64 vcc, {sp(sTG)}, {sp(sTG + 2)}")
        e.wait_lg(tok) if self.tb_lds else e.wait_vm(tok)
        lm, lb = e.label("tiny"), e.label("mixed")
        e(f"s_cbranch_vccnz {lm}")
        e(f"{lb}:")
        self.ool.append([f"{lm}:"] + self.mixer_direct(pk, y, (sTG, sTG + 2), lb))
        self.stamp("mix")
        e(f"v_add_f32 v{x}, v{x}, v{y}")
        e(f"v_add_f32 v{x + 1}, v{x + 1}, v{y + 1}")
        if layer == 2:
            e(f"v_lshrrev_b32 v{T(29)}, 1, v{cX2}")
            e(f"s_lshl_b32 s{sT0}, s{sL}, 10")
            if self.out_scale:
                e(f"v_mul_f32 v{x}, {fbits(self.out_scale)}, v{x}")
                e(f"v_mul_f32 v{x + 1}, {fbits(self.out_scale)}, v{x + 1}")
            e(f"v_cvt_pk_bf16_f32 v{x}, v{x}, v{x + 1}")
            e.vmem(f"buffer_store_dword v{x}, v{T(29)}, {srd(SRD_OUT)}, s{sT0} offen")
            return
        e(f"s_mov_b64 exec, {sp(sTP)}")
        e.lds(f"ds_write_b64 v{T(24)}, {v(x, 2)} offset:{XS}")
        e("s_mov_b64 exec, -1")
        self.pair_stats(x, T(18), T(26), ST2)
        l = e.label("keep")
        e(f"s_cmp_lg_u32 s2, {FIN + 1 - b}")
        e(f"s_cbranch_scc1 {l}")
        e.begin_cond()
        e(f"s_mov_b32 s{sT0}, {RC + 2048 * b}")
        e.vmem(f"buffer_store_dwordx2 {v(x, 2)}, v{cX2}, {srd(SRD_WS)}, s{sT0} offen sc1", maybe=True)
        e.end_cond()
        e(f"{l}:")
        self.barrier()
        e.lds(f"ds_read_b128 {v(T(8), 4)}, v{cX3} offset:{XS}")
        e.lds(f"ds_read_b128 {v(T(12), 4)}, v{cX3} offset:{XS + 16}")
        mean, var, rs = self.read_stats(T(0), T(31), ST2)
        e(f"v_add_f32 v{rs}, {fbits(1e-5)}, v{var}")
        e(f"v_rsq_f32 v{rs}, v{rs}")
        for n in range(0, 8, 2):
            e(f"v_pk_add_f32 {v(T(8 + n), 2)}, {v(T(8 + n), 2)}, {v(mean, 2)} op_sel_hi:[1,0] neg_lo:[0,1] neg_hi:[0,1]")
        for n in range(0, 8, 2):
            e(f"v_pk_mul_f32 {v(T(8 + n), 2)}, {v(T(8 + n), 2)}, {v(rs, 2)} op_sel_hi:[1,0]")
        self.q_slice()

    def pair_stats(self, x, s1, addr, where):
        e = self.e
        e(f"v_add_f32 v{s1}, v{x}, v{x + 1}")
        e(f"v_mul_f32 v{s1 + 1}, v{x}, v{x}")
        e(f"v_fmac_f32 v{s1 + 1}, v{x + 1}, v{x + 1}")
        self.wave_reduce("v_add_f32", [s1, s1 + 1])
        e("s_mov_b32 exec_lo, 0")
        e("s_mov_b32 exec_hi, 0x80000000")
        e.lds(f"ds_write_b64 v{addr}, {v(s1, 2)} offset:{where}")
        e("s_mov_b64 exec, -1")

    def read_stats(self, r, zero, where):
        e = self.e
        e.lds(f"ds_read_b128 {v(r, 4)}, v{zero} offset:{where}")
        tok = e.lds(f"ds_read_b128 {v(r + 4, 4)}, v{zero} offset:{where + 16}")
        e.wait_lg(tok)
        e(f"v_pk_add_f32 {v(r, 2)}, {v(r, 2)}, {v(r + 2, 2)}")
        e(f"v_pk_add_f32 {v(r + 4, 2)}, {v(r + 4, 2)}, {v(r + 6, 2)}")
        e(f"v_pk_add_f32 {v(r, 2)}, {v(r, 2)}, {v(r + 4, 2)}")
        self.mean_var(r, r + 1)
        return r, r + 1, r + 2

    def mean_var(self, s1, s2):
        e = self.e
        e(f"v_mul_f32 v{s1}, {fbits(1 / 512)}, v{s1}")
        e(f"v_mul_f32 v{s2}, {fbits(1 / 512)}, v{s2}")
        e(f"v_fma_f32 v{s2}, -v{s1}, v{s1}, v{s2}")
        e(f"v_max_f32 v{s2}, 0, v{s2}")

    def step_c(self, hooks):
        self.ctx = "c."
        e = self.e
        e(f"s_bfe_u32 s{sT0}, s{sR}, 0x20001")
        e(f"s_lshl_b32 s{sT0}, s{sT0}, 8")
        e(f"v_lshrrev_b32 v{T(29)}, 1, v{cX3}")
        e(f"v_bfe_u32 v{T(30)}, v{vLANE}, 3, 1")
        e(f"v_lshl_add_u32 v{T(29)}, v{T(30)}, 10, v{T(29)}")
        e(f"v_lshlrev_b32 v{T(28)}, 4, v{vLANE}")
        e.vmem(f"buffer_load_dwordx4 {v(T(0), 4)}, v{T(28)}, {srd(SRD_X)}, 0 offen")
        e.vmem(f"buffer_load_dwordx4 {v(T(4), 4)}, v{T(28)}, {srd(SRD_X)}, 0 offen offset:1024")
        tok = e.vmem(f"buffer_load_dwordx4 {v(T(16), 4)}, v{T(29)}, {srd(SRD_X)}, s{sT0} offen")
        hooks[1]()
        e.wait_vm(tok)
        for i in range(4):
            e(f"v_lshlrev_b32 v{T(8 + 2 * i)}, 16, v{T(16 + i)}")
            e(f"v_and_b32 v{T(9 + 2 * i)}, 0xffff0000, v{T(16 + i)}")
        st = [T(28), T(29), T(30), T(31)]
        for b in range(2):
            s1, s2 = st[2 * b], st[2 * b + 1]
            for i in range(4):
                e(f"v_lshlrev_b32 v{T(16)}, 16, v{T(4 * b + i)}")
                e(f"v_and_b32 v{T(17)}, 0xffff0000, v{T(4 * b + i)}")
                if i == 0:
                    e(f"v_add_f32 v{s1}, v{T(16)}, v{T(17)}")
                    e(f"v_mul_f32 v{s2}, v{T(16)}, v{T(16)}")
                else:
                    e(f"v_add_f32 v{s1}, v{s1}, v{T(16)}")
                    e(f"v_add_f32 v{s1}, v{s1}, v{T(17)}")
                    e(f"v_fmac_f32 v{s2}, v{T(16)}, v{T(16)}")
                e(f"v_fmac_f32 v{s2}, v{T(17)}, v{T(17)}")
        self.wave_reduce("v_add_f32", st)
        for b in range(2):
            self.mean_var(st[2 * b], st[2 * b + 1])
            e(f"v_add_f32 v{st[2 * b + 1]}, {fbits(1e-5)}, v{st[2 * b + 1]}")
            e(f"v_rsq_f32 v{st[2 * b + 1]}, v{st[2 * b + 1]}")
        for i in range(4):
            e(f"v_readlane_b32 s{sTG + i}, v{st[i]}, 63")
        e(f"s_mov_b32 s{sTP}, 0xff00ff00")
        e(f"s_mov_b32 s{sTP + 1}, 0xff00ff00")
        for i in range(4):
            e(f"v_mov_b32 v{st[i]}, s{sTG + i}")
        e(f"v_cndmask_b32_e64 v{st[0]}, v{st[0]}, v{st[2]}, {sp(sTP)}")
        e(f"v_cndmask_b32_e64 v{st[1]}, v{st[1]}, v{st[3]}, {sp(sTP)}")
        for n in range(8):
            e(f"v_sub_f32 v{T(8 + n)}, v{T(8 + n)}, v{st[0]}")
        for n in range(8):
            e(f"v_mul_f32 v{T(8 + n)}, v{st[1]}, v{T(8 + n)}")
        e(self.tag_op(T(27), 0))
        self.q_slice(both=True)

    def q_slice(self, both=False):
        e = self.e
        D = T(0)
        self.tick()
        for n in range(4):
            e(f"v_cvt_pk_bf16_f32 v{T(8 + n)}, v{T(8 + 2 * n)}, v{T(9 + 2 * n)}")
            e(f"v_mov_b32 v{D + n}, 0")
        ab = [T(4), T(16), T(20), T(28)]
        for p in range(4):
            e(f"v_and_b32 v{ab[p]}, v{T(8 + p)}, v{vMLO}")
            e(f"v_and_b32 v{ab[p] + 1}, v{T(8 + p)}, v{vMHI}")
            e(f"v_lshrrev_b32 v{T(8 + p)}, 16, v{T(8 + p)}")
            e(f"v_and_b32 v{ab[p] + 2}, v{T(8 + p)}, v{vMLO}")
            e(f"v_and_b32 v{ab[p] + 3}, v{T(8 + p)}, v{vMHI}")
            if p:
                e(f"v_smfmac_f32_16x16x64_bf16 {v(D, 4)}, {v(ab[p - 1], 4)}, {v(vWW + 8 * (p - 1), 8)}, v{vIDX}")
        e(f"v_smfmac_f32_16x16x64_bf16 {v(D, 4)}, {v(ab[3], 4)}, {v(vWW + 24, 8)}, v{vIDX}")
        if both:
            base, wsh = SCRATCH + self.RING, 10
            e(f"v_lshrrev_b32 v{T(11)}, 5, v{vLANE}")
            e(f"v_lshl_add_u32 v{T(8)}, s{sW}, 9, v{cPW}")
            e(f"v_mul_u32_u24 v{T(9)}, 504, v{T(11)}")
            e(f"v_add_u32 v{T(8)}, v{T(8)}, v{T(9)}")
            e(f"v_lshl_add_u32 v{T(12)}, v{T(11)}, 16, v{cPR}")
            e(f"v_lshl_add_u32 v{T(9)}, v{T(11)}, 9, v{cPR}")
            e(f"v_add_u32 v{T(27)}, v{T(27)}, v{T(11)}")
            qw, qr, qp = T(8), T(9), T(12)
        else:
            base, wsh = QW, 9
            qw, qr, qp = cPW, cPR, cPR
            e("s_mov_b32 exec_hi, 0")
        e.lds(f"ds_write_b128 v{qw}, {v(D, 4)} offset:{base}")
        self.barrier(tick=False)
        for w in range(4):
            e.lds(f"ds_read_b32 v{T(4 + w)}, v{qr} offset:{base + (w << wsh)}")
        e.wait_lg_all()
        e(f"v_add_f32 v{T(4)}, v{T(4)}, v{T(5)}")
        e(f"v_add_f32 v{T(6)}, v{T(6)}, v{T(7)}")
        e(f"v_add_f32 v{T(4)}, v{T(4)}, v{T(6)}")
        self.tag(T(4), T(27))
        self.publish_local(f"buffer_store_dword v{T(4)}, v{qp}, {srd(SRD_WS)}, s{sPX} offen")
        e("s_mov_b32 exec_hi, -1")
        if both:
            self.barrier()
        self.stamp("pub")

    def step_d(self, use, q, hooks):
        self.ctx = f"d{use}."
        e = self.e
        so = sGD
        if use == 1:
            so = sT1
            e(f"s_add_u32 s{so}, s{sGD}, {RD_HALF}")
        loads = [f"buffer_load_dwordx4 {v(T(4 * i), 4)}, v{cGD}, {srd(SRD_WS)}, s{so} offen offset:{16 * i} sc1"
                 for i in range(2)]
        self.gather(sTG2, loads, [(T(i), i & 3) for i in range(8)], T(17), hooks)
        for ror in (4, 8):
            for i in range(8):
                e(f"v_add_f32_dpp v{T(i)}, v{T(i)}, v{T(i)} row_ror:{ror} row_mask:0xf bank_mask:0xf")
        for i in range(4):
            e(f"v_cvt_pk_bf16_f32 v{q + i}, v{T(2 * i)}, v{T(2 * i + 1)}")

    def prologue(self):
        e = self.e
        self.stamp("start")
        e(f"s_getpc_b64 {sp(sHI)}")
        e("L_pc:")
        e(f"v_lshlrev_b32 v{T(10)}, 7, v0")
        e(f"v_mov_b32 v{T(13)}, s{sHI + 1}")
        e(f"v_add_co_u32 v{T(12)}, vcc, s{sHI}, v{T(10)}")
        e(f"s_load_dwordx16 s[{sKA}:{sKA + 15}], s[0:1], 0")
        e(f"s_load_dwordx8 s[{sKA + 16}:{sKA + 23}], s[0:1], 64")
        e(f"v_addc_co_u32 v{T(13)}, vcc, 0, v{T(13)}, vcc")
        e.vmem(f"global_load_dword v{T(16)}, {v(T(12), 2)}, off")
        e(f"s_load_dwordx2 s[{sKA + 24}:{sKA + 25}], s[0:1], 96")
        e("s_cmp_ge_u32 s2, 256")
        e("s_cbranch_scc1 L_end")
        e(f"v_lshrrev_b32 v{T(0)}, 6, v0")
        e(f"v_and_b32 v{vLANE}, 63, v0")
        e(f"v_readfirstlane_b32 s{sW}, v{T(0)}")
        e(f"s_and_b32 s{sG}, s2, 7")
        e(f"s_lshr_b32 s{sR}, s2, 3")
        e(f"s_lshl_b32 s{sRHO}, s{sG}, 5")
        e(f"s_add_u32 s{sRHO}, s{sRHO}, s{sR}")
        e(f"s_and_b32 s{sROT}, s{sRHO}, 7")
        e(f"s_lshr_b32 s{sT0}, s{sRHO}, 3")
        e(f"s_lshl_b32 s{sROT}, s{sROT}, 3")
        e(f"s_add_u32 s{sROT}, s{sROT}, s{sT0}")
        e(f"s_lshl_b32 s{sT0}, s{sRHO}, 18")
        e(f"s_lshl_b32 s{sT1}, s{sW}, 10")
        e(f"s_add_u32 s{sT0}, s{sT0}, s{sT1}")
        e(f"v_and_b32 v{T(0)}, 3, v{vLANE}")
        e(f"v_bfe_u32 v{T(1)}, v{vLANE}, 2, 1")
        e(f"v_bfe_u32 v{T(4)}, v{vLANE}, 3, 1")
        e(f"v_lshrrev_b32 v{T(2)}, 4, v{vLANE}")
        e(f"v_lshl_add_u32 v{vK}, v{T(0)}, 4, s{sT0}")
        e(f"v_lshl_add_u32 v{vK}, v{T(1)}, 9, v{vK}")
        e(f"v_lshl_add_u32 v{vK}, v{T(4)}, 8, v{vK}")
        e(f"v_lshl_add_u32 v{vK}, v{T(2)}, 6, v{vK}")
        e(f"v_lshl_add_u32 v{vV}, v{vLANE}, 4, s{sT0}")
        e(f"s_mul_i32 s{sLB}, s{sW}, {self.wave_lds}")
        e(f"s_add_u32 s{sLB}, s{sLB}, {SCRATCH}")
        e(f"v_lshl_add_u32 v{vL}, v{vLANE}, 4, s{sLB}")
        ptr = lambda i: sKA + 2 * i

        def mk(base, i, nbytes):
            e(f"s_mov_b32 s{base}, s{ptr(i)}")
            e(f"s_mov_b32 s{base + 1}, s{ptr(i) + 1}")
            e(f"s_mov_b32 s{base + 2}, {nbytes}")
            e(f"s_mov_b32 s{base + 3}, 0x20000")

        e("s_waitcnt lgkmcnt(0)")
        mk(SRD_K, 1, 0x8000000)
        self.burst(self.depth_a)
        e(f"s_load_dword s{sB2}, s[{ptr(9)}:{ptr(9) + 1}], 0")
        e(f"s_add_u32 s{sTG}, s{ptr(12)}, {NONCE}")
        e(f"s_addc_u32 s{sTG + 1}, s{ptr(12) + 1}, 0")
        e(f"s_load_dword s{sCNT}, {sp(sTG)}, 0")
        e(f"s_and_b32 s{sROLE}, s{sR}, 1")
        mk(SRD_WS, 12, 0x20000000)
        mk(SRD_V, 2, 0x8000000)
        mk(SRD_X, 0, 2048)
        mk(SRD_W1, 6, 2752)
        mk(SRD_B1, 7, 2752)
        mk(SRD_W2, 8, 2752)
        mk(SRD_OUT, 10, 2048)
        e(f"v_add_u32 v{T(10)}, 0x8000, v{T(10)}")
        e(f"v_min_u32 v{T(10)}, L_code_end-L_pc-4, v{T(10)}")
        e(f"v_mov_b32 v{T(13)}, s{sHI + 1}")
        e(f"v_add_co_u32 v{T(12)}, vcc, s{sHI}, v{T(10)}")
        e(f"v_addc_co_u32 v{T(13)}, vcc, 0, v{T(13)}, vcc")
        e.vmem(f"global_load_dword v{T(16)}, {v(T(12), 2)}, off")

        def even():
            mk(SRD_WW, 4, 0x400000)
            e(f"s_lshl_b32 s{sWB}, s{sG}, 2")
            e(f"s_add_u32 s{sWB}, s{sWB}, s{sW}")
            e(f"s_lshl_b32 s{sWB}, s{sWB}, 17")
            e(f"s_lshl_b32 s{sT1}, s{sR}, 5")
            e(f"s_add_u32 s{sWB}, s{sWB}, s{sT1}")
            e(f"v_lshrrev_b32 v{T(3)}, 2, v{vLANE}")
            e(f"v_lshlrev_b32 v{T(3)}, 10, v{T(3)}")
            e(f"v_lshl_add_u32 v{T(3)}, v{T(0)}, 4, v{T(3)}")
            e(f"v_lshrrev_b32 v{T(5)}, 5, v{vLANE}")
            e(f"v_mul_u32_u24 v{T(6)}, 640, v{T(5)}")
            e(f"v_and_b32 v{T(7)}, 31, v{vLANE}")
            e(f"v_lshl_add_u32 v{cX1}, v{T(7)}, 4, v{T(6)}")
            e(f"v_and_b32 v{cX2}, 7, v{vLANE}")
            e(f"v_xor_b32 v{cX2}, v{cX2}, v{T(5)}")
            e(f"v_mul_u32_u24 v{cX2}, 640, v{cX2}")
            e(f"v_lshlrev_b32 v{cX3}, 3, v{T(7)}")
            e(f"v_lshl_add_u32 v{cX3}, v{T(5)}, 2, v{cX3}")
            e(f"v_lshl_add_u32 v{cX3}, s{sW}, 8, v{cX3}")

        def odd():
            mk(SRD_WW, 3, 0x400000)
            e(f"s_bfe_u32 s{sWB}, s{sR}, 0x20001")
            e(f"s_lshl_b32 s{sWB}, s{sWB}, 2")
            e(f"s_add_u32 s{sWB}, s{sWB}, s{sW}")
            e(f"s_lshl_b32 s{sWB}, s{sWB}, 18")
            e(f"s_lshr_b32 s{sT1}, s{sRHO}, 3")
            e(f"s_lshl_b32 s{sT1}, s{sT1}, 8")
            e(f"s_add_u32 s{sWB}, s{sWB}, s{sT1}")
            e(f"v_and_b32 v{T(3)}, 15, v{vLANE}")
            e(f"v_lshlrev_b32 v{T(3)}, 4, v{T(3)}")
            e(f"v_bfe_u32 v{T(5)}, v{vLANE}, 4, 1")
            e(f"v_lshl_add_u32 v{T(3)}, v{T(5)}, 13, v{T(3)}")
            e(f"v_lshrrev_b32 v{T(5)}, 5, v{vLANE}")
            e(f"v_lshl_add_u32 v{T(3)}, v{T(5)}, 16, v{T(3)}")
            e(f"v_and_b32 v{T(7)}, 31, v{vLANE}")
            e(f"v_lshlrev_b32 v{T(7)}, 4, v{T(7)}")
            e(f"v_lshl_add_u32 v{T(7)}, s{sW}, 9, v{T(7)}")
            e(f"v_lshl_add_u32 v{cX1}, v{T(5)}, 11, v{T(7)}")
            e(f"v_lshl_add_u32 v{cX2}, v{T(5)}, 3, v{T(7)}")
            e(f"v_lshlrev_b32 v{cX3}, 5, v{T(2)}")
            e(f"v_lshl_add_u32 v{cX3}, s{sW}, 7, v{cX3}")

        self.by_role(even, odd)
        e("s_waitcnt lgkmcnt(0)")
        e(f"s_lshl_b32 s{sB2}, s{sB2}, 16")
        e(f"s_add_u32 s{sN}, s{sCNT}, 1")
        e(f"s_lshl_b32 s{sTB}, s{sN}, 2")
        e(f"s_mov_b32 s{sFF}, 0xff")
        e(f"s_mov_b32 s{sHI}, 0")
        e(f"s_mov_b32 s{sHI + 1}, -1")
        e(f"s_mov_b32 s{sEVH}, 0")
        e(f"s_mov_b32 s{sEVH + 1}, 0x55555555")
        for c in range(4):
            for hh in range(2):
                e(f"s_mov_b32 s{sQ4 + 2 * c + hh}, {0x11111111 << c}")
                e(f"s_mov_b32 s{sBK + 2 * c + hh}, {0x000f000f << (4 * c)}")
        e(f"s_cmp_eq_u32 s{sW}, 0")
        e(f"s_cselect_b32 s{sPUBHI}, -1, 0")
        e(f"s_getreg_b32 s{sXCC}, hwreg(HW_REG_XCC_ID, 0, 4)")

        def say_die():
            e(f"s_xor_b32 s{sT0}, s{sN}, 0x9e3779b9")
            e(f"v_mov_b32 v{T(8)}, s{sT0}")
            e(f"v_mov_b32 v{T(9)}, s{sXCC}")
            e(f"s_lshl_b32 s{sT0}, s{sRHO}, 3")
            e(f"s_add_u32 s{sT0}, s{sT0}, {RX}")
            e("s_mov_b64 exec, 1")
            e.vmem(f"buffer_store_dwordx2 {v(T(8), 2)}, off, {srd(SRD_WS)}, s{sT0} sc1", maybe=True)
            e("s_mov_b64 exec, -1")

        self.wave0(say_die)
        L, t = vLANE, vTMP
        for o in (f"v_bfe_u32 v{t}, v{L}, 2, 1", f"v_mul_u32_u24 v{vMHI}, 0xffff, v{t}",
                  f"v_xor_b32 v{vMLO}, 0xffff, v{vMHI}", f"v_mul_u32_u24 v{vIDX}, 0x1111, v{T(0)}",
                  f"v_mul_u32_u24 v{cTAG}, {TAGC[1]}, v{T(0)}",
                  f"v_and_b32 v{cPW}, 15, v{L}", f"v_lshlrev_b32 v{cPW}, 5, v{cPW}", f"v_bfe_u32 v{t}, v{L}, 4, 1",
                  f"v_lshl_add_u32 v{cPW}, v{t}, 4, v{cPW}", f"v_lshrrev_b32 v{t}, 5, v{L}",
                  f"v_lshl_add_u32 v{cPW}, v{t}, 3, v{cPW}", f"v_lshl_add_u32 v{cPW}, s{sW}, 9, v{cPW}",
                  f"v_and_b32 v{cPR}, 31, v{L}", f"v_lshlrev_b32 v{cPR}, 2, v{cPR}",
                  f"v_lshl_add_u32 v{cPR}, s{sW}, 7, v{cPR}",
                  f"v_lshlrev_b32 v{t}, 2, v{L}", f"v_add_u32 v{t}, 384, v{t}",
                  f"v_cndmask_b32_e64 v{cPA}, v{cPR}, v{t}, {sp(sHI)}",
                  f"v_bfe_u32 v{t}, v{L}, 2, 2", f"v_lshlrev_b32 v{cGD}, 9, v{t}",
                  f"v_lshl_add_u32 v{cGD}, v{T(2)}, 7, v{cGD}", f"v_lshl_add_u32 v{cGD}, v{T(0)}, 5, v{cGD}"):
            e(o)

    def load_weights(self):
        e = self.e
        stage = self.RING + 8192
        self.stream(self.w_at - self.issued)
        for n in range(8):
            self.stream(self.w_gap)
            le, lj = e.label("wo"), e.label("wj")
            e(f"s_cmp_eq_u32 s{sROLE}, 0")
            e(f"s_cbranch_scc1 {le}")
            e(f"s_add_u32 s{sOFF}, s{sWB}, {8192 * (16 * (n & 1) + 2 * (n >> 1))}")
            self.tok_ww = e.vmem(f"buffer_load_dwordx4 {v(vWW + 4 * n, 4)}, v{T(3)}, {srd(SRD_WW)}, s{sOFF} offen {self.ww_pol}")
            e(f"{lj}:")
            self.ool.append([f"{le}:", f"s_add_u32 m0, s{sLB}, {stage + 1024 * n}",
                             f"s_add_u32 s{sOFF}, s{sWB}, {16384 * n}",
                             f"buffer_load_dwordx4 v{T(3)}, {srd(SRD_WW)}, s{sOFF} offen {self.ww_pol} lds",
                             f"s_branch {lj}"])
        e(f"s_mul_i32 s{sPA}, s{sRHO}, 640")
        e(f"s_lshl_b32 s{sGA}, s{sG}, 2")
        e(f"s_add_u32 s{sGA}, s{sGA}, s{sW}")
        e(f"s_mul_i32 s{sGA}, s{sGA}, {8 * 640}")
        e(f"s_lshr_b32 s{sGD}, s{sRHO}, 3")
        e(f"s_lshl_b32 s{sGD}, s{sGD}, 11")
        e(f"s_add_u32 s{sGD}, s{sGD}, {RD}")
        e(f"s_lshl_b32 s{sT0}, s{sRHO}, 6")
        e(f"s_add_u32 s{sT0}, s{sT0}, {RB}")
        e(f"s_lshr_b32 s{sT1}, s{sRHO}, 1")
        e(f"s_lshl_b32 s{sT1}, s{sT1}, 9")
        e(f"s_add_u32 s{sT1}, s{sT1}, {RD}")
        e(f"s_cmp_eq_u32 s{sROLE}, 0")
        e(f"s_cselect_b32 s{sPX}, s{sT0}, s{sT1}")
        e(f"s_lshr_b32 s{sRF}, s{sRHO}, 1")
        e(f"s_lshl_b32 s{sRF}, s{sRF}, 7")
        e(f"s_add_u32 s{sRF}, s{sRF}, {RF}")
        e(f"s_and_b32 s{sBOOST}, s{sR}, 29")
        e(f"s_cmp_eq_u32 s{sBOOST}, 12")
        e(f"s_cselect_b32 s{sBOOST}, 1, 0")
        assert RA == 0

    def transpose_wo(self):
        e = self.e
        stage = self.RING + 8192
        e.wait_vm(self.tok_ww)
        a = T(0)
        e(f"v_bfe_u32 v{a}, v{vLANE}, 2, 2")
        e(f"v_lshl_add_u32 v{a}, v{a}, 6, s{sLB}")
        e(f"v_and_b32 v{T(1)}, 3, v{vLANE}")
        e(f"v_lshl_add_u32 v{a}, v{T(1)}, 3, v{a}")
        e(f"v_lshrrev_b32 v{T(1)}, 4, v{vLANE}")
        e(f"v_lshl_add_u32 v{a}, v{T(1)}, 9, v{a}")
        for ct in range(2):
            for n in range(4):
                for k in range(2):
                    e.lds(f"ds_read_b64_tr_b16 {v(vWW + 16 * ct + 4 * n + 2 * k, 2)}, v{a} "
                          f"offset:{stage + 2048 * n + 256 * k + 32 * ct}")
            e.wait_lg_all()
        if self.prewrite:
            e(self.tag_op(T(1), 64))
            e(f"v_lshlrev_b32 v{a}, 2, v{vLANE}")
            e(f"s_lshl_b32 s{sT0}, s{sW}, 14")
            e(f"s_add_u32 s{sT0}, s{sT0}, s{sPX}")
            e("s_mov_b32 exec_hi, 0")
            e.vmem(f"buffer_store_dword v{T(1)}, v{a}, {srd(SRD_WS)}, s{sT0} offen sc1")
            e("s_mov_b32 exec_hi, -1")

    def locality(self):
        self.ctx = "x."
        e = self.e
        e(f"v_and_b32 v{T(6)}, 31, v{vLANE}")
        e(f"v_lshlrev_b32 v{T(6)}, 3, v{T(6)}")
        e(f"s_lshl_b32 s{sT1}, s{sG}, 8")
        e(f"s_add_u32 s{sT1}, s{sT1}, {RX}")
        e(f"s_xor_b32 s{sT0}, s{sN}, 0x9e3779b9")
        ld = f"buffer_load_dwordx2 {v(T(4), 2)}, v{T(6)}, {srd(SRD_WS)}, s{sT1} offen sc1"
        tok = e.vmem(ld)
        self.stream(self.cur_depth() - 1)
        e.wait_vm(tok)
        self.retry([ld], [f"v_cmp_ne_u32 vcc, s{sT0}, v{T(4)}"])
        e(f"v_cmp_ne_u32 vcc, s{sXCC}, v{T(5)}")
        e("s_cmp_eq_u64 vcc, 0")
        e(f"s_cselect_b32 s{sFAST}, {0 if self.force_slow else 1}, 0")

    def build(self):
        e = self.e
        K0, V0, K1, V1 = ([(k, b, t) for t in range(64)] for k, b in (("K", 0), ("V", 0), ("K", 1), ("V", 1)))
        self.items = K0 + V0 + K1 + V1
        for t in range(64):
            self.home[K0[t]] = self.reg_home(t)
            self.home[V0[t]] = self.v_home(t)
        for t in range(self.ring):
            self.home[K1[t]] = ("l", self.RING + t * 1024)
        nop = lambda: None
        idle = (nop, nop, nop)
        follow = lambda: self.stream(self.cur_depth() - 1)
        bursts = lambda *k: tuple((lambda n=n: self.burst(n)) for n in k)
        emit = lambda ops: [e(o) for o in ops]
        QM, ACC, S = T(0), T(16), T(28)
        R, O, AB, STG = T(0), T(16), T(8), T(24)

        self.prologue()
        self.mark("prologue")
        self.load_weights()
        self.stream(self.x_at - self.issued)
        self.locality()
        self.stream(self.c_at - self.issued)
        self.by_role(self.transpose_wo, lambda: (e.wait_vm(self.tok_ww), self.step_c((nop, follow))), self.depth_a)
        self.build_table()
        self.mark("table")
        emit(self.gather_tags(sTG2, 0))
        self.step_d(0, T(28), (self.barrier, follow))
        self.mark("q1")

        self.qk(K0, T(28), QM, S, ACC, arrive=self.arrive)
        self.warm_table()
        lsum = self.softmax(S, R, T(8), O)
        self.mode = "W"
        self.pv(V0, R, O, AB, STG, lsum, self.prep_p(0) + self.gather_tags(sTG2, 2), arrive=self.arrive)
        self.mark("pv0")
        pace, self.pace = self.pace, 1 << 30
        self.step_p(0, O)
        we, wo = self.win_e, self.win_o
        self.by_role(lambda: (self.step_a(0, bursts(0, we[0])), self.burst(we[1])),
                     lambda: self.step_b(0, 0, 1, (lambda: (self.burst(wo[0]), self.await_flag(0)),) + bursts(*wo[1:])))
        self.step_d(2, T(28), bursts(0, self.win_d))
        self.burst(128 + self.ring - self.issued)
        self.mark("d0")

        self.pace = pace
        self.mode = "C"
        self.depth_now = self.depth_s
        if self.touched:
            near, far = self.items[self.issued:][:self.touched], self.items[self.issued:][self.touched:]
            fp, mix = self.far_per_near, []
            for i in range(len(near)):
                mix += far[fp * i:fp * (i + 1)] + [near[i]]
            self.items[self.issued:] = mix + far[fp * len(near):]
            self.depth_now = self.depth_r
            self.per_tick = 2
            self.touched = 0

        def free_k(t):
            self.freed = t + 1
            if t < 28 and self.in_flight() < self.depth_now:
                self.burst(1)

        self.qk(K0, T(28), QM, S, ACC, hook=free_k)
        self.pv(V0, R, O, AB, STG, self.softmax(S, R, T(8), O), self.prep_p(1) + self.gather_tags(sTG2, 1))
        for t in range(64):
            self.home[V1[t]] = self.v_home(t)
        self.mark("pass2_0")
        self.step_p(1, O)
        for t in range(self.ring):
            self.arrive(K1[t])
            h = self.reg_home(64 - self.ring + t)
            e.lds(f"ds_read_b128 {h[1]}, v{vL} offset:{self.home[K1[t]][1]}")
            self.home[K1[t]] = h
            self.tick()
        e.wait_lg_all()
        self.per_tick = 1

        def fetch_table():
            e(f"v_lshlrev_b32 v{vTMP}, 4, v{vLANE}")
            e(f"s_lshl_b32 s{sT0}, s{sW}, 13")
            e(f"s_add_u32 s{sT0}, s{sT0}, {TB}")
            for n in range(8):
                self.stream(self.tb_gap)
                e(f"s_add_u32 m0, s{sLB}, {self.RING + 1024 * n}")
                e(f"s_add_u32 s{sT1}, s{sT0}, {1024 * n}")
                e.vmem(f"buffer_load_dwordx4 v{vTMP}, {srd(SRD_WS)}, s{sT1} offen sc1 lds")
            self.barrier()

        self.by_role(lambda: self.step_a(1, (lambda: self.stream(self.shadow), follow)), fetch_table, self.depth_s)
        self.tb_lds = True
        self.depth_now = self.depth_s
        self.mark("a1")
        self.step_d(1, T(28), (nop, follow))

        self.qk(K1, T(28), QM, S, ACC, arrive=self.arrive)
        self.depth_now = None
        self.pv(V1, R, O, AB, STG, self.softmax(S, R, T(8), O), self.prep_p(2) + self.gather_tags(sTG2, 3),
                arrive=self.arrive)
        self.mark("pv1")
        self.pace = 1 << 30
        self.step_p(2, O)
        self.by_role(lambda: self.step_a(2, idle), lambda: self.step_b(2, 1, 1, (lambda: self.await_flag(2), nop, nop)))
        self.step_d(3, T(28), idle)
        self.mark("d1")

        late = self.prep_p(3)
        early = [o for o in late if o.startswith("s_a")]
        late = [o for o in late if not o.startswith("s_a")]
        self.tail_pass(K1, V1, early, late)
        self.mark("pass2_1")
        self.step_p(3, O)

        def finish():
            e(f"s_sub_u32 s{sT0}, s2, {FIN}")
            e(f"s_cmp_gt_u32 s{sT0}, 1")
            e("s_cbranch_scc1 L_done")
            self.step_b(3, 1, 2, (lambda: self.await_flag(3), nop, nop))
            self.mark("end")
            e(f"s_sub_u32 s{sT0}, s2, {FIN}")
            e(f"s_or_b32 s{sT0}, s{sT0}, s{sW}")
            e(f"s_cmp_lg_u32 s{sT0}, 0")
            e("s_cbranch_scc1 L_done")
            e(f"v_mov_b32 v{T(0)}, s{sN}")
            e(f"s_mov_b32 s{sT0}, {NONCE}")
            e("s_mov_b64 exec, 1")
            e(f"buffer_store_dword v{T(0)}, off, {srd(SRD_WS)}, s{sT0} sc1")
            e("s_mov_b64 exec, -1")

        self.by_role(lambda: self.step_a(3, idle), finish)
        e("L_done:")
        self.dump_stamps()
        e("L_end:")
        e("s_endpgm")
        for blk in self.ool:
            for l in blk:
                e(l)
        e("L_code_end:")

    def tail_pass(self, K1, V1, early, late):
        e = self.e
        QM, ACC, S = T(0), T(16), T(28)
        R, O, AB, STG = T(0), T(16), T(8), T(24)
        owner = {self.home[k][1]: t for t, k in enumerate(K1)}
        base = min(range(0, 64 - self.nhome + 1, 2),
                   key=lambda b: max(owner[self.reg_home(b + i)[1]] for i in range(self.nhome)))
        target = {t: self.reg_home(base + t) for t in range(self.nhome)}
        todo = sorted(target, key=lambda t: owner[target[t][1]])

        def side(u):
            ops = []
            while len(ops) < 2 and todo and owner[target[todo[0]][1]] < 4 * u:
                t = todo.pop(0)
                ops.append(f"ds_read_b128 {target[t][1]}, v{vL} offset:{self.home[V1[t]][1]}")
                self.home[V1[t]] = target[t]
            while len(ops) < 2 and early and u >= 2:
                ops.append(early.pop(0))
            return ops

        self.qk(K1, T(28), QM, S, ACC, side=side)
        for t in list(todo):
            e.lds(f"ds_read_b128 {target[t][1]}, v{vL} offset:{self.home[V1[t]][1]}")
            self.home[V1[t]] = target[t]
        self.mark("qk")
        lsum = self.softmax(S, R, T(8), O)
        e.wait_lg_all()
        self.mark("sm")
        self.pv(V1, R, O, AB, STG, lsum, early + late)

    def text(self):
        self.build()
        head = [l for l in open(REF).read().split("\n") if l.startswith(";") and "@launch" not in l]
        body = self.e.finish()
        out = "\n".join(head) + "\n"
        out += "; @launch grid=(256,1,1) block=(256,1,1) lds=163840\n"
        out += '.amdgcn_target "amdgcn-amd-amdhsa--gfx950"\n.text\n'
        out += f".globl {KNAME}\n.p2align 8\n.type {KNAME},@function\n{KNAME}:\n"
        out += body
        out += '.section .rodata,"a"\n.p2align 6\n'
        out += f".amdhsa_kernel {KNAME}\n"
        out += "  .amdhsa_next_free_vgpr 512\n  .amdhsa_next_free_sgpr 102\n  .amdhsa_accum_offset 256\n"
        out += "  .amdhsa_group_segment_fixed_size 0\n  .amdhsa_kernarg_size 104\n"
        out += "  .amdhsa_user_sgpr_count 2\n  .amdhsa_user_sgpr_kernarg_segment_ptr 1\n"
        out += "  .amdhsa_system_sgpr_workgroup_id_x 1\n.end_amdhsa_kernel\n"
        return out


if __name__ == "__main__":
    cfg = eval(sys.argv[2]) if len(sys.argv) > 2 else {}
    g = Gen(**cfg)
    open(sys.argv[1], "w").write(g.text())
    print("ring", g.ring, "homes", g.nhome, "instructions", len(g.e.ins))
```

```python
import copy
import math
import re
import struct
import sys

from asmlib import Emitter

KNAME = "interleave_layers__gqa_block_cached__mixer_token_mlp__decode_kernel"
REF = "interleave_layers__gqa_block_cached__mixer_token_mlp__decode.s.ref"


def fbits(x):
    return "0x%08x" % struct.unpack("<I", struct.pack("<f", x))[0]


RA = 0
RA_HALF = 256 * 640
RD = RA + 2 * RA_HALF
RD_HALF = 128 * 512
RB = RD + 2 * RD_HALF
RC = RB + 4 * 8 * 2048
TB = RC + 2 * 2048
RF = TB + 8192 * 4
RX = RF + 128 * 128
RP = RX + 256 * 8
NONCE = RP + 256 * 4
XCH_END = NONCE + 128
STAMP_OFF = 0x10000000
STAMP_REGS = [94, 95, 96, 97, 98, 99, 88, 89, 92, 93, 91]
TAGC = (0, 0x35, 0x6a, 0x9f)
TB_EXP = 100
TB_BASE = TB_EXP << 7
GELU_K = 2.0 * math.sqrt(2.0 / math.pi) * math.log2(math.e)
FIN = 8

OW = QW = TW = 0
MLW = ST = 2048
ST2 = 2080
YW = XS = 2112
OBF = 2624
SINK = 3648
SCRATCH = 4096

sROLE, sW = 1, 3
SRD_K, SRD_V, SRD_WS, SRD_X, SRD_WW, SRD_W1, SRD_B1, SRD_W2, SRD_OUT = 8, 12, 16, 20, 24, 32, 36, 40, 44
sTG2 = 28
sTG = 48
sROT, sOFF, sG, sR, sRHO, sFAST, sLB, sB2, sPUBHI, sCNT, sXCC, sT0, sT1, sM, sL, sWB = (
    4, 5, 6, 7, 52, 53, 54, 55, 56, 57, 58, 59, 60, 61, 62, 63)
sHI = 64
sEVH = 66
sQ4 = 68
sBK = 76
sTP = 84
sN = 86
sFF = 87
sTB = 90
sSTMP = 100
sPA, sGA, sPX, sGD = 24, 25, 26, 27
sRF = 63
sBOOST = 0
sKA = 68

vLANE, vK, vV, vL = 0, 1, 2, 3
vMLO, vMHI, vIDX = 4, 5, 6
vTMP = 7
vT = 8
cPW, cPR, cPA, cTAG, cGD, cX1, cX2, cX3 = range(40, 48)
vWW = 48
NWORK = 80


def srd(b):
    return f"s[{b}:{b + 3}]"


def v(a, n=1):
    return f"v{a}" if n == 1 else f"v[{a}:{a + n - 1}]"


def sp(a):
    return f"s[{a}:{a + 1}]"


def T(i):
    assert 0 <= i < 32
    return vT + i


REDUCE = ("quad_perm:[1,0,3,2] row_mask:0xf", "quad_perm:[2,3,0,1] row_mask:0xf",
          "row_half_mirror row_mask:0xf", "row_mirror row_mask:0xf",
          "row_bcast:15 row_mask:0xa", "row_bcast:31 row_mask:0xc")


class Gen:
    def __init__(self, depth=6, pace=120, pace_tb=170, stamps=False, clk=False, spin=1 << 16,
                 depth_a=8, depth_a_until=40, depth_s=9, depth_r=9, depth_end=None, end_len=16,
                 win_e=(0, 29), win_o=(26, 0, 3), win_d=0, touch=16, far_per_near=3,
                 x_at=26, c_at=32, w_gap=2, shadow=10, tb_gap=2,
                 force_slow=False, tiny=TB_BASE, mark_at=(), out_scale=None, ww_pol="nt",
                 flag=True, boost=2, boost_rng=(66, 124), prewrite=False, w_at=8, boost_e=False, wo_pf=False,
                 rank=(), rank_thr=22, boost2_rng=(300, 300), recode=False, pad=0, slack=(2, 2, 2, 2)):
        self.__dict__.update(locals())
        del self.__dict__["self"]
        self.e = Emitter()
        self.nvslot = (256 - NWORK) // 4
        self.nhome = 64 - self.nvslot
        self.wave_lds = (163840 - SCRATCH) // 4
        self.HOME = 0
        self.RING = self.nhome * 1024
        self.ring = (self.wave_lds - self.RING) // 1024 - (1 if touch else 0)
        self.ool = []
        self.nstamp = 0
        self.stamp_names = []
        self.stamp_info = {}
        self.ctx = ""
        self.items = []
        self.home = {}
        self.toks = {}
        self.seq = []
        self.issued = 0
        self.touched = 0
        self.last_issue = 0
        self.switched = set()
        self.mode = "A"
        self.depth_now = None
        self.per_tick = 1
        self.freed = 0
        self.tb_lds = False

    def mark(self, name):
        self.ctx = ""
        self.stamp(name)

    def stamp(self, name):
        if not self.stamps:
            return
        name = self.ctx + name
        if name != "start" and not re.fullmatch(self.stamps, name):
            return
        e = self.e
        e(f"{'s_memtime' if self.clk else 's_memrealtime'} {sp(sSTMP)}")
        e.wait_lg_all()
        e(f"s_mov_b32 s{STAMP_REGS[self.nstamp]}, s{sSTMP}")
        self.stamp_names.append(name)
        self.stamp_info[name] = self.issued + self.touched
        self.nstamp += 1

    def dump_stamps(self):
        if not self.stamps:
            return
        e = self.e
        for k in range(self.nstamp):
            e(f"v_writelane_b32 v{vT}, s{STAMP_REGS[k]}, {k}")
        e(f"s_lshl_b32 s{sT0}, s2, 2")
        e(f"s_add_u32 s{sT0}, s{sT0}, s{sW}")
        e(f"s_lshl_b32 s{sT0}, s{sT0}, 7")
        e(f"s_add_u32 s{sT0}, s{sT0}, {STAMP_OFF}")
        e(f"v_lshlrev_b32 v{vT + 1}, 2, v{vLANE}")
        e("s_mov_b32 exec_hi, 0")
        e(f"buffer_store_dword v{vT}, v{vT + 1}, {srd(SRD_WS)}, s{sT0} offen")

    def cycles(self):
        t = 0
        for i in self.e.ins[self.last_issue:]:
            t += 16 if i.mfma else 8 if (i.trans or i.op.startswith("v_pk_")) else 4 * i.states()
        return t

    def reg_home(self, k):
        if k < 64:
            return ("r", f"a[{4 * k}:{4 * k + 3}]")
        b = NWORK + 4 * (k - 64)
        assert b + 3 < 256
        return ("r", v(b, 4))

    def v_home(self, t):
        return ("l", self.HOME + 1024 * t) if t < self.nhome else self.reg_home(64 + t - self.nhome)

    def cur_depth(self):
        if self.depth_now:
            return self.depth_now
        if self.depth_end and (128 - self.end_len <= self.issued < 128 or self.issued >= 256 - self.end_len):
            return self.depth_end
        return self.depth_a if self.issued < self.depth_a_until else self.depth

    def boosted(self):
        return self.boost and (self.boost_rng[0] <= self.issued < self.boost_rng[1]
                               or self.boost2_rng[0] <= self.issued < self.boost2_rng[1])

    def take_rank(self, k):
        if k not in self.rank:
            return
        e = self.e
        d = vTMP
        e(f"s_xor_b32 s{sCNT}, s{sN}, {0x51ed2700 + k}")
        e(f"v_mov_b32 v{d}, s{sCNT}")
        e(f"s_lshl_b32 s{sOFF}, s{sRHO}, 2")
        e(f"s_add_u32 s{sOFF}, s{sOFF}, {RP}")

        def post():
            e("s_mov_b64 exec, 1")
            e.vmem(f"buffer_store_dword v{d}, off, {srd(SRD_WS)}, s{sOFF}", maybe=True)
            e("s_mov_b64 exec, -1")

        self.wave0(post)
        e(f"s_lshl_b32 s{sOFF}, s{sG}, 7")
        e(f"s_add_u32 s{sOFF}, s{sOFF}, {RP}")
        e(f"v_and_b32 v{d}, 31, v{vLANE}")
        e(f"v_lshlrev_b32 v{d}, 2, v{d}")
        tok = e.vmem(f"buffer_load_dword v{d}, v{d}, {srd(SRD_WS)}, s{sOFF} offen sc1")
        self.stream(self.cur_depth() - 1)
        e.wait_vm(tok)
        e(f"v_cmp_eq_u32 vcc, s{sCNT}, v{d}")
        e(f"s_bcnt1_i32_b32 s{sOFF}, vcc_lo")
        e(f"s_cmp_ge_u32 s{sOFF}, {self.rank_thr}")
        e(f"s_cselect_b32 s{sBOOST}, 1, 0")

    def slot_offset(self, t):
        e = self.e
        e(f"s_add_u32 s{sOFF}, s{sROT}, {t}")
        e(f"s_and_b32 s{sOFF}, s{sOFF}, 63")
        e(f"s_lshl_b32 s{sOFF}, s{sOFF}, 12")

    def issue(self, paced=True):
        e = self.e
        if self.issued >= len(self.items):
            return False
        key = self.items[self.issued]
        kind, b, t = key
        if key not in self.home:
            if self.mode == "W":
                return self.pull(paced)
            if kind == "V" or t - self.ring >= self.freed:
                return False
            self.home[key] = self.reg_home(t - self.ring)
        if paced:
            d = self.cur_depth() - 1
            if self.boosted():
                self.drain(d + self.boost)
                n = sum(1 for _, mb in e.vm if not mb) - self.boost
                if self.in_flight() == d + self.boost and n >= 0:
                    l = e.label("deep")
                    e(f"s_cmp_lg_u32 s{sBOOST}, 0")
                    e(f"s_cbranch_scc1 {l}")
                    e(f"s_waitcnt vmcnt({n})")
                    e(f"{l}:")
            else:
                self.drain(d)
        if b == 1 and kind not in self.switched:
            self.switched.add(kind)
            r = vK if kind == "K" else vV
            e(f"v_add_u32 v{r}, 0x4000000, v{r}")
        hk, hv = self.home[key]
        if hk == "l":
            e(f"s_add_u32 m0, s{sLB}, {hv}")
        self.slot_offset(t)
        va, sr = (vK, SRD_K) if kind == "K" else (vV, SRD_V)
        if hk == "l":
            self.toks[key] = e.vmem(f"buffer_load_dwordx4 v{va}, {srd(sr)}, s{sOFF} offen nt lds")
        else:
            self.toks[key] = e.vmem(f"buffer_load_dwordx4 {hv}, v{va}, {srd(sr)}, s{sOFF} offen nt")
        self.seq.append(self.toks[key])
        self.issued += 1
        self.last_issue = len(e.ins)
        if self.issued in self.mark_at:
            ctx, self.ctx = self.ctx, ""
            self.stamp(f"n{self.issued}")
            self.ctx = ctx
        return True

    def pull(self, paced):
        e = self.e
        if self.touched >= self.touch:
            return False
        if paced:
            self.drain(self.cur_depth() - 1)
        e(f"s_add_u32 m0, s{sLB}, {self.RING + self.ring * 1024}")
        self.slot_offset(self.ring + self.touched)
        self.seq.append(e.vmem(f"buffer_load_dwordx4 v{vK}, {srd(SRD_K)}, s{sOFF} offen lds"))
        self.touched += 1
        self.last_issue = len(e.ins)
        return True

    def drain(self, k):
        if len(self.seq) > k:
            self.e.wait_vm(self.seq[len(self.seq) - k - 1])

    def in_flight(self):
        live = {id(t) for t, _ in self.e.vm}
        return sum(1 for t in self.seq if id(t) in live)

    def stream(self, k):
        for _ in range(k):
            self.issue()

    def burst(self, k):
        for _ in range(k):
            self.issue(paced=False)

    def tick(self):
        if self.cycles() >= self.pace:
            self.stream(self.per_tick)

    def arrive(self, key):
        n = self.items.index(key)
        more = self.boost if self.boosted() else 0
        while self.issued < min(n + self.cur_depth() + more, len(self.items)):
            if not self.issue():
                break
        assert self.issued > n
        self.e.wait_vm(self.toks[key])

    def by_role(self, even, odd, more=0):
        e = self.e
        names = ("issued", "touched", "seq", "toks", "home", "switched", "last_issue")
        start = {n: copy.copy(getattr(self, n)) for n in names}
        vm0, lg0, main = list(e.vm), list(e.lg), e.ins
        runs = []
        for f in (even, odd):
            for n in names:
                setattr(self, n, copy.copy(start[n]))
            e.vm, e.lg, e.ins = list(vm0), list(lg0), []
            self.last_issue = 0
            e.begin_cond()
            f()
            e.wait_lg_all() if e.lg else None
            cond = e.cond
            e.end_cond()
            runs.append([{n: getattr(self, n) for n in names}, e.vm, e.ins, cond])
        if True:
            goal = max(r[0]["issued"] for r in runs) + more
            for r in runs:
                if r[0]["issued"] < goal:
                    for n in names:
                        setattr(self, n, r[0][n])
                    e.vm, e.lg, e.ins, keep = r[1], [], r[2], e.cond
                    e.cond = r[3]
                    self.stream(goal - self.issued)
                    e.cond = keep
                    r[0], r[1] = {n: getattr(self, n) for n in names}, e.vm
            assert runs[0][0]["issued"] == runs[1][0]["issued"]
            assert runs[0][0]["home"] == runs[1][0]["home"] and runs[0][0]["switched"] == runs[1][0]["switched"]
        lo, lj = e.label("odd"), e.label("join")
        e.exclusive.add((runs[0][3][-1], runs[1][3][-1]))
        e.ins = main
        e(f"s_cmp_lg_u32 s{sROLE}, 0")
        e(f"s_cbranch_scc1 {lo}")
        e.ins.extend(runs[0][2])
        keep, e.cond = e.cond, runs[0][3]
        e(f"s_branch {lj}")
        e.cond = keep
        e(f"{lo}:")
        e.ins.extend(runs[1][2])
        e(f"{lj}:")
        st = runs[0][0]
        for n in names:
            setattr(self, n, st[n])
        self.touched = max(r[0]["touched"] for r in runs)
        ident = [{id(t): key for key, t in r[0]["toks"].items()} for r in runs]
        name = lambda i, t: ident[i].get(id(t), id(t))
        va, vb = runs[0][1], runs[1][1]
        n = 0
        while (n < min(len(va), len(vb)) and name(0, va[-1 - n][0]) == name(1, vb[-1 - n][0])
               and va[-1 - n][1] == vb[-1 - n][1]):
            n += 1
        common = va[len(va) - n:]
        rest, seen = [], {name(0, t) for t, _ in common}
        for i, lst in enumerate((va, vb)):
            for t, _ in lst:
                k = name(i, t)
                if k not in seen:
                    seen.add(k)
                    rest.append((st["toks"].get(k, t), True))
        e.vm, e.lg = rest + common, []
        live = {id(t) for t, _ in va}
        known = {id(t) for t, _ in e.vm}
        self.seq = [t for t in st["seq"] if id(t) in known or id(t) not in live]
        self.last_issue = len(e.ins)

    def wave0(self, body):
        e = self.e
        l = e.label("w0")
        e(f"s_cmp_lg_u32 s{sW}, 0")
        e(f"s_cbranch_scc1 {l}")
        e.begin_cond()
        r = body()
        e.end_cond()
        e(f"{l}:")
        return r

    def barrier(self, tick=True):
        if tick:
            self.tick()
        self.e.wait_lg_all()
        self.e("s_barrier")
        self.stamp("bar")

    def qk(self, keys, q, qm, S, acc, hook=None, arrive=None, side=None):
        e = self.e
        mask = lambda m: [f"v_cndmask_b32_e64 v{qm + 4 * m + i}, 0, v{q + i}, {sp(sBK + 2 * m)}" for i in range(4)]
        dp = lambda r: f"quad_perm:[{r},{r},{r},{r}] row_mask:0xf bank_mask:0xf"
        for o in mask(0) + mask(1):
            e(o)
        for u in range(18):
            gaps = [[], [], [], []]
            if u == 0:
                gaps = [mask(2), mask(3), [], []]
            if u >= 2:
                pu = u - 2
                a = acc + 4 * (pu % 3)
                gaps = [[f"v_mov_b32_dpp v{a}, v{a} {dp(0)}", f"v_mov_b32_dpp v{a + 2}, v{a + 2} {dp(2)}"],
                        [f"v_add_f32_dpp v{a}, v{a + 1}, v{a} {dp(1)}", f"v_add_f32_dpp v{a + 2}, v{a + 3}, v{a + 2} {dp(3)}"],
                        [f"v_add_f32 v{a}, v{a}, v{a + 2}"],
                        [f"v_cndmask_b32_e64 v{S + (pu >> 2)}, v{S + (pu >> 2)}, v{a}, {sp(sQ4 + 2 * (pu & 3))}"]]
            if u >= 16:
                for g in gaps:
                    for o in g:
                        e(o)
                continue
            more = side(u) if side else []
            a = acc + 4 * (u % 3)
            for m in range(4):
                t = 4 * u + m
                if arrive:
                    arrive(keys[t])
                kind, src = self.home[keys[t]]
                assert kind == "r"
                c = "0" if m == 0 else v(a, 4)
                e(f"v_mfma_f32_16x16x32_bf16 {v(a, 4)}, {src}, {v(qm + 4 * m, 4)}, {c}")
                if hook:
                    hook(t)
                for o in gaps[m]:
                    e(o)
                if m >= 2 and more:
                    o = more.pop(0)
                    e.lds(o) if o.startswith("ds_") else e(o)
            self.tick()

    def wave_reduce(self, op, regs, fill=None):
        e = self.e
        for ctl in REDUCE:
            for _ in range(3 - len(regs)):
                if fill:
                    e(fill.pop(0))
            for r in regs:
                e(f"{op}_dpp v{r}, v{r}, v{r} {ctl} bank_mask:0xf")

    def softmax(self, S, R, tm, O):
        e = self.e
        c = 128 ** -0.5 * math.log2(math.e)
        fill = [f"v_mov_b32 v{O + i}, 0" for i in range(8)] + [f"v_mov_b32 v{tm + 1}, {fbits(c)}"]
        e(f"v_max3_f32 v{tm}, v{S}, v{S + 1}, v{S + 2}")
        e(f"v_max_f32 v{tm}, v{tm}, v{S + 3}")
        self.wave_reduce("v_max_f32", [tm], fill)
        for o in fill:
            e(o)
        e(f"v_mul_f32 v{tm}, {fbits(c)}, v{tm}")
        e(f"v_readlane_b32 s{sM}, v{tm}, 63")
        for i in range(4):
            e(f"v_fma_f32 v{S + i}, v{S + i}, v{tm + 1}, -s{sM}")
        for i in range(4):
            e(f"v_exp_f32 v{S + i}, v{S + i}")
        for i in range(4):
            e(f"v_cvt_pk_bf16_f32 v{R + 2 * i}, v{S + i}, v{S + i}")
            e(f"v_cvt_pk_bf16_f32 v{R + 2 * i + 1}, v{S + i}, v{S + i}")
        for i in range(4):
            e(f"v_mov_b32_dpp v{R + 2 * i}, v{R + 2 * i} row_shr:4 row_mask:0xf bank_mask:0xa")
            e(f"v_mov_b32_dpp v{R + 2 * i + 1}, v{R + 2 * i + 1} row_shl:4 row_mask:0xf bank_mask:0x5")
        e(f"v_add_f32 v{vTMP}, v{S}, v{S + 1}")
        e(f"v_add_f32 v{S + 2}, v{S + 2}, v{S + 3}")
        for i in range(4):
            e(f"v_permlane32_swap_b32 v{R + 2 * i}, v{R + 2 * i + 1}")
        e(f"v_add_f32 v{vTMP}, v{vTMP}, v{S + 2}")
        r = vTMP
        return [f"v_add_f32_dpp v{r}, v{r}, v{r} {ctl} bank_mask:0xf" for ctl in REDUCE] + [f"v_readlane_b32 s{sL}, v{r}, 63"]

    def pv(self, keys, R, O, AB, stage, extra, late, arrive=None):
        e = self.e

        def build(u):
            c = u & 3
            a = AB + 4 * (u & 1)
            dp = f"quad_perm:[{c},{c},{c},{c}] row_mask:0xf bank_mask:0xf"
            r = R + 2 * (u >> 2)
            return [f"v_and_b32_dpp v{a}, v{r}, v{vMLO} {dp}", f"v_and_b32_dpp v{a + 1}, v{r}, v{vMHI} {dp}",
                    f"v_and_b32_dpp v{a + 2}, v{r + 1}, v{vMLO} {dp}", f"v_and_b32_dpp v{a + 3}, v{r + 1}, v{vMHI} {dp}"]

        def in_lds(p):
            return p < 32 and self.home.get(keys[2 * p], ("r",))[0] == "l"

        def fetch(p):
            if arrive:
                arrive(keys[2 * p + 1])
            e.lds(f"ds_read_b128 {v(stage, 4)}, v{vL} offset:{self.home[keys[2 * p]][1]}")
            return e.lds(f"ds_read_b128 {v(stage + 4, 4)}, v{vL} offset:{self.home[keys[2 * p + 1]][1]}")

        tok = fetch(0) if in_lds(0) else None
        for o in build(0):
            e(o)
        for u in range(16):
            nxt = build(u + 1) if u < 15 else []
            a = AB + 4 * (u & 1)
            for half in range(2):
                p = 2 * u + half
                for o in nxt[2 * half:2 * half + 2]:
                    e(o)
                if in_lds(p):
                    e.wait_lg(tok)
                    src = v(stage, 8)
                else:
                    if arrive:
                        arrive(keys[2 * p + 1])
                    h0, h1 = self.home[keys[2 * p]][1], self.home[keys[2 * p + 1]][1]
                    lo, hi = re.findall(r"\d+", h0), re.findall(r"\d+", h1)
                    assert h0[0] == h1[0] and int(lo[1]) + 1 == int(hi[0]), (h0, h1)
                    src = f"{h0[0]}[{lo[0]}:{hi[1]}]"
                e(f"v_smfmac_f32_16x16x64_bf16 {v(O + 4 * half, 4)}, {v(a, 4)}, {src}, v{vIDX}")
                if in_lds(p + 1):
                    tok = fetch(p + 1)
            if extra:
                e(extra.pop(0))
            elif not in_lds(2 * u + 2):
                for _ in range(-(-len(late) // (15 - u)) if u < 15 else len(late)):
                    o = late.pop(0)
                    e.lds(o) if "ds_" in o else e(o)
            self.tick()
        assert not extra and not late

    def tag_op(self, dst, use):
        return f"v_add3_u32 v{dst}, v{cTAG}, s{sTB}, {use}"

    def gather_tags(self, base, use):
        ops = []
        for k in range(4):
            ops += [f"s_add_u32 s{base + k}, s{sTB}, {use + TAGC[k]}", f"s_and_b32 s{base + k}, s{base + k}, 0xff"]
        return ops

    def tag(self, val, tg):
        self.e(f"v_bfi_b32 v{val}, s{sFF}, v{tg}, v{val}")

    def gather(self, tags, loads, regs, tmp, hooks, shadow=None):
        e = self.e
        tok = None
        self.stamp("prep")
        hooks[0]()
        for l in loads:
            if l.startswith("buffer_"):
                tok = e.vmem(l)
            else:
                e(l)
        self.stamp("iss")
        if shadow:
            shadow()
        hooks[1]()
        e.wait_vm(tok)
        self.stamp("first")
        chk = [f"v_xor_b32 v{r}, s{tags + k}, v{r}" for r, k in regs]
        rs = [r for r, _ in regs]
        chk.append(f"v_or3_b32 v{tmp}, v{rs[0]}, v{rs[1]}, v{rs[2]}")
        rs = rs[3:]
        while len(rs) >= 2:
            chk.append(f"v_or3_b32 v{tmp}, v{tmp}, v{rs[0]}, v{rs[1]}")
            rs = rs[2:]
        if rs:
            chk.append(f"v_or_b32 v{tmp}, v{tmp}, v{rs[0]}")
        chk.append(f"v_and_b32 v{tmp}, 0xff, v{tmp}")
        chk.append(f"v_cmp_ne_u32 vcc, 0, v{tmp}")
        self.retry(loads, chk)
        self.tick()

    def retry(self, loads, chk):
        e = self.e
        lr, ll, lx, ok = e.label("retry"), e.label("rloop"), e.label("rdone"), e.label("ok")
        cnt = []
        name = self.ctx + "#retry"
        if self.stamps and re.fullmatch(self.stamps, name):
            r = STAMP_REGS[self.nstamp]
            e(f"s_mov_b32 s{r}, 0")
            cnt = [f"s_add_u32 s{r}, s{r}, 1"]
            self.stamp_names.append(name)
            self.nstamp += 1
        for c in chk:
            e(c)
        e(f"s_cbranch_vccnz {lr}")
        e(f"{ok}:")
        self.stamp("got")
        blk = [f"{lr}:", f"s_mov_b32 s{sCNT}, {self.spin}", f"{ll}:", "s_mov_b64 exec, vcc"]
        blk += cnt + list(loads) + ["s_waitcnt vmcnt(0)"] + chk
        blk += [f"s_cbranch_vccz {lx}", f"s_sub_u32 s{sCNT}, s{sCNT}, 1", f"s_cmp_lg_u32 s{sCNT}, 0",
                f"s_cbranch_scc1 {ll}", f"{lx}:", "s_mov_b64 exec, -1", f"s_branch {ok}"]
        self.ool.append(blk)

    def publish_local(self, ins, maybe=False):
        e = self.e
        ls, ld = e.label("slow"), e.label("pub")
        e(f"s_cmp_eq_u32 s{sFAST}, 0")
        e(f"s_cbranch_scc1 {ls}")
        tok = e.vmem(ins, maybe=maybe)
        e(f"{ld}:")
        self.ool.append([f"{ls}:", ins + " sc1", f"s_branch {ld}"])
        return tok

    def await_flag(self, use):
        if not self.flag:
            return
        e = self.e
        ctx, self.ctx = self.ctx, f"f{use}."
        ld = f"buffer_load_dword v{T(25)}, off, {srd(SRD_WS)}, s{sRF} sc1"
        e(f"s_xor_b32 s{sT0}, s{sN}, {0x6b43a9b0 + use}")
        e.wait_vm(e.vmem(ld))
        self.retry([ld], [f"v_cmp_ne_u32 vcc, s{sT0}, v{T(25)}"])
        self.ctx = ctx

    def half_sum(self, a):
        e = self.e
        e(f"v_permlane32_swap_b32 v{a}, v{a + 2}")
        e(f"v_permlane32_swap_b32 v{a + 1}, v{a + 3}")
        e(f"v_add_f32 v{a}, v{a}, v{a + 2}")
        e(f"v_add_f32 v{a + 1}, v{a + 1}, v{a + 3}")

    def prep_p(self, use):
        ops = self.gather_tags(sTG, use) + [f"s_add_u32 s{sT0}, s{sPA}, {(use & 1) * RA_HALF}",
                                            f"s_add_u32 s{sT1}, s{sGA}, {(use & 1) * RA_HALF}"]
        ops += [self.tag_op(T(27), use), f"v_mov_b32 v{T(30)}, s{sM}", f"v_mov_b32 v{T(31)}, s{sL}",
                f"v_lshlrev_b32_e64 v{vTMP}, 3, s{sW}",
                "s_mov_b64 exec, 1\n" + f"ds_write_b64 v{vTMP}, {v(T(30), 2)} offset:{MLW}\n" + "s_mov_b64 exec, -1",
                f"v_mov_b32 v{vTMP}, 0"]
        return ops

    def step_p(self, use, O):
        self.ctx = f"p{use}."
        e = self.e
        for r in range(4):
            e(f"v_cndmask_b32_e64 v{O + r}, v{O + r}, v{O + 4 + r}, {sp(sHI)}")
        self.half_sum(O)
        e.lds(f"ds_write_b64 v{cPW}, {v(O, 2)} offset:{OW}")
        self.barrier()
        e.lds(f"ds_read_b128 {v(T(0), 4)}, v{vTMP} offset:{MLW}")
        t1 = e.lds(f"ds_read_b128 {v(T(4), 4)}, v{vTMP} offset:{MLW + 16}")
        for w in range(4):
            t2 = e.lds(f"ds_read_b32 v{T(8 + w)}, v{cPR} offset:{OW + 512 * w}")
        e.wait_lg(t1)
        e(f"v_max3_f32 v{T(14)}, v{T(0)}, v{T(2)}, v{T(4)}")
        e(f"v_max_f32 v{T(14)}, v{T(14)}, v{T(6)}")
        for w in range(4):
            e(f"v_sub_f32 v{T(2 * w)}, v{T(2 * w)}, v{T(14)}")
        for w in range(4):
            e(f"v_exp_f32 v{T(2 * w)}, v{T(2 * w)}")
        e(f"v_lshlrev_b32 v{T(13)}, 8, v{T(14)}")
        e(f"v_cndmask_b32_e64 v{T(14)}, v{T(14)}, v{T(13)}, {sp(sQ4 + 4)}")
        e.wait_lg(t2)
        for w in range(4):
            e(f"v_cndmask_b32_e64 v{T(8 + w)}, v{T(8 + w)}, v{T(2 * w + 1)}, {sp(sHI)}")
        e(f"v_mul_f32 v{T(15)}, v{T(0)}, v{T(8)}")
        for w in range(1, 4):
            e(f"v_fmac_f32 v{T(15)}, v{T(2 * w)}, v{T(8 + w)}")
        e(f"v_cndmask_b32_e64 v{T(15)}, v{T(15)}, v{T(14)}, {sp(sEVH)}")
        self.tag(T(15), T(27))
        e(f"s_mov_b32 exec_hi, s{sPUBHI}")
        self.publish_local(f"buffer_store_dword v{T(15)}, v{cPA}, {srd(SRD_WS)}, s{sT0} offen")
        e("s_mov_b32 exec_hi, -1")

    def step_a(self, use, hooks):
        self.ctx = f"a{use}."
        e = self.e
        loads = [f"buffer_load_dwordx4 {v(T(16), 4)}, v{cX2}, {srd(SRD_WS)}, s{sT1} offen offset:512 sc1"]
        loads += [f"buffer_load_dwordx4 {v(T(4 * u), 4)}, v{cX1}, {srd(SRD_WS)}, s{sT1} offen offset:{1280 * u} sc1"
                  for u in range(4)]
        orr, yw, l4 = T(24), T(25), T(26)

        def shadow():
            e(f"v_and_b32 v{T(22)}, 48, v{vLANE}")
            e(f"v_lshl_add_u32 v{orr}, s{sW}, 8, v{T(22)}")
            e(f"v_lshl_add_u32 v{yw}, s{sW}, 7, v{T(22)}")
            e(f"v_lshlrev_b32 v{l4}, 2, v{vLANE}")
            e(f"s_add_u32 s{sT0}, s{sPX}, {use * 16384}")

        self.gather(sTG, loads, [(T(i), i & 3) for i in list(range(16, 20)) + list(range(16))], T(20), hooks, shadow)
        m, l, t = T(16), T(17), T(20)
        e(f"v_lshrrev_b32 v{T(18)}, 8, v{T(18)}")
        e(f"v_or_b32 v{m}, v{m}, v{T(18)}")
        e(f"v_max_f32_dpp v{t}, v{m}, v{m} quad_perm:[1,0,3,2] row_mask:0xf bank_mask:0xf")
        e(f"v_max_f32_dpp v{t}, v{t}, v{t} quad_perm:[2,3,0,1] row_mask:0xf bank_mask:0xf")
        e(f"v_max_f32_dpp v{t}, v{t}, v{t} row_half_mirror row_mask:0xf bank_mask:0xf")
        e(f"v_sub_f32 v{m}, v{m}, v{t}")
        e(f"v_exp_f32 v{m}, v{m}")
        e(f"v_mul_f32 v{l}, v{m}, v{l}")
        acc = T(28)
        lch = [f"v_add_f32_dpp v{l}, v{l}, v{l} quad_perm:[1,0,3,2] row_mask:0xf bank_mask:0xf",
               f"v_add_f32_dpp v{l}, v{l}, v{l} quad_perm:[2,3,0,1] row_mask:0xf bank_mask:0xf",
               f"v_add_f32_dpp v{l}, v{l}, v{l} row_half_mirror row_mask:0xf bank_mask:0xf",
               f"v_rcp_f32 v{l}, v{l}"]
        for u in range(4):
            for k in range(4):
                op = "v_mul_f32_dpp" if u == 0 else "v_fmac_f32_dpp"
                e(f"{op} v{acc + k}, v{m}, v{T(4 * u + k)} row_newbcast:{2 * u} row_mask:0xf bank_mask:0xf")
            e(lch[u])
        self.tick()
        self.half_sum(acc)
        e(f"v_mul_f32 v{acc}, v{acc}, v{l}")
        e(f"v_mul_f32 v{acc + 1}, v{acc + 1}, v{l}")
        e(f"v_cvt_pk_bf16_f32 v{acc}, v{acc}, v{acc + 1}")
        e.lds(f"ds_write_b32 v{cX3}, v{acc} offset:{OBF}")
        tb = [e.lds(f"ds_read_b128 {v(T(4 * n), 4)}, v{orr} offset:{OBF + 64 * n}") for n in range(4)]
        D = [T(16), T(20)]
        for n in range(4):
            e.wait_lg(tb[n])
            for ct in range(2):
                cc = "0" if n == 0 else v(D[ct], 4)
                e(f"v_mfma_f32_16x16x32_bf16 {v(D[ct], 4)}, {v(vWW + 16 * ct + 4 * n, 4)}, {v(T(4 * n), 4)}, {cc}")
        e("s_mov_b32 exec_lo, 0x00010001")
        e("s_mov_b32 exec_hi, 0x00010001")
        for ct in range(2):
            e.lds(f"ds_write_b128 v{yw}, {v(D[ct], 4)} offset:{YW + 64 * ct}")
        e("s_mov_b64 exec, -1")
        e(f"s_xor_b32 s{sCNT}, s{sN}, {0x6b43a9b0 + use}")
        self.barrier()
        e(f"v_mov_b32 v{T(23)}, s{sCNT}")

        def pub():
            e("s_mov_b32 exec_hi, 0")
            for w in range(4):
                e(f"ds_read_b32 v{T(2 + w)}, v{l4} offset:{YW + 128 * w}")
            e("s_waitcnt lgkmcnt(0)")
            e(f"v_add_f32 v{T(2)}, v{T(2)}, v{T(3)}")
            e(f"v_add_f32 v{T(4)}, v{T(4)}, v{T(5)}")
            e(f"v_add_f32 v{T(2)}, v{T(2)}, v{T(4)}")
            self.tag(T(2), T(27))
            e.vmem(f"buffer_store_dword v{T(2)}, v{l4}, {srd(SRD_WS)}, s{sT0} offen sc1", maybe=True)
            if self.flag and use != 1:
                self.publish_local(f"buffer_store_dword v{T(23)}, v{l4}, {srd(SRD_WS)}, s{sRF} offen", maybe=True)
            e("s_mov_b32 exec_hi, -1")

        self.wave0(pub)
        self.stamp("pub")

    def build_table(self):
        self.ctx = "t."
        e = self.e
        LA, LB = self.RING, self.RING + 172 * 16
        e(f"s_mul_i32 s{sT0}, s{sW}, 688")
        e(f"v_lshlrev_b32 v{T(28)}, 4, v{vLANE}")
        e.vmem(f"buffer_load_dwordx4 {v(T(0), 4)}, v{T(28)}, {srd(SRD_W1)}, s{sT0} offen")
        e.vmem(f"buffer_load_dwordx4 {v(T(4), 4)}, v{T(28)}, {srd(SRD_B1)}, s{sT0} offen")
        tok = e.vmem(f"buffer_load_dwordx4 {v(T(8), 4)}, v{T(28)}, {srd(SRD_W2)}, s{sT0} offen")
        self.stream(self.cur_depth() - 1)
        e(f"v_lshl_add_u32 v{T(29)}, v{vLANE}, 6, s{sLB}")
        e(f"v_lshl_add_u32 v{T(30)}, v{vLANE}, 5, s{sLB}")
        e.wait_vm(tok)
        e("s_mov_b32 exec_hi, 0x7ff")
        for p in range(4):
            q = T(12 + 6 * (p & 1))
            e(f"v_lshlrev_b32 v{q}, 16, v{T(p)}")
            e(f"v_and_b32 v{q + 1}, 0xffff0000, v{T(p)}")
            e(f"v_lshlrev_b32 v{q + 2}, 16, v{T(4 + p)}")
            e(f"v_and_b32 v{q + 3}, 0xffff0000, v{T(4 + p)}")
            e(f"v_lshlrev_b32 v{q + 4}, 16, v{T(8 + p)}")
            e(f"v_and_b32 v{q + 5}, 0xffff0000, v{T(8 + p)}")
            e.lds(f"ds_write_b128 v{T(29)}, {v(q, 4)} offset:{LA + 16 * p}")
            e.lds(f"ds_write_b64 v{T(30)}, {v(q + 4, 2)} offset:{LB + 8 * p}")
            if p == 1:
                e.wait_lg_all()
        e("s_mov_b32 exec_hi, -1")
        H, aA, aB, U, E, ACC = T(24), T(26), T(27), T(0), T(2), T(4)
        e(f"s_and_b32 s{sT0}, s2, 127")
        e(f"s_lshl_b32 s{sT0}, s{sT0}, 5")
        e(f"v_and_b32 v{H}, 31, v{vLANE}")
        e(f"v_add_u32 v{H}, s{sT0}, v{H}")
        e(f"v_cmp_ne_u32 vcc, 0, v{H}")
        e(f"s_lshr_b32 s{sT0}, s2, 7")
        e(f"s_lshl_b32 s{sT0}, s{sT0}, 15")
        e(f"s_add_u32 s{sT0}, s{sT0}, {TB_BASE}")
        e(f"v_add_u32 v{H}, s{sT0}, v{H}")
        e(f"v_lshlrev_b32 v{H}, 16, v{H}")
        e(f"v_cndmask_b32 v{H}, 0, v{H}, vcc")
        e(f"v_lshrrev_b32 v{aB}, 5, v{vLANE}")
        e(f"v_mul_u32_u24 v{aA}, {86 * 16}, v{aB}")
        e(f"v_mul_u32_u24 v{aB}, {86 * 8}, v{aB}")
        e(f"v_add_u32 v{aA}, s{sLB}, v{aA}")
        e(f"v_add_u32 v{aB}, s{sLB}, v{aB}")
        e(f"s_mov_b32 s{sTG}, {fbits(-GELU_K * 0.044715)}")
        e(f"s_mov_b32 s{sTG + 1}, {fbits(-GELU_K)}")
        e(f"v_mov_b32 v{ACC}, 0")
        e(f"v_mov_b32 v{ACC + 1}, 0")
        e.wait_lg_all()
        buf = [T(8), T(16)]

        def fetch(i):
            q = buf[i & 1]
            e.lds(f"ds_read_b128 {v(q, 4)}, v{aA} offset:{LA + 16 * i}")
            return e.lds(f"ds_read_b64 {v(q + 4, 2)}, v{aB} offset:{LB + 8 * i}")

        tk = fetch(0)
        pace, self.pace = self.pace, self.pace_tb
        for i in range(86):
            nx = fetch(i + 1) if i < 85 else None
            q = buf[i & 1]
            e.wait_lg(tk)
            self.gelu_pair(H, q, q + 2, q + 4, U, E, ACC)
            tk = nx
            self.tick()
        self.pace = pace
        e(f"v_add_f32 v{ACC}, v{ACC}, v{ACC + 1}")
        e(f"v_mov_b32 v{ACC + 1}, v{ACC}")
        e(f"v_lshlrev_b32 v{T(7)}, 2, v{vLANE}")
        e(f"v_permlane32_swap_b32 v{ACC}, v{ACC + 1}")
        e(f"v_add_f32 v{ACC}, v{ACC}, v{ACC + 1}")
        e("s_mov_b32 exec_hi, 0")
        e.lds(f"ds_write_b32 v{cPR}, v{ACC} offset:{TW}")
        e("s_mov_b32 exec_hi, -1")
        self.barrier()

        def pub():
            e("s_mov_b32 exec_hi, 0")
            for w in range(4):
                e(f"ds_read_b32 v{T(w)}, v{T(7)} offset:{TW + 128 * w}")
            e(f"s_lshl_b32 s{sT0}, s2, 7")
            e(f"s_add_u32 s{sT0}, s{sT0}, {TB}")
            e("s_waitcnt lgkmcnt(0)")
            e(f"v_add_f32 v{T(0)}, v{T(0)}, v{T(1)}")
            e(f"v_add_f32 v{T(2)}, v{T(2)}, v{T(3)}")
            e(f"v_add_f32 v{T(0)}, v{T(0)}, v{T(2)}")
            e(f"v_add_f32 v{T(0)}, s{sB2}, v{T(0)}")
            e.vmem(f"buffer_store_dword v{T(0)}, v{T(7)}, {srd(SRD_WS)}, s{sT0} offen sc1", maybe=True)
            e("s_mov_b32 exec_hi, -1")

        self.wave0(pub)

    def gelu_pair(self, H, W1, B1, W2, U, E, ACC):
        e = self.e
        c = sp(sTG)
        e(f"v_pk_fma_f32 {v(U, 2)}, {v(H, 2)}, {v(W1, 2)}, {v(B1, 2)} op_sel_hi:[0,1,1]")
        e(f"v_pk_mul_f32 {v(E, 2)}, {v(U, 2)}, {v(U, 2)}")
        e(f"v_pk_fma_f32 {v(E, 2)}, {v(E, 2)}, {c}, {c} op_sel:[0,0,1] op_sel_hi:[1,0,1]")
        e(f"v_pk_mul_f32 {v(E, 2)}, {v(U, 2)}, {v(E, 2)}")
        e(f"v_exp_f32 v{E}, v{E}")
        e(f"v_exp_f32 v{E + 1}, v{E + 1}")
        e(f"v_pk_mul_f32 {v(U, 2)}, {v(U, 2)}, {v(W2, 2)}")
        e(f"v_pk_add_f32 {v(E, 2)}, {v(E, 2)}, 1.0 op_sel_hi:[1,0]")
        e(f"v_rcp_f32 v{E}, v{E}")
        e(f"v_rcp_f32 v{E + 1}, v{E + 1}")
        e(f"v_pk_fma_f32 {v(ACC, 2)}, {v(U, 2)}, {v(E, 2)}, {v(ACC, 2)}")

    def warm_table(self):
        e = self.e
        e(f"s_lshl_b32 s{sOFF}, s{sR}, 2")
        e(f"s_add_u32 s{sOFF}, s{sOFF}, s{sW}")
        e(f"s_lshl_b32 s{sOFF}, s{sOFF}, 8")
        e(f"s_add_u32 s{sOFF}, s{sOFF}, {TB}")
        e(f"s_mov_b32 m0, {SINK}")
        e(f"v_lshlrev_b32 v{vTMP}, 2, v{vLANE}")
        e.vmem(f"buffer_load_dword v{vTMP}, {srd(SRD_WS)}, s{sOFF} offen sc1 lds")

    def mixer_direct(self, pk, y, flags, back):
        e = self.e
        lines = []
        A = lines.append
        h, f, U, E, acc, w = T(0), T(1), T(2), T(3), T(4), T(5)
        for c in range(2):
            l0, l1, l2 = e.label("mx"), e.label("mxf"), e.label("mxe")
            A(f"{l0}:")
            A(f"s_cmp_eq_u64 {sp(flags[c])}, 0")
            A(f"s_cbranch_scc1 {l2}")
            A(f"s_ff1_i32_b64 s{sCNT}, {sp(flags[c])}")
            A(f"s_bitset0_b64 {sp(flags[c])}, s{sCNT}")
            A(f"v_readlane_b32 s{sOFF}, v{pk}, s{sCNT}")
            A(f"s_lshl_b32 s{sOFF}, s{sOFF}, 16" if c == 0 else f"s_and_b32 s{sOFF}, s{sOFF}, 0xffff0000")
            A(f"v_mov_b32 v{h}, s{sOFF}")
            A(f"v_lshlrev_b32 v{f}, 1, v{vLANE}")
            A(f"v_mov_b32 v{acc}, 0")
            A(f"s_mov_b32 s{sOFF}, 0")
            A(f"{l1}:")
            A(f"buffer_load_ushort v{w}, v{f}, {srd(SRD_W1)}, s{sOFF} offen")
            A(f"buffer_load_ushort v{w + 1}, v{f}, {srd(SRD_B1)}, s{sOFF} offen")
            A(f"buffer_load_ushort v{w + 2}, v{f}, {srd(SRD_W2)}, s{sOFF} offen")
            A("s_waitcnt vmcnt(0)")
            for i in range(3):
                A(f"v_lshlrev_b32 v{w + i}, 16, v{w + i}")
            A(f"v_fma_f32 v{U}, v{h}, v{w}, v{w + 1}")
            A(f"v_mul_f32 v{E}, v{U}, v{U}")
            A(f"v_mul_f32 v{E}, {fbits(-GELU_K * 0.044715)}, v{E}")
            A(f"v_add_f32 v{E}, {fbits(-GELU_K)}, v{E}")
            A(f"v_mul_f32 v{E}, v{U}, v{E}")
            A(f"v_exp_f32 v{E}, v{E}")
            A(f"v_mul_f32 v{U}, v{U}, v{w + 2}")
            A(f"v_add_f32 v{E}, 1.0, v{E}")
            A(f"v_rcp_f32 v{E}, v{E}")
            A(f"s_add_u32 s{sOFF}, s{sOFF}, 128")
            A(f"s_cmp_lt_u32 s{sOFF}, 2752")
            A(f"v_fmac_f32 v{acc}, v{U}, v{E}")
            A(f"s_cbranch_scc1 {l1}")
            for ctl in REDUCE:
                A(f"v_add_f32_dpp v{acc}, v{acc}, v{acc} {ctl} bank_mask:0xf")
            A(f"v_add_f32 v{acc}, s{sB2}, v{acc}")
            A(f"v_readlane_b32 s{sOFF}, v{acc}, 63")
            A(f"s_mov_b32 m0, s{sCNT}")
            A("s_nop 3")
            A(f"v_writelane_b32 v{y + c}, s{sOFF}, m0")
            A(f"s_branch {l0}")
            A(f"{l2}:")
        A(f"s_branch {back}")
        return lines

    def step_b(self, use, b, layer, hooks):
        self.ctx = f"b{use}."
        e = self.e
        x = T(16)
        if layer == 1:
            e(f"v_lshrrev_b32 v{T(29)}, 1, v{cX2}")
            e.vmem(f"buffer_load_dword v{x}, v{T(29)}, {srd(SRD_X)}, 0 offen offset:{1024 * b}")
            e(f"s_mov_b32 s{sM}, {RB + use * 16384}")
        else:
            e(f"s_sub_u32 s{sL}, {FIN + 1}, s2")
            e(f"s_lshl_b32 s{sT0}, s{sL}, 11")
            e(f"s_add_u32 s{sT0}, s{sT0}, {RC}")
            e.vmem(f"buffer_load_dwordx2 {v(x, 2)}, v{cX2}, {srd(SRD_WS)}, s{sT0} offen sc1")
            e(f"s_lshl_b32 s{sM}, s{sL}, 15")
            e(f"s_add_u32 s{sM}, s{sM}, {RB + 16384}")
            e(f"s_lshl_b32 s{sT0}, s{sL}, 1")
            e(f"s_add_u32 s{sTB}, s{sTB}, s{sT0}")
            for o in self.gather_tags(sTG, 1):
                e(o)
        loads = []
        for u in range(4):
            loads.append(f"s_add_u32 s{sT1}, s{sM}, {4096 * u}")
            loads.append(f"buffer_load_dwordx4 {v(T(4 * u), 4)}, v{cX1}, {srd(SRD_WS)}, s{sT1} offen sc1")

        def shadow():
            e(f"v_lshlrev_b32_e64 v{T(26)}, 3, s{sW}")
            e(f"v_mov_b32 v{T(31)}, 0")
            if layer == 1:
                e(f"v_and_b32 v{T(24)}, 511, v{cX2}")
                e(self.tag_op(T(27), 2 + b))
                e(f"s_bfe_u32 s{sT0}, s{sR}, 0x20001")
                e(f"s_cmp_eq_u32 s{sT0}, s{sW}")
                e(f"s_cselect_b64 {sp(sTP)}, -1, 0")

        self.gather(sTG, loads, [(T(i), i & 3) for i in range(16)], T(25), hooks, shadow)
        for k in range(0, 4, 2):
            e(f"v_pk_add_f32 {v(T(k), 2)}, {v(T(k), 2)}, {v(T(4 + k), 2)}")
            e(f"v_pk_add_f32 {v(T(8 + k), 2)}, {v(T(8 + k), 2)}, {v(T(12 + k), 2)}")
        for k in range(4):
            e(f"v_add_f32 v{T(k)}, v{T(k)}, v{T(8 + k)}")
        if layer == 1:
            e(f"v_and_b32 v{x + 1}, 0xffff0000, v{x}")
            e(f"v_lshlrev_b32 v{x}, 16, v{x}")
        self.half_sum(T(0))
        e(f"v_add_f32 v{x}, v{x}, v{T(0)}")
        e(f"v_add_f32 v{x + 1}, v{x + 1}, v{T(1)}")
        self.pair_stats(x, T(18), T(26), ST)
        self.barrier()
        mean, var, rs = self.read_stats(T(0), T(31), ST)
        e(f"v_add_f32 v{rs}, {fbits(1e-5)}, v{var}")
        e(f"v_rsq_f32 v{rs}, v{rs}")
        h = T(18)
        e(f"v_sub_f32 v{h}, v{x}, v{mean}")
        e(f"v_mul_f32 v{var}, v{var}, v{rs}")
        e(f"v_fmaak_f32 v{var}, v{var}, v{rs}, {fbits(1e-5)}")
        e(f"v_rsq_f32 v{var}, v{var}")
        e(f"v_sub_f32 v{h + 1}, v{x + 1}, v{mean}")
        e(f"v_mul_f32 v{rs}, v{rs}, v{var}")
        e(f"v_mul_f32 v{h}, v{h}, v{rs}")
        e(f"v_mul_f32 v{h + 1}, v{h + 1}, v{rs}")
        pk, y = T(28), T(20)
        e(f"v_cvt_pk_bf16_f32 v{pk}, v{h}, v{h + 1}")
        e(f"s_movk_i32 s{sT0}, 0xfff")
        e(f"s_mov_b32 s{sT1}, {self.wave_lds - 8192 if self.tb_lds else TB}")
        e(f"v_and_b32 v{T(8)}, 0x7fff, v{pk}")
        e(f"v_bfe_u32 v{T(9)}, v{pk}, 16, 15")
        e(f"v_bfe_u32 v{T(10)}, v{pk}, 15, 1")
        e(f"v_lshrrev_b32 v{T(11)}, 31, v{pk}")
        for c in range(2):
            e(f"v_subrev_u32 v{T(12 + c)}, {TB_BASE}, v{T(8 + c)}")
        for c in range(2):
            e(f"v_med3_i32 v{T(12 + c)}, v{T(12 + c)}, 0, s{sT0}")
        for c in range(2):
            e(f"v_lshl_add_u32 v{T(12 + c)}, v{T(10 + c)}, 12, v{T(12 + c)}")
        if self.tb_lds:
            for c in range(2):
                e(f"v_lshrrev_b32 v{T(14 + c)}, 11, v{T(12 + c)}")
                e(f"v_lshlrev_b32 v{T(12 + c)}, 2, v{T(12 + c)}")
            for c in range(2):
                e(f"v_mad_u32_u24 v{T(12 + c)}, v{T(14 + c)}, s{sT1}, v{T(12 + c)}")
                tok = e.lds(f"ds_read_b32 v{y + c}, v{T(12 + c)} offset:{SCRATCH + self.RING}")
        else:
            for c in range(2):
                e(f"v_lshlrev_b32 v{T(12 + c)}, 2, v{T(12 + c)}")
                tok = e.vmem(f"buffer_load_dword v{y + c}, v{T(12 + c)}, {srd(SRD_WS)}, s{sT1} offen sc1")
        hooks[2]()
        e(f"s_mov_b32 s{sT0}, {self.tiny}")
        for c in range(2):
            e(f"v_add_u32 v{T(8 + c)}, -1, v{T(8 + c)}")
        e(f"v_cmp_gt_u32 {sp(sTG)}, s{sT0}, v{T(8)}")
        e(f"v_cmp_gt_u32 {sp(sTG + 2)}, s{sT0}, v{T(9)}")
        e(f"s_or_b64 vcc, {sp(sTG)}, {sp(sTG + 2)}")
        e.wait_lg(tok) if self.tb_lds else e.wait_vm(tok)
        lm, lb = e.label("tiny"), e.label("mixed")
        e(f"s_cbranch_vccnz {lm}")
        e(f"{lb}:")
        self.ool.append([f"{lm}:"] + self.mixer_direct(pk, y, (sTG, sTG + 2), lb))
        self.stamp("mix")
        e(f"v_add_f32 v{x}, v{x}, v{y}")
        e(f"v_add_f32 v{x + 1}, v{x + 1}, v{y + 1}")
        if layer == 2:
            e(f"v_lshrrev_b32 v{T(29)}, 1, v{cX2}")
            e(f"s_lshl_b32 s{sT0}, s{sL}, 10")
            if self.out_scale:
                e(f"v_mul_f32 v{x}, {fbits(self.out_scale)}, v{x}")
                e(f"v_mul_f32 v{x + 1}, {fbits(self.out_scale)}, v{x + 1}")
            e(f"v_cvt_pk_bf16_f32 v{x}, v{x}, v{x + 1}")
            e.vmem(f"buffer_store_dword v{x}, v{T(29)}, {srd(SRD_OUT)}, s{sT0} offen")
            return
        e(f"s_mov_b64 exec, {sp(sTP)}")
        e.lds(f"ds_write_b64 v{T(24)}, {v(x, 2)} offset:{XS}")
        e("s_mov_b64 exec, -1")
        self.pair_stats(x, T(18), T(26), ST2)
        l = e.label("keep")
        e(f"s_cmp_lg_u32 s2, {FIN + 1 - b}")
        e(f"s_cbranch_scc1 {l}")
        e.begin_cond()
        e(f"s_mov_b32 s{sT0}, {RC + 2048 * b}")
        e.vmem(f"buffer_store_dwordx2 {v(x, 2)}, v{cX2}, {srd(SRD_WS)}, s{sT0} offen sc1", maybe=True)
        e.end_cond()
        e(f"{l}:")
        self.barrier()
        e.lds(f"ds_read_b128 {v(T(8), 4)}, v{cX3} offset:{XS}")
        e.lds(f"ds_read_b128 {v(T(12), 4)}, v{cX3} offset:{XS + 16}")
        mean, var, rs = self.read_stats(T(0), T(31), ST2)
        e(f"v_add_f32 v{rs}, {fbits(1e-5)}, v{var}")
        e(f"v_rsq_f32 v{rs}, v{rs}")
        for n in range(0, 8, 2):
            e(f"v_pk_add_f32 {v(T(8 + n), 2)}, {v(T(8 + n), 2)}, {v(mean, 2)} op_sel_hi:[1,0] neg_lo:[0,1] neg_hi:[0,1]")
        for n in range(0, 8, 2):
            e(f"v_pk_mul_f32 {v(T(8 + n), 2)}, {v(T(8 + n), 2)}, {v(rs, 2)} op_sel_hi:[1,0]")
        self.q_slice()

    def pair_stats(self, x, s1, addr, where):
        e = self.e
        e(f"v_add_f32 v{s1}, v{x}, v{x + 1}")
        e(f"v_mul_f32 v{s1 + 1}, v{x}, v{x}")
        e(f"v_fmac_f32 v{s1 + 1}, v{x + 1}, v{x + 1}")
        self.wave_reduce("v_add_f32", [s1, s1 + 1])
        e("s_mov_b32 exec_lo, 0")
        e("s_mov_b32 exec_hi, 0x80000000")
        e.lds(f"ds_write_b64 v{addr}, {v(s1, 2)} offset:{where}")
        e("s_mov_b64 exec, -1")

    def read_stats(self, r, zero, where):
        e = self.e
        e.lds(f"ds_read_b128 {v(r, 4)}, v{zero} offset:{where}")
        tok = e.lds(f"ds_read_b128 {v(r + 4, 4)}, v{zero} offset:{where + 16}")
        e.wait_lg(tok)
        e(f"v_pk_add_f32 {v(r, 2)}, {v(r, 2)}, {v(r + 2, 2)}")
        e(f"v_pk_add_f32 {v(r + 4, 2)}, {v(r + 4, 2)}, {v(r + 6, 2)}")
        e(f"v_pk_add_f32 {v(r, 2)}, {v(r, 2)}, {v(r + 4, 2)}")
        self.mean_var(r, r + 1)
        return r, r + 1, r + 2

    def mean_var(self, s1, s2):
        e = self.e
        e(f"v_mul_f32 v{s1}, {fbits(1 / 512)}, v{s1}")
        e(f"v_mul_f32 v{s2}, {fbits(1 / 512)}, v{s2}")
        e(f"v_fma_f32 v{s2}, -v{s1}, v{s1}, v{s2}")
        e(f"v_max_f32 v{s2}, 0, v{s2}")

    def step_c(self, hooks):
        self.ctx = "c."
        e = self.e
        e(f"s_bfe_u32 s{sT0}, s{sR}, 0x20001")
        e(f"s_lshl_b32 s{sT0}, s{sT0}, 8")
        e(f"v_lshrrev_b32 v{T(29)}, 1, v{cX3}")
        e(f"v_bfe_u32 v{T(30)}, v{vLANE}, 3, 1")
        e(f"v_lshl_add_u32 v{T(29)}, v{T(30)}, 10, v{T(29)}")
        e(f"v_lshlrev_b32 v{T(28)}, 4, v{vLANE}")
        e.vmem(f"buffer_load_dwordx4 {v(T(0), 4)}, v{T(28)}, {srd(SRD_X)}, 0 offen")
        e.vmem(f"buffer_load_dwordx4 {v(T(4), 4)}, v{T(28)}, {srd(SRD_X)}, 0 offen offset:1024")
        tok = e.vmem(f"buffer_load_dwordx4 {v(T(16), 4)}, v{T(29)}, {srd(SRD_X)}, s{sT0} offen")
        hooks[1]()
        e.wait_vm(tok)
        for i in range(4):
            e(f"v_lshlrev_b32 v{T(8 + 2 * i)}, 16, v{T(16 + i)}")
            e(f"v_and_b32 v{T(9 + 2 * i)}, 0xffff0000, v{T(16 + i)}")
        st = [T(28), T(29), T(30), T(31)]
        for b in range(2):
            s1, s2 = st[2 * b], st[2 * b + 1]
            for i in range(4):
                e(f"v_lshlrev_b32 v{T(16)}, 16, v{T(4 * b + i)}")
                e(f"v_and_b32 v{T(17)}, 0xffff0000, v{T(4 * b + i)}")
                if i == 0:
                    e(f"v_add_f32 v{s1}, v{T(16)}, v{T(17)}")
                    e(f"v_mul_f32 v{s2}, v{T(16)}, v{T(16)}")
                else:
                    e(f"v_add_f32 v{s1}, v{s1}, v{T(16)}")
                    e(f"v_add_f32 v{s1}, v{s1}, v{T(17)}")
                    e(f"v_fmac_f32 v{s2}, v{T(16)}, v{T(16)}")
                e(f"v_fmac_f32 v{s2}, v{T(17)}, v{T(17)}")
        self.wave_reduce("v_add_f32", st)
        for b in range(2):
            self.mean_var(st[2 * b], st[2 * b + 1])
            e(f"v_add_f32 v{st[2 * b + 1]}, {fbits(1e-5)}, v{st[2 * b + 1]}")
            e(f"v_rsq_f32 v{st[2 * b + 1]}, v{st[2 * b + 1]}")
        for i in range(4):
            e(f"v_readlane_b32 s{sTG + i}, v{st[i]}, 63")
        e(f"s_mov_b32 s{sTP}, 0xff00ff00")
        e(f"s_mov_b32 s{sTP + 1}, 0xff00ff00")
        for i in range(4):
            e(f"v_mov_b32 v{st[i]}, s{sTG + i}")
        e(f"v_cndmask_b32_e64 v{st[0]}, v{st[0]}, v{st[2]}, {sp(sTP)}")
        e(f"v_cndmask_b32_e64 v{st[1]}, v{st[1]}, v{st[3]}, {sp(sTP)}")
        for n in range(8):
            e(f"v_sub_f32 v{T(8 + n)}, v{T(8 + n)}, v{st[0]}")
        for n in range(8):
            e(f"v_mul_f32 v{T(8 + n)}, v{st[1]}, v{T(8 + n)}")
        e(self.tag_op(T(27), 0))
        self.q_slice(both=True)

    def q_slice(self, both=False):
        e = self.e
        D = T(0)
        self.tick()
        for n in range(4):
            e(f"v_cvt_pk_bf16_f32 v{T(8 + n)}, v{T(8 + 2 * n)}, v{T(9 + 2 * n)}")
            e(f"v_mov_b32 v{D + n}, 0")
        ab = [T(4), T(16), T(20), T(28)]
        for p in range(4):
            e(f"v_and_b32 v{ab[p]}, v{T(8 + p)}, v{vMLO}")
            e(f"v_and_b32 v{ab[p] + 1}, v{T(8 + p)}, v{vMHI}")
            e(f"v_lshrrev_b32 v{T(8 + p)}, 16, v{T(8 + p)}")
            e(f"v_and_b32 v{ab[p] + 2}, v{T(8 + p)}, v{vMLO}")
            e(f"v_and_b32 v{ab[p] + 3}, v{T(8 + p)}, v{vMHI}")
            if p:
                e(f"v_smfmac_f32_16x16x64_bf16 {v(D, 4)}, {v(ab[p - 1], 4)}, {v(vWW + 8 * (p - 1), 8)}, v{vIDX}")
        e(f"v_smfmac_f32_16x16x64_bf16 {v(D, 4)}, {v(ab[3], 4)}, {v(vWW + 24, 8)}, v{vIDX}")
        if both:
            base, wsh = SCRATCH + self.RING, 10
            e(f"v_lshrrev_b32 v{T(11)}, 5, v{vLANE}")
            e(f"v_lshl_add_u32 v{T(8)}, s{sW}, 9, v{cPW}")
            e(f"v_mul_u32_u24 v{T(9)}, 504, v{T(11)}")
            e(f"v_add_u32 v{T(8)}, v{T(8)}, v{T(9)}")
            e(f"v_lshl_add_u32 v{T(12)}, v{T(11)}, 16, v{cPR}")
            e(f"v_lshl_add_u32 v{T(9)}, v{T(11)}, 9, v{cPR}")
            e(f"v_add_u32 v{T(27)}, v{T(27)}, v{T(11)}")
            qw, qr, qp = T(8), T(9), T(12)
        else:
            base, wsh = QW, 9
            qw, qr, qp = cPW, cPR, cPR
            e("s_mov_b32 exec_hi, 0")
        e.lds(f"ds_write_b128 v{qw}, {v(D, 4)} offset:{base}")
        self.barrier(tick=False)
        for w in range(4):
            e.lds(f"ds_read_b32 v{T(4 + w)}, v{qr} offset:{base + (w << wsh)}")
        e.wait_lg_all()
        e(f"v_add_f32 v{T(4)}, v{T(4)}, v{T(5)}")
        e(f"v_add_f32 v{T(6)}, v{T(6)}, v{T(7)}")
        e(f"v_add_f32 v{T(4)}, v{T(4)}, v{T(6)}")
        self.tag(T(4), T(27))
        self.publish_local(f"buffer_store_dword v{T(4)}, v{qp}, {srd(SRD_WS)}, s{sPX} offen")
        e("s_mov_b32 exec_hi, -1")
        if both:
            self.barrier()
        self.stamp("pub")

    def step_d(self, use, q, hooks):
        self.ctx = f"d{use}."
        e = self.e
        so = sGD
        if use == 1:
            so = sT1
            e(f"s_add_u32 s{so}, s{sGD}, {RD_HALF}")
        loads = [f"buffer_load_dwordx4 {v(T(4 * i), 4)}, v{cGD}, {srd(SRD_WS)}, s{so} offen offset:{16 * i} sc1"
                 for i in range(2)]
        self.gather(sTG2, loads, [(T(i), i & 3) for i in range(8)], T(17), hooks)
        for ror in (4, 8):
            for i in range(8):
                e(f"v_add_f32_dpp v{T(i)}, v{T(i)}, v{T(i)} row_ror:{ror} row_mask:0xf bank_mask:0xf")
        for i in range(4):
            e(f"v_cvt_pk_bf16_f32 v{q + i}, v{T(2 * i)}, v{T(2 * i + 1)}")

    def prologue(self):
        e = self.e
        self.stamp("start")
        e(f"s_getpc_b64 {sp(sHI)}")
        e("L_pc:")
        e(f"v_lshlrev_b32 v{T(10)}, 7, v0")
        e(f"v_mov_b32 v{T(13)}, s{sHI + 1}")
        e(f"v_add_co_u32 v{T(12)}, vcc, s{sHI}, v{T(10)}")
        e(f"s_load_dwordx16 s[{sKA}:{sKA + 15}], s[0:1], 0")
        e(f"s_load_dwordx8 s[{sKA + 16}:{sKA + 23}], s[0:1], 64")
        e(f"v_addc_co_u32 v{T(13)}, vcc, 0, v{T(13)}, vcc")
        e.vmem(f"global_load_dword v{T(16)}, {v(T(12), 2)}, off")
        e(f"s_load_dwordx2 s[{sKA + 24}:{sKA + 25}], s[0:1], 96")
        e("s_cmp_ge_u32 s2, 256")
        e("s_cbranch_scc1 L_end")
        e(f"v_lshrrev_b32 v{T(0)}, 6, v0")
        e(f"v_and_b32 v{vLANE}, 63, v0")
        e(f"v_readfirstlane_b32 s{sW}, v{T(0)}")
        e(f"s_and_b32 s{sG}, s2, 7")
        e(f"s_lshr_b32 s{sR}, s2, 3")
        e(f"s_lshl_b32 s{sRHO}, s{sG}, 5")
        e(f"s_add_u32 s{sRHO}, s{sRHO}, s{sR}")
        e(f"s_and_b32 s{sROT}, s{sRHO}, 7")
        e(f"s_lshr_b32 s{sT0}, s{sRHO}, 3")
        e(f"s_lshl_b32 s{sROT}, s{sROT}, 3")
        e(f"s_add_u32 s{sROT}, s{sROT}, s{sT0}")
        e(f"s_lshl_b32 s{sT0}, s{sRHO}, 18")
        e(f"s_lshl_b32 s{sT1}, s{sW}, 10")
        e(f"s_add_u32 s{sT0}, s{sT0}, s{sT1}")
        e(f"v_and_b32 v{T(0)}, 3, v{vLANE}")
        e(f"v_bfe_u32 v{T(1)}, v{vLANE}, 2, 1")
        e(f"v_bfe_u32 v{T(4)}, v{vLANE}, 3, 1")
        e(f"v_lshrrev_b32 v{T(2)}, 4, v{vLANE}")
        e(f"v_lshl_add_u32 v{vK}, v{T(0)}, 4, s{sT0}")
        e(f"v_lshl_add_u32 v{vK}, v{T(1)}, 9, v{vK}")
        e(f"v_lshl_add_u32 v{vK}, v{T(4)}, 8, v{vK}")
        e(f"v_lshl_add_u32 v{vK}, v{T(2)}, 6, v{vK}")
        e(f"v_lshl_add_u32 v{vV}, v{vLANE}, 4, s{sT0}")
        e(f"s_mul_i32 s{sLB}, s{sW}, {self.wave_lds}")
        e(f"s_add_u32 s{sLB}, s{sLB}, {SCRATCH}")
        e(f"v_lshl_add_u32 v{vL}, v{vLANE}, 4, s{sLB}")
        ptr = lambda i: sKA + 2 * i

        def mk(base, i, nbytes):
            e(f"s_mov_b32 s{base}, s{ptr(i)}")
            e(f"s_mov_b32 s{base + 1}, s{ptr(i) + 1}")
            e(f"s_mov_b32 s{base + 2}, {nbytes}")
            e(f"s_mov_b32 s{base + 3}, 0x20000")

        e("s_waitcnt lgkmcnt(0)")
        mk(SRD_K, 1, 0x8000000)
        self.burst(self.depth_a)
        e(f"s_load_dword s{sB2}, s[{ptr(9)}:{ptr(9) + 1}], 0")
        e(f"s_add_u32 s{sTG}, s{ptr(12)}, {NONCE}")
        e(f"s_addc_u32 s{sTG + 1}, s{ptr(12) + 1}, 0")
        e(f"s_load_dword s{sCNT}, {sp(sTG)}, 0")
        e(f"s_and_b32 s{sROLE}, s{sR}, 1")
        mk(SRD_WS, 12, 0x20000000)
        mk(SRD_V, 2, 0x8000000)
        mk(SRD_X, 0, 2048)
        mk(SRD_W1, 6, 2752)
        mk(SRD_B1, 7, 2752)
        mk(SRD_W2, 8, 2752)
        mk(SRD_OUT, 10, 2048)
        e(f"v_add_u32 v{T(10)}, 0x8000, v{T(10)}")
        e(f"v_min_u32 v{T(10)}, L_code_end-L_pc-4, v{T(10)}")
        e(f"v_mov_b32 v{T(13)}, s{sHI + 1}")
        e(f"v_add_co_u32 v{T(12)}, vcc, s{sHI}, v{T(10)}")
        e(f"v_addc_co_u32 v{T(13)}, vcc, 0, v{T(13)}, vcc")
        e.vmem(f"global_load_dword v{T(16)}, {v(T(12), 2)}, off")

        def even():
            mk(SRD_WW, 4, 0x400000)
            e(f"s_lshl_b32 s{sWB}, s{sG}, 2")
            e(f"s_add_u32 s{sWB}, s{sWB}, s{sW}")
            e(f"s_lshl_b32 s{sWB}, s{sWB}, 17")
            e(f"s_lshl_b32 s{sT1}, s{sR}, 5")
            e(f"s_add_u32 s{sWB}, s{sWB}, s{sT1}")
            e(f"v_lshrrev_b32 v{T(3)}, 2, v{vLANE}")
            e(f"v_lshlrev_b32 v{T(3)}, 10, v{T(3)}")
            e(f"v_lshl_add_u32 v{T(3)}, v{T(0)}, 4, v{T(3)}")
            e(f"v_lshrrev_b32 v{T(5)}, 5, v{vLANE}")
            e(f"v_mul_u32_u24 v{T(6)}, 640, v{T(5)}")
            e(f"v_and_b32 v{T(7)}, 31, v{vLANE}")
            e(f"v_lshl_add_u32 v{cX1}, v{T(7)}, 4, v{T(6)}")
            e(f"v_and_b32 v{cX2}, 7, v{vLANE}")
            e(f"v_xor_b32 v{cX2}, v{cX2}, v{T(5)}")
            e(f"v_mul_u32_u24 v{cX2}, 640, v{cX2}")
            e(f"v_lshlrev_b32 v{cX3}, 3, v{T(7)}")
            e(f"v_lshl_add_u32 v{cX3}, v{T(5)}, 2, v{cX3}")
            e(f"v_lshl_add_u32 v{cX3}, s{sW}, 8, v{cX3}")

        def odd():
            mk(SRD_WW, 3, 0x400000)
            e(f"s_bfe_u32 s{sWB}, s{sR}, 0x20001")
            e(f"s_lshl_b32 s{sWB}, s{sWB}, 2")
            e(f"s_add_u32 s{sWB}, s{sWB}, s{sW}")
            e(f"s_lshl_b32 s{sWB}, s{sWB}, 18")
            e(f"s_lshr_b32 s{sT1}, s{sRHO}, 3")
            e(f"s_lshl_b32 s{sT1}, s{sT1}, 8")
            e(f"s_add_u32 s{sWB}, s{sWB}, s{sT1}")
            e(f"v_and_b32 v{T(3)}, 15, v{vLANE}")
            e(f"v_lshlrev_b32 v{T(3)}, 4, v{T(3)}")
            e(f"v_bfe_u32 v{T(5)}, v{vLANE}, 4, 1")
            e(f"v_lshl_add_u32 v{T(3)}, v{T(5)}, 13, v{T(3)}")
            e(f"v_lshrrev_b32 v{T(5)}, 5, v{vLANE}")
            e(f"v_lshl_add_u32 v{T(3)}, v{T(5)}, 16, v{T(3)}")
            e(f"v_and_b32 v{T(7)}, 31, v{vLANE}")
            e(f"v_lshlrev_b32 v{T(7)}, 4, v{T(7)}")
            e(f"v_lshl_add_u32 v{T(7)}, s{sW}, 9, v{T(7)}")
            e(f"v_lshl_add_u32 v{cX1}, v{T(5)}, 11, v{T(7)}")
            e(f"v_lshl_add_u32 v{cX2}, v{T(5)}, 3, v{T(7)}")
            e(f"v_lshlrev_b32 v{cX3}, 5, v{T(2)}")
            e(f"v_lshl_add_u32 v{cX3}, s{sW}, 7, v{cX3}")

        self.by_role(even, odd)
        e("s_waitcnt lgkmcnt(0)")
        e(f"s_lshl_b32 s{sB2}, s{sB2}, 16")
        e(f"s_add_u32 s{sN}, s{sCNT}, 1")
        e(f"s_lshl_b32 s{sTB}, s{sN}, 2")
        e(f"s_mov_b32 s{sFF}, 0xff")
        e(f"s_mov_b32 s{sHI}, 0")
        e(f"s_mov_b32 s{sHI + 1}, -1")
        e(f"s_mov_b32 s{sEVH}, 0")
        e(f"s_mov_b32 s{sEVH + 1}, 0x55555555")
        for c in range(4):
            for hh in range(2):
                e(f"s_mov_b32 s{sQ4 + 2 * c + hh}, {0x11111111 << c}")
                e(f"s_mov_b32 s{sBK + 2 * c + hh}, {0x000f000f << (4 * c)}")
        e(f"s_cmp_eq_u32 s{sW}, 0")
        e(f"s_cselect_b32 s{sPUBHI}, -1, 0")
        e(f"s_getreg_b32 s{sXCC}, hwreg(HW_REG_XCC_ID, 0, 4)")

        def say_die():
            e(f"s_xor_b32 s{sT0}, s{sN}, 0x9e3779b9")
            e(f"v_mov_b32 v{T(8)}, s{sT0}")
            e(f"v_mov_b32 v{T(9)}, s{sXCC}")
            e(f"s_lshl_b32 s{sT0}, s{sRHO}, 3")
            e(f"s_add_u32 s{sT0}, s{sT0}, {RX}")
            e("s_mov_b64 exec, 1")
            e.vmem(f"buffer_store_dwordx2 {v(T(8), 2)}, off, {srd(SRD_WS)}, s{sT0} sc1", maybe=True)
            e("s_mov_b64 exec, -1")

        self.wave0(say_die)
        if self.wo_pf:
            def pull():
                e(f"s_lshr_b32 s{sT0}, s{sRHO}, 1")
                e(f"s_lshl_b32 s{sT0}, s{sT0}, 2")
                e(f"s_add_u32 s{sT0}, s{sT0}, s{sW}")
                e(f"s_lshl_b32 s{sT0}, s{sT0}, 13")
                e(f"v_lshlrev_b32 v{vTMP}, 7, v{vLANE}")
                e(f"s_mov_b32 m0, {SINK}")
                e.vmem(f"buffer_load_dword v{vTMP}, {srd(SRD_WW)}, s{sT0} offen lds", maybe=True)

            l = e.label("pull")
            e(f"s_cmp_lg_u32 s{sROLE}, 0")
            e(f"s_cbranch_scc1 {l}")
            e.begin_cond()
            pull()
            e.end_cond()
            e(f"{l}:")
        L, t = vLANE, vTMP
        for o in (f"v_bfe_u32 v{t}, v{L}, 2, 1", f"v_mul_u32_u24 v{vMHI}, 0xffff, v{t}",
                  f"v_xor_b32 v{vMLO}, 0xffff, v{vMHI}", f"v_mul_u32_u24 v{vIDX}, 0x1111, v{T(0)}",
                  f"v_mul_u32_u24 v{cTAG}, {TAGC[1]}, v{T(0)}",
                  f"v_and_b32 v{cPW}, 15, v{L}", f"v_lshlrev_b32 v{cPW}, 5, v{cPW}", f"v_bfe_u32 v{t}, v{L}, 4, 1",
                  f"v_lshl_add_u32 v{cPW}, v{t}, 4, v{cPW}", f"v_lshrrev_b32 v{t}, 5, v{L}",
                  f"v_lshl_add_u32 v{cPW}, v{t}, 3, v{cPW}", f"v_lshl_add_u32 v{cPW}, s{sW}, 9, v{cPW}",
                  f"v_and_b32 v{cPR}, 31, v{L}", f"v_lshlrev_b32 v{cPR}, 2, v{cPR}",
                  f"v_lshl_add_u32 v{cPR}, s{sW}, 7, v{cPR}",
                  f"v_lshlrev_b32 v{t}, 2, v{L}", f"v_add_u32 v{t}, 384, v{t}",
                  f"v_cndmask_b32_e64 v{cPA}, v{cPR}, v{t}, {sp(sHI)}",
                  f"v_bfe_u32 v{t}, v{L}, 2, 2", f"v_lshlrev_b32 v{cGD}, 9, v{t}",
                  f"v_lshl_add_u32 v{cGD}, v{T(2)}, 7, v{cGD}", f"v_lshl_add_u32 v{cGD}, v{T(0)}, 5, v{cGD}"):
            e(o)

    def load_weights(self):
        e = self.e
        stage = self.RING + 8192
        self.stream(self.w_at - self.issued)
        for n in range(8):
            self.stream(self.w_gap)
            le, lj = e.label("wo"), e.label("wj")
            e(f"s_cmp_eq_u32 s{sROLE}, 0")
            e(f"s_cbranch_scc1 {le}")
            e(f"s_add_u32 s{sOFF}, s{sWB}, {8192 * (16 * (n & 1) + 2 * (n >> 1))}")
            self.tok_ww = e.vmem(f"buffer_load_dwordx4 {v(vWW + 4 * n, 4)}, v{T(3)}, {srd(SRD_WW)}, s{sOFF} offen {self.ww_pol}")
            e(f"{lj}:")
            self.ool.append([f"{le}:", f"s_add_u32 m0, s{sLB}, {stage + 1024 * n}",
                             f"s_add_u32 s{sOFF}, s{sWB}, {16384 * n}",
                             f"buffer_load_dwordx4 v{T(3)}, {srd(SRD_WW)}, s{sOFF} offen {self.ww_pol} lds",
                             f"s_branch {lj}"])
        e(f"s_mul_i32 s{sPA}, s{sRHO}, 640")
        e(f"s_lshl_b32 s{sGA}, s{sG}, 2")
        e(f"s_add_u32 s{sGA}, s{sGA}, s{sW}")
        e(f"s_mul_i32 s{sGA}, s{sGA}, {8 * 640}")
        e(f"s_lshr_b32 s{sGD}, s{sRHO}, 3")
        e(f"s_lshl_b32 s{sGD}, s{sGD}, 11")
        e(f"s_add_u32 s{sGD}, s{sGD}, {RD}")
        e(f"s_lshl_b32 s{sT0}, s{sRHO}, 6")
        e(f"s_add_u32 s{sT0}, s{sT0}, {RB}")
        e(f"s_lshr_b32 s{sT1}, s{sRHO}, 1")
        e(f"s_lshl_b32 s{sT1}, s{sT1}, 9")
        e(f"s_add_u32 s{sT1}, s{sT1}, {RD}")
        e(f"s_cmp_eq_u32 s{sROLE}, 0")
        e(f"s_cselect_b32 s{sPX}, s{sT0}, s{sT1}")
        e(f"s_lshr_b32 s{sRF}, s{sRHO}, 1")
        e(f"s_lshl_b32 s{sRF}, s{sRF}, 7")
        e(f"s_add_u32 s{sRF}, s{sRF}, {RF}")
        e(f"s_and_b32 s{sBOOST}, s{sR}, {1 if self.boost_e else 29}")
        e(f"s_cmp_eq_u32 s{sBOOST}, {0 if self.boost_e else 12}")
        e(f"s_cselect_b32 s{sBOOST}, 1, 0")
        assert RA == 0

    def transpose_wo(self):
        e = self.e
        stage = self.RING + 8192
        e.wait_vm(self.tok_ww)
        a = T(0)
        e(f"v_bfe_u32 v{a}, v{vLANE}, 2, 2")
        e(f"v_lshl_add_u32 v{a}, v{a}, 6, s{sLB}")
        e(f"v_and_b32 v{T(1)}, 3, v{vLANE}")
        e(f"v_lshl_add_u32 v{a}, v{T(1)}, 3, v{a}")
        e(f"v_lshrrev_b32 v{T(1)}, 4, v{vLANE}")
        e(f"v_lshl_add_u32 v{a}, v{T(1)}, 9, v{a}")
        for ct in range(2):
            for n in range(4):
                for k in range(2):
                    e.lds(f"ds_read_b64_tr_b16 {v(vWW + 16 * ct + 4 * n + 2 * k, 2)}, v{a} "
                          f"offset:{stage + 2048 * n + 256 * k + 32 * ct}")
            e.wait_lg_all()
        if self.prewrite:
            e(self.tag_op(T(1), 64))
            e(f"v_lshlrev_b32 v{a}, 2, v{vLANE}")
            e(f"s_lshl_b32 s{sT0}, s{sW}, 14")
            e(f"s_add_u32 s{sT0}, s{sT0}, s{sPX}")
            e("s_mov_b32 exec_hi, 0")
            e.vmem(f"buffer_store_dword v{T(1)}, v{a}, {srd(SRD_WS)}, s{sT0} offen sc1")
            e("s_mov_b32 exec_hi, -1")

    def locality(self):
        self.ctx = "x."
        e = self.e
        e(f"v_and_b32 v{T(6)}, 31, v{vLANE}")
        e(f"v_lshlrev_b32 v{T(6)}, 3, v{T(6)}")
        e(f"s_lshl_b32 s{sT1}, s{sG}, 8")
        e(f"s_add_u32 s{sT1}, s{sT1}, {RX}")
        e(f"s_xor_b32 s{sT0}, s{sN}, 0x9e3779b9")
        ld = f"buffer_load_dwordx2 {v(T(4), 2)}, v{T(6)}, {srd(SRD_WS)}, s{sT1} offen sc1"
        tok = e.vmem(ld)
        self.stream(self.cur_depth() - 1)
        e.wait_vm(tok)
        self.retry([ld], [f"v_cmp_ne_u32 vcc, s{sT0}, v{T(4)}"])
        e(f"v_cmp_ne_u32 vcc, s{sXCC}, v{T(5)}")
        e("s_cmp_eq_u64 vcc, 0")
        e(f"s_cselect_b32 s{sFAST}, {0 if self.force_slow else 1}, 0")

    def build(self):
        e = self.e
        K0, V0, K1, V1 = ([(k, b, t) for t in range(64)] for k, b in (("K", 0), ("V", 0), ("K", 1), ("V", 1)))
        self.items = K0 + V0 + K1 + V1
        for t in range(64):
            self.home[K0[t]] = self.reg_home(t)
            self.home[V0[t]] = self.v_home(t)
        for t in range(self.ring):
            self.home[K1[t]] = ("l", self.RING + t * 1024)
        nop = lambda: None
        idle = (nop, nop, nop)
        follow = lambda: self.stream(self.cur_depth() - 1)
        bursts = lambda *k: tuple((lambda n=n: self.burst(n)) for n in k)
        emit = lambda ops: [e(o) for o in ops]
        QM, ACC, S = T(0), T(16), T(28)
        R, O, AB, STG = T(0), T(16), T(8), T(24)

        self.prologue()
        self.mark("prologue")
        self.load_weights()
        self.stream(self.x_at - self.issued)
        self.locality()
        self.stream(self.c_at - self.issued)
        self.burst(self.slack[0])
        self.by_role(self.transpose_wo, lambda: (e.wait_vm(self.tok_ww), self.step_c((nop, follow))), self.depth_a)
        self.take_rank(0)
        self.build_table()
        self.mark("table")
        self.take_rank(1)
        emit(self.gather_tags(sTG2, 0))
        self.step_d(0, T(28), (self.barrier, follow))
        self.mark("q1")
        self.burst(self.slack[1])

        self.qk(K0, T(28), QM, S, ACC, arrive=self.arrive)
        self.warm_table()
        self.burst(self.slack[2])
        lsum = self.softmax(S, R, T(8), O)
        self.mode = "W"
        self.pv(V0, R, O, AB, STG, lsum, self.prep_p(0) + self.gather_tags(sTG2, 2), arrive=self.arrive)
        self.mark("pv0")
        pace, self.pace = self.pace, 1 << 30
        self.step_p(0, O)
        we, wo = self.win_e, self.win_o
        self.by_role(lambda: (self.step_a(0, bursts(0, we[0])), self.burst(we[1])),
                     lambda: self.step_b(0, 0, 1, (lambda: (self.burst(wo[0]), self.await_flag(0)),) + bursts(*wo[1:])))
        self.step_d(2, T(28), bursts(0, self.win_d))
        self.burst(128 + self.ring - self.issued)
        self.mark("d0")

        self.pace = pace
        self.mode = "C"
        self.depth_now = self.depth_s
        if self.touched:
            near, far = self.items[self.issued:][:self.touched], self.items[self.issued:][self.touched:]
            fp, mix = self.far_per_near, []
            for i in range(len(near)):
                mix += far[fp * i:fp * (i + 1)] + [near[i]]
            self.items[self.issued:] = mix + far[fp * len(near):]
            self.depth_now = self.depth_r
            self.per_tick = 2
            self.touched = 0

        def free_k(t):
            self.freed = t + 1
            if t < 28 and self.in_flight() < self.depth_now:
                self.burst(1)

        self.qk(K0, T(28), QM, S, ACC, hook=free_k)
        self.pv(V0, R, O, AB, STG, self.softmax(S, R, T(8), O), self.prep_p(1) + self.gather_tags(sTG2, 1))
        for t in range(64):
            self.home[V1[t]] = self.v_home(t)
        self.mark("pass2_0")
        self.step_p(1, O)
        for t in range(self.ring):
            self.arrive(K1[t])
            h = self.reg_home(64 - self.ring + t)
            e.lds(f"ds_read_b128 {h[1]}, v{vL} offset:{self.home[K1[t]][1]}")
            self.home[K1[t]] = h
            self.tick()
        e.wait_lg_all()
        self.per_tick = 1
        self.take_rank(2)

        def fetch_table():
            e(f"v_lshlrev_b32 v{vTMP}, 4, v{vLANE}")
            e(f"s_lshl_b32 s{sT0}, s{sW}, 13")
            e(f"s_add_u32 s{sT0}, s{sT0}, {TB}")
            for n in range(8):
                self.stream(self.tb_gap)
                e(f"s_add_u32 m0, s{sLB}, {self.RING + 1024 * n}")
                e(f"s_add_u32 s{sT1}, s{sT0}, {1024 * n}")
                e.vmem(f"buffer_load_dwordx4 v{vTMP}, {srd(SRD_WS)}, s{sT1} offen sc1 lds")
            self.barrier()

        self.by_role(lambda: self.step_a(1, (lambda: self.stream(self.shadow), follow)), fetch_table, self.depth_s)
        self.tb_lds = True
        self.depth_now = self.depth_s
        self.mark("a1")
        if self.recode:
            e(f"s_getpc_b64 {sp(sTP)}")
            e("L_pc2:")
            e(f"v_lshlrev_b32 v{T(20)}, 7, v{vLANE}")
            e(f"v_lshl_add_u32 v{T(20)}, s{sW}, 13, v{T(20)}")
            e(f"v_min_u32 v{T(20)}, L_code_end-L_pc2-4, v{T(20)}")
            e(f"v_mov_b32 v{T(23)}, s{sTP + 1}")
            e(f"v_add_co_u32 v{T(22)}, vcc, s{sTP}, v{T(20)}")
            e(f"v_addc_co_u32 v{T(23)}, vcc, 0, v{T(23)}, vcc")
            e.vmem(f"global_load_dword v{T(20)}, {v(T(22), 2)}, off")
        for _ in range(self.pad):
            e("s_nop 0")
        self.take_rank(3)
        self.step_d(1, T(28), (nop, follow))

        self.qk(K1, T(28), QM, S, ACC, arrive=self.arrive)
        self.depth_now = None
        self.take_rank(4)
        self.burst(self.slack[3])
        self.pv(V1, R, O, AB, STG, self.softmax(S, R, T(8), O), self.prep_p(2) + self.gather_tags(sTG2, 3),
                arrive=self.arrive)
        self.mark("pv1")
        self.pace = 1 << 30
        self.step_p(2, O)
        self.by_role(lambda: self.step_a(2, idle), lambda: self.step_b(2, 1, 1, (lambda: self.await_flag(2), nop, nop)))
        self.step_d(3, T(28), idle)
        self.mark("d1")

        late = self.prep_p(3)
        early = [o for o in late if o.startswith("s_a")]
        late = [o for o in late if not o.startswith("s_a")]
        self.tail_pass(K1, V1, early, late)
        self.mark("pass2_1")
        self.step_p(3, O)

        def finish():
            e(f"s_sub_u32 s{sT0}, s2, {FIN}")
            e(f"s_cmp_gt_u32 s{sT0}, 1")
            e("s_cbranch_scc1 L_done")
            self.step_b(3, 1, 2, (lambda: self.await_flag(3), nop, nop))
            self.mark("end")
            e(f"s_sub_u32 s{sT0}, s2, {FIN}")
            e(f"s_or_b32 s{sT0}, s{sT0}, s{sW}")
            e(f"s_cmp_lg_u32 s{sT0}, 0")
            e("s_cbranch_scc1 L_done")
            e(f"v_mov_b32 v{T(0)}, s{sN}")
            e(f"s_mov_b32 s{sT0}, {NONCE}")
            e("s_mov_b64 exec, 1")
            e(f"buffer_store_dword v{T(0)}, off, {srd(SRD_WS)}, s{sT0} sc1")
            e("s_mov_b64 exec, -1")

        self.by_role(lambda: self.step_a(3, idle), finish)
        e("L_done:")
        self.dump_stamps()
        e("L_end:")
        e("s_endpgm")
        for blk in self.ool:
            for l in blk:
                e(l)
        e("L_code_end:")

    def tail_pass(self, K1, V1, early, late):
        e = self.e
        QM, ACC, S = T(0), T(16), T(28)
        R, O, AB, STG = T(0), T(16), T(8), T(24)
        owner = {self.home[k][1]: t for t, k in enumerate(K1)}
        base = min(range(0, 64 - self.nhome + 1, 2),
                   key=lambda b: max(owner[self.reg_home(b + i)[1]] for i in range(self.nhome)))
        target = {t: self.reg_home(base + t) for t in range(self.nhome)}
        todo = sorted(target, key=lambda t: owner[target[t][1]])

        def side(u):
            ops = []
            while len(ops) < 2 and todo and owner[target[todo[0]][1]] < 4 * u:
                t = todo.pop(0)
                ops.append(f"ds_read_b128 {target[t][1]}, v{vL} offset:{self.home[V1[t]][1]}")
                self.home[V1[t]] = target[t]
            while len(ops) < 2 and early and u >= 2:
                ops.append(early.pop(0))
            return ops

        self.qk(K1, T(28), QM, S, ACC, side=side)
        for t in list(todo):
            e.lds(f"ds_read_b128 {target[t][1]}, v{vL} offset:{self.home[V1[t]][1]}")
            self.home[V1[t]] = target[t]
        self.mark("qk")
        lsum = self.softmax(S, R, T(8), O)
        e.wait_lg_all()
        self.mark("sm")
        self.pv(V1, R, O, AB, STG, lsum, early + late)

    def text(self):
        self.build()
        head = [l for l in open(REF).read().split("\n") if l.startswith(";") and "@launch" not in l]
        body = self.e.finish()
        out = "\n".join(head) + "\n"
        out += "; @launch grid=(256,1,1) block=(256,1,1) lds=163840\n"
        out += '.amdgcn_target "amdgcn-amd-amdhsa--gfx950"\n.text\n'
        out += f".globl {KNAME}\n.p2align 8\n.type {KNAME},@function\n{KNAME}:\n"
        out += body
        out += '.section .rodata,"a"\n.p2align 6\n'
        out += f".amdhsa_kernel {KNAME}\n"
        out += "  .amdhsa_next_free_vgpr 512\n  .amdhsa_next_free_sgpr 102\n  .amdhsa_accum_offset 256\n"
        out += "  .amdhsa_group_segment_fixed_size 0\n  .amdhsa_kernarg_size 104\n"
        out += "  .amdhsa_user_sgpr_count 2\n  .amdhsa_user_sgpr_kernarg_segment_ptr 1\n"
        out += "  .amdhsa_system_sgpr_workgroup_id_x 1\n.end_amdhsa_kernel\n"
        return out


if __name__ == "__main__":
    cfg = eval(sys.argv[2]) if len(sys.argv) > 2 else {}
    g = Gen(**cfg)
    open(sys.argv[1], "w").write(g.text())
    print("ring", g.ring, "homes", g.nhome, "instructions", len(g.e.ins))
```
